```python
import torch

def _softmax(x, axis=-1):
    return torch.softmax(x, dim=axis)
def _gelu(x):
    return torch.nn.functional.gelu(x, approximate="tanh")
def _silu(x):
    return torch.nn.functional.silu(x)
def _sigmoid(x):
    return torch.sigmoid(x)
def _layernorm(x, axis=-1, eps=1e-5):
    m = x.mean(dim=axis, keepdim=True)
    v = x.var(dim=axis, keepdim=True, unbiased=False)
    return (x - m) / torch.sqrt(v + eps)
def _scatter_add(tgt, idx, src, axis=0):
    return tgt.clone().index_add_(axis, idx, src)
def _segment_sum(src, seg, n):
    out = torch.zeros((n,) + src.shape[1:], dtype=src.dtype)
    return out.index_add_(0, seg, src)
def _pad(x, pw):
    flat = tuple(v for pair in reversed(pw) for v in pair)
    return torch.nn.functional.pad(x, flat)

kernel_name = 'interleave_layers__mha_block_cached__glu_gated_swiglu__decode'

def setup_inputs():

    _w = (lambda a: (lambda t: t.to(torch.bfloat16) if t.is_floating_point() else t)(torch.as_tensor(a)))
    def _A_setup():
        B, Sq, D = 1, 1, 640
        H, Sk, Dh = 32, 4096, 128
        return {
            "x": _w((lambda *s: torch.randn(*s, dtype=torch.bfloat16) * 0.05)(B, Sq, D)),
            "k_cache": _w((lambda *s: torch.randn(*s, dtype=torch.bfloat16) * 0.8)(B, H, Sk, Dh)),
            "v_cache": _w((lambda *s: torch.randn(*s, dtype=torch.bfloat16) * 0.8)(B, H, Sk, Dh)),
            "wq": _w((lambda *s: torch.randn(*s, dtype=torch.bfloat16) * 0.8)(D, H * Dh) * (D ** -0.5)),
            "wo": _w((lambda *s: torch.randn(*s, dtype=torch.bfloat16) * 0.8)(H * Dh, D) * ((H * Dh) ** -0.5)),
        }
    _A_in = _A_setup()

    def _B_setup():
        B, S, D, F = 1, 1, 640, 1728
        return {
            "x": _w((lambda *s: torch.randn(*s, dtype=torch.bfloat16) * 0.05)(B, S, D)),
            "w1": _w((lambda *s: torch.randn(*s, dtype=torch.bfloat16) * 0.2)(D, F) * (2.0 / D) ** 0.5),
            "w3": _w((lambda *s: torch.randn(*s, dtype=torch.bfloat16) * 0.2)(D, F) * (2.0 / D) ** 0.5),
            "w2": _w((lambda *s: torch.randn(*s, dtype=torch.bfloat16) * 0.2)(F, D) * (2.0 / F) ** 0.5),
        }
    _B_in = _B_setup()

    return {
        "A_x": _A_in["x"],
        "A_k_cache": _A_in["k_cache"],
        "A_v_cache": _A_in["v_cache"],
        "A_wq": _A_in["wq"],
        "A_wo": _A_in["wo"],
        "B_x": _B_in["x"],
        "B_w1": _B_in["w1"],
        "B_w3": _B_in["w3"],
        "B_w2": _B_in["w2"],
    }

def reference(A_x, A_k_cache, A_v_cache, A_wq, A_wo, B_x, B_w1, B_w3, B_w2):
    def _A_ref(x, k_cache, v_cache, wq, wo):
        B, Sq, D = x.shape
        H, Dh = 32, 128
        q = (lambda x, *d: x.permute(*d))((x @ wq).reshape(B, Sq, H, Dh), 0, 2, 1, 3)
        scores = torch.einsum("bhqd,bhkd->bhqk", q, k_cache) * (Dh ** -0.5)
        p = _softmax(scores, axis=-1)
        o = torch.einsum("bhqk,bhkd->bhqd", p, v_cache)
        return (lambda x, *d: x.permute(*d))(o, 0, 2, 1, 3).reshape(B, Sq, H * Dh) @ wo

    def _B_ref(x, w1, w3, w2):
        gate = torch.einsum("bsd,df->bsf", x, w1)
        up = torch.einsum("bsd,df->bsf", x, w3)
        h = _silu(gate) * up
        out = torch.einsum("bsf,fd->bsd", h, w2)
        return out

    x = A_x
    x = x + _A_ref(_layernorm(x, axis=-1), A_k_cache, A_v_cache, A_wq, A_wo)
    x = x + _B_ref(_layernorm(x, axis=-1), B_w1, B_w3, B_w2)
    x = x + _A_ref(_layernorm(x, axis=-1), A_k_cache, A_v_cache, A_wq, A_wo)
    x = x + _B_ref(_layernorm(x, axis=-1), B_w1, B_w3, B_w2)
    return x
```

```python
import re

TRANS = ("v_exp_f32", "v_log_f32", "v_rcp_f32", "v_rsq_f32", "v_sqrt_f32", "v_sin_f32", "v_cos_f32")

def regs_of(tok):
    tok = tok.strip()
    tok = tok.lstrip('-')
    m = re.fullmatch(r"abs\((.*)\)", tok)
    if m: tok = m.group(1)
    m = re.fullmatch(r"([vsa])(\d+)", tok)
    if m: return {(m.group(1), int(m.group(2)))}
    m = re.fullmatch(r"([vsa])\[(\d+):(\d+)\]", tok)
    if m: return {(m.group(1), i) for i in range(int(m.group(2)), int(m.group(3))+1)}
    if tok in ("vcc", "vcc_lo", "vcc_hi"): return {("vcc", 0)}
    if tok == "m0": return {("m0", 0)}
    if tok in ("exec", "exec_lo", "exec_hi"): return {("exec", 0)}
    return set()

class Ins:
    def __init__(self, text):
        self.text = text
        t = text.split(';')[0].strip()
        self.is_label = t.endswith(':')
        self.is_dir = t.startswith('.') and not self.is_label
        self.op = t.split()[0] if t else ""
        rest = t[len(self.op):].strip()
        ops = []; depth = 0; cur = ""
        for ch in rest:
            if ch == '[': depth += 1
            if ch == ']': depth -= 1
            if ch == ',' and depth == 0: ops.append(cur.strip()); cur = ""
            else: cur += ch
        if cur.strip(): ops.append(cur.strip())
        self.mods = ""
        if ops:
            parts = ops[-1].split(None, 1)
            ops[-1] = parts[0]
            if len(parts) > 1: self.mods = parts[1]
        self.ops = ops
        op = self.op
        self.mfma = op.startswith("v_mfma") or op.startswith("v_smfmac")
        self.smf = op.startswith("v_smfmac")
        self.valu = op.startswith("v_") and not self.mfma
        self.salu = op.startswith("s_")
        self.vmem = op.startswith(("buffer_", "global_", "flat_"))
        self.ds = op.startswith("ds_")
        self.dpp = "_dpp" in op
        self.trans = op.replace("_e32","").replace("_e64","") in TRANS
        self.perml = op.startswith("v_permlane")
        self.rdlane = op.startswith(("v_readlane", "v_readfirstlane"))
        R = [regs_of(o) for o in ops]
        self.w = set(); self.r = set()
        if self.mfma:
            self.w = R[0]; self.r = set().union(*R[1:])
            self.srcc = R[0] if self.smf else R[3]
            self.ab = (R[1] | R[2] | (R[3] if self.smf else set()))
            if self.smf: self.r |= R[0]
        elif self.valu:
            if self.perml or op.startswith("v_swap"):
                self.w = R[0] | R[1]; self.r = R[0] | R[1]
            elif op.startswith(("v_add_co", "v_addc_co", "v_sub_co", "v_subb_co", "v_mad_u64")):
                self.w = R[0] | R[1]; self.r = set().union(*R[2:])
            else:
                self.w = R[0]; self.r = set().union(*R[1:]) if len(R) > 1 else set()
                if op.startswith(("v_fmac", "v_writelane", "v_dot2c", "v_pk_fmac")) or self.dpp: self.r |= R[0]
                if op.startswith("v_cmpx"): self.w |= {("exec", 0)}
        elif self.vmem:
            lds = " lds" in (" " + self.mods) or "_lds_" in op
            self.ldsdma = lds
            if "_load" in op and not lds:
                self.w = R[0]; self.r = set().union(*R[1:])
            else:
                self.r = set().union(*R)
            if lds: self.r |= {("m0", 0)}
            self.wide_store = ("store" in op and op.endswith(("x3", "x4")))
            if self.wide_store:
                self.sdata = R[0] if op.startswith("buffer_") else R[1]
        elif self.ds:
            if op.startswith(("ds_read", "ds_bpermute", "ds_permute", "ds_swizzle")):
                self.w = R[0]; self.r = set().union(*R[1:])
            else:
                self.r = set().union(*R)
        elif self.salu and ops:
            if op.startswith(("s_cmp", "s_cbranch", "s_branch", "s_waitcnt", "s_nop", "s_sleep", "s_setprio", "s_barrier", "s_bitcmp")):
                self.r = set().union(*R)
            else:
                self.w = R[0]; self.r = set().union(*R[1:]) if len(R) > 1 else set()
                if "saveexec" in op: self.w |= {("exec", 0)}
    def states(self):
        if self.is_label or self.is_dir or not self.op: return 0
        if self.op == "s_nop": return int(self.ops[0], 0) + 1
        return 1

def isv(s): return {x for x in s if x[0] in "va" and x[0] != "vcc"}
def iss(s): return {x for x in s if x[0] in ("s", "vcc")}

def need(p, c):
    n = 0
    if p.valu:
        pv = isv(p.w); ps = iss(p.w)
        if c.mfma and pv & c.r: n = max(n, 2)
        if c.valu and c.dpp and pv & c.r: n = max(n, 2)
        if c.perml and pv & c.r: n = max(n, 2)
        if c.rdlane and pv & c.r: n = max(n, 1)
        if p.trans and (c.valu or c.vmem or c.ds) and pv & c.r: n = max(n, 1)
        if c.valu and ps & c.r: n = max(n, 4 if c.op.startswith(("v_readlane", "v_writelane")) else 2)
        if c.vmem and ps & c.r: n = max(n, 5)
        if ("exec", 0) in p.w:
            if c.dpp: n = max(n, 5)
            if c.mfma or c.perml or c.rdlane: n = max(n, 4)
    if p.mfma:
        passes = 8 if "32x32" in p.op else 4
        big = {4: 8, 8: 12}[passes]; part = {4: 6, 8: 10}[passes]; war = {4: 3, 8: 7}[passes]
        if c.mfma:
            if p.w & c.ab: n = max(n, big)
            if p.w & c.srcc and p.w != c.srcc: n = max(n, part)
            if p.w & c.w and p.w != c.srcc: n = max(n, part)
        elif (c.valu or c.vmem or c.ds) and p.w & (c.r | c.w): n = max(n, big)
        if c.valu and p.srcc & c.w: n = max(n, war)
    if p.salu and ("m0", 0) in p.w and c.vmem and getattr(c, "ldsdma", False): n = max(n, 1)
    if p.vmem and getattr(p, "wide_store", False) and (c.valu or c.mfma) and p.sdata & c.w: n = max(n, 2)
    return n

class Asm:
    def __init__(self):
        self.lines = []
        self.hist = []
        self.npad = 0
    def raw(self, text):
        self.lines.append(text)
    def __call__(self, text):
        for t in text.split("\n"):
            t = t.strip()
            if not t: continue
            if t.startswith(";"):
                self.lines.append("    " + t); continue
            ins = Ins(t)
            if ins.is_label or ins.is_dir:
                self.lines.append(t); continue
            dist = 0; pad = 0
            for p in reversed(self.hist):
                nd = need(p, ins)
                if nd > dist: pad = max(pad, nd - dist)
                dist += p.states()
                if dist >= 20: break
            if pad:
                self.npad += pad
                nop = Ins(f"s_nop {pad-1}")
                self.lines.append(f"    s_nop {pad-1}")
                self.hist.append(nop)
            self.lines.append("    " + t)
            self.hist.append(ins)
            if ins.op in ("s_branch", "s_endpgm"):
                self.hist = []
    def text(self):
        return "\n".join(self.lines) + "\n"
```

```python
import sys, math
from asmlib import Asm

NAME = "interleave_layers__mha_block_cached__glu_gated_swiglu__decode"

LSTRIDE = 0x20000
OB, QB, YB, ZB, HB, AB = 0x0, 0x10000, 0x12000, 0x15000, 0x18000, 0x19000
WS_COMM = 0x40000
WS_STAMP = 0x100000
OOB = 0x7f000000
L_WQ = 0; L_W13 = 20480; L_WO = 40960; L_W2 = 73728
L_XI = 90112
L_ST = L_XI + 2560
L_ML = L_ST + 5120
L_OP = L_ML + 640
L_RED = L_OP + 4096
L_FLAG = L_RED + 2048
LDS_BYTES = L_FLAG + 64
sX, sJ, sW, sHead, sC, sKV, sIt, sLay, sFast, sTO, sT0, sT1, sT2, sT3, sPL, sPH, sSI = \
    ["s%d" % i for i in range(3, 20)]
sV_ = "s20"; sM = "s21"; sA1 = "s22"; sA2 = "s23"; sHI = "s24"
P = lambda i: (36 + 2*i, 37 + 2*i)
SRD = dict(K=60, V=64, WS=68, WQ=72, WO=76, W2=80, X=84, OUT=88, DBG=92)
def srd(n): return f"s[{SRD[n]}:{SRD[n]+3}]"
vLane, vR0, vQ64, vIdx, vXp0, vXp1, vML, vST = ["v%d" % i for i in range(8)]
vA = 8
vKoff, vVoff = "v12", "v13"
S0 = 32; K0 = 64; V0 = 128; L0 = 192
def vr(a, n): return f"v[{a}:{a+n-1}]" if n > 1 else f"v{a}"
DPPF = "row_mask:0xf bank_mask:0xf"

def gen(stamps=False, sl_q=0, sl_o=0, sl_y=2, sl_h=0, force_slow=False, nt="nt"):
    A = Asm()
    def stamp():
        if not stamps: return
        A("s_memrealtime s[96:97]")
        A("s_waitcnt lgkmcnt(0)")
        A(f"s_mov_b32 m0, {sSI}")
        A(f"v_writelane_b32 {vST}, s96, m0")
        A(f"s_add_u32 {sSI}, {sSI}, 1")
    def mksrd(n, ptr, size):
        b = SRD[n]; lo, hi = P(ptr)
        A(f"s_mov_b32 s{b}, s{lo}")
        A(f"s_and_b32 s{b+1}, s{hi}, 0xffff")
        A(f"s_mov_b32 s{b+2}, {size}")
        A(f"s_mov_b32 s{b+3}, 0x20000")
    def retry(label, sleep):
        A(f"s_cbranch_vccz {label}_ok")
        A(f"s_sub_u32 {sTO}, {sTO}, 1")
        if sleep: A(f"s_sleep {sleep}")
        A(f"s_cbranch_scc0 {label}")
        A("s_branch L_end")
        A(f"{label}_ok:")
    def store_intra(label, stores):
        A(f"s_cmp_eq_u32 {sFast}, 0")
        A(f"s_cbranch_scc1 {label}_slow")
        for s in stores: A(s)
        A(f"s_branch {label}_done")
        A(f"{label}_slow:")
        for s in stores: A(s + " sc1")
        A(f"{label}_done:")
    def packpair(dst, val, tmp):
        A(f"v_mov_b32_dpp {tmp}, {val} quad_perm:[1,1,3,3] {DPPF}")
        A(f"v_cvt_pk_bf16_f32 {dst}, {val}, {tmp}")
        A(f"v_min_u32 {dst}, -2, {dst}")

    A("s_cmp_ge_u32 s2, 256")
    A("s_cbranch_scc1 L_exit")
    A("s_load_dwordx16 s[36:51], s[0:1], 0")
    A("s_load_dwordx8 s[52:59], s[0:1], 64")
    if stamps:
        A(f"s_mov_b32 {sSI}, 0"); A(f"v_mov_b32 {vST}, 0")
        stamp()
    A("v_lshrrev_b32 v14, 6, v0")
    A(f"v_and_b32 {vLane}, 63, v0")
    A(f"v_readfirstlane_b32 {sW}, v14")
    A(f"s_and_b32 {sX}, s2, 7")
    A(f"s_lshr_b32 {sJ}, s2, 3")
    A(f"s_lshr_b32 {sT0}, {sJ}, 3")
    A(f"s_lshl_b32 {sHead}, {sX}, 2")
    A(f"s_add_u32 {sHead}, {sHead}, {sT0}")
    A(f"s_and_b32 {sC}, {sJ}, 7")
    A(f"s_lshl_b32 {sKV}, {sHead}, 20")
    A(f"s_lshl_b32 {sT0}, {sC}, 17")
    A(f"s_add_u32 {sKV}, {sKV}, {sT0}")
    A(f"s_lshl_b32 {sT0}, {sW}, 14")
    A(f"s_add_u32 {sKV}, {sKV}, {sT0}")
    A(f"s_mov_b32 {sTO}, 0x80000")
    A(f"s_mov_b32 {sIt}, 0")
    A(f"s_mov_b32 {sLay}, 0")
    A(f"s_mov_b32 {sPL}, 0x05040100")
    A(f"s_mov_b32 {sPH}, 0x07060302")
    A(f"s_mov_b32 {sHI}, 0xffff0000")
    A(f"v_and_b32 v14, 15, {vLane}")
    A(f"v_lshrrev_b32 v15, 4, {vLane}")
    A(f"v_lshlrev_b32 {vKoff}, 8, v14")
    A(f"v_lshl_add_u32 {vKoff}, v15, 4, {vKoff}")
    A(f"v_lshlrev_b32 {vVoff}, 11, v15")
    A(f"v_lshl_add_u32 {vVoff}, v14, 4, {vVoff}")
    A(f"v_lshrrev_b32 v16, 1, {vLane}")
    A(f"v_and_b32 v17, 1, {vLane}")
    A(f"v_lshlrev_b32 v18, 13, v16")
    A(f"v_lshl_add_u32 v18, v17, 4, v18")
    A(f"v_lshrrev_b32 v19, 2, {vLane}")
    A(f"v_mul_u32_u24 v19, 1280, v19")
    A(f"v_and_b32 v20, 3, {vLane}")
    A(f"v_lshl_add_u32 v19, v20, 4, v19")
    A("s_waitcnt lgkmcnt(0)")
    mksrd("WS", 11, WS_COMM); mksrd("X", 0, 1280); mksrd("WQ", 3, 640*4096*2)
    mksrd("K", 1, 1 << 25); mksrd("V", 2, 1 << 25); mksrd("WO", 4, 4096*640*2)
    mksrd("W2", 8, 1728*640*2); mksrd("OUT", 9, 1280); mksrd("DBG", 10, 256)
    A(f"s_cmp_eq_u32 {sW}, 7")
    A("s_cbranch_scc0 L_noclear")
    for r in range(24, 28): A(f"v_mov_b32 v{r}, -1")
    A(f"v_lshlrev_b32 v21, 4, {vLane}")
    A(f"s_lshl_b32 {sT0}, s2, 10")
    A(f"buffer_store_dwordx4 v[24:27], v21, {srd('WS')}, {sT0} offen sc1")
    A(f"s_getreg_b32 {sT1}, hwreg(HW_REG_XCC_ID, 0, 3)")
    A(f"s_lshl_b32 {sT1}, {sT1}, 3")
    A(f"s_lshl_b64 s[26:27], 1, {sT1}")
    A("v_mov_b32 v22, s26"); A("v_mov_b32 v23, s27")
    A(f"s_lshl_b32 {sT0}, {sX}, 3")
    A(f"v_mov_b32 v21, {OOB}")
    A(f"v_writelane_b32 v21, {sT0}, 0")
    A("s_waitcnt vmcnt(0)")
    A(f"buffer_atomic_add_x2 v[22:23], v21, {srd('DBG')}, 0 offen sc1")
    A("L_noclear:")
    A(f"s_lshl_b32 {sT0}, {sW}, 8")
    A(f"v_lshl_add_u32 v21, {vLane}, 2, {sT0}")
    A(f"buffer_load_dword {vXp1}, v21, {srd('X')}, 0 offen")
    A(f"s_lshl_b32 {sT0}, {sHead}, 8")
    A(f"s_lshl_b32 {sT1}, {sC}, 5")
    A(f"s_add_u32 {sT0}, {sT0}, {sT1}")
    A(f"s_lshl_b32 {sT1}, {sW}, 18")
    A(f"s_add_u32 {sT0}, {sT0}, {sT1}")
    A(f"s_lshl_b32 {sT2}, {sW}, 10")
    for k in range(3):
        if k == 2:
            A(f"s_cmp_lt_u32 {sW}, 4"); A("s_cbranch_scc0 L_wq_done")
        A(f"s_add_u32 m0, {sT2}, {L_WQ + k*8192}")
        if k: A(f"s_add_u32 {sT0}, {sT0}, {8*262144}")
        A(f"buffer_load_dwordx4 v18, {srd('WQ')}, {sT0} offen {nt} lds")
    A("L_wq_done:")
    A(f"s_cmp_lt_u32 {sJ}, 20"); A("s_cbranch_scc0 L_wo_done")
    A(f"s_lshl_b32 {sT0}, {sX}, 9")
    A(f"s_lshl_b32 {sT1}, {sW}, 6")
    A(f"s_add_u32 {sT0}, {sT0}, {sT1}")
    A(f"s_mul_i32 {sT0}, {sT0}, 1280")
    A(f"s_lshl_b32 {sT1}, {sJ}, 6")
    A(f"s_add_u32 {sT0}, {sT0}, {sT1}")
    A(f"s_lshl_b32 {sT3}, {sW}, 12")
    for k in range(4):
        A(f"s_add_u32 m0, {sT3}, {L_WO + k*1024}")
        if k: A(f"s_add_u32 {sT0}, {sT0}, {16*1280}")
        A(f"buffer_load_dwordx4 v19, {srd('WO')}, {sT0} offen {nt} lds")
    A("L_wo_done:")
    A(f"s_cmp_ge_u32 {sJ}, 5"); A("s_cbranch_scc0 L_w13_done")
    A(f"s_mul_i32 {sT0}, {sX}, 432")
    A(f"s_lshl_b32 {sT1}, {sJ}, 4")
    A(f"s_add_u32 {sT0}, {sT0}, {sT1}")
    A(f"s_sub_u32 {sT0}, {sT0}, 80")
    A(f"s_mul_i32 {sT1}, {sW}, {32*3456}")
    A(f"s_add_u32 {sT0}, {sT0}, {sT1}")
    A("v_mul_u32_u24 v21, 3456, v16")
    A(f"v_add_u32 v21, {sT0}, v21")
    A("v_cmp_eq_u32 vcc, 1, v17")
    A(f"v_mov_b32 v22, s{P(6)[0]}"); A(f"v_mov_b32 v23, s{P(6)[1]}")
    A(f"v_mov_b32 v24, s{P(7)[0]}"); A(f"v_mov_b32 v25, s{P(7)[1]}")
    A("v_cndmask_b32 v22, v22, v24, vcc"); A("v_cndmask_b32 v23, v23, v25, vcc")
    A("v_add_co_u32 v22, vcc, v22, v21"); A("v_addc_co_u32 v23, vcc, 0, v23, vcc")
    for k in range(3):
        if k == 2:
            A(f"s_cmp_lt_u32 {sW}, 4"); A("s_cbranch_scc0 L_w13_done")
        if k:
            A(f"v_add_co_u32 v22, vcc, {8*32*3456}, v22"); A("v_addc_co_u32 v23, vcc, 0, v23, vcc")
        A(f"s_add_u32 m0, {sT2}, {L_W13 + k*8192}")
        A(f"global_load_lds_dwordx4 v[22:23], off {nt}")
    A("L_w13_done:")
    A(f"s_cmp_ge_u32 {sJ}, 12"); A("s_cbranch_scc0 L_w2_done")
    A(f"s_mul_i32 {sT0}, {sX}, 216")
    A(f"s_lshl_b32 {sT1}, {sW}, 5")
    A(f"s_add_u32 {sT0}, {sT0}, {sT1}")
    A(f"s_mul_i32 {sT0}, {sT0}, 1280")
    A(f"s_lshl_b32 {sT1}, {sJ}, 6")
    A(f"s_add_u32 {sT0}, {sT0}, {sT1}")
    A(f"s_sub_u32 {sT0}, {sT0}, {12*64}")
    A(f"s_lshl_b32 {sT3}, {sW}, 11")
    for k in range(2):
        A(f"s_add_u32 m0, {sT3}, {L_W2 + k*1024}")
        if k: A(f"s_add_u32 {sT0}, {sT0}, {16*1280}")
        A(f"buffer_load_dwordx4 v19, {srd('W2')}, {sT0} offen {nt} lds")
    A("L_w2_done:")
    A(f"v_lshlrev_b32 v21, 2, {vLane}")
    for T in range(4):
        if T: A(f"s_add_u32 {sT0}, {sKV}, {T*4096}")
        so = sT0 if T else sKV
        for t in range(4):
            A(f"buffer_load_dwordx4 {vr(K0+16*T+4*t,4)}, {vKoff}, {srd('K')}, {so} offen offset:{64*t} {nt}")
        if T == 1:
            A(f"s_cmp_eq_u32 {sW}, 7"); A("s_cbranch_scc0 L_nocnt")
            A(f"buffer_load_dword v22, v21, {srd('DBG')}, 0 offen sc1")
            A("L_nocnt:")
    A(f"v_and_b32 {vR0}, 8, {vLane}")
    A(f"v_bfe_u32 v23, {vLane}, 4, 1")
    A(f"v_lshl_add_u32 {vR0}, v23, 2, {vR0}")
    A(f"v_bfe_u32 v23, {vLane}, 2, 1")
    A(f"v_add_u32 {vR0}, {vR0}, v23")
    A(f"v_lshlrev_b32 {vQ64}, 6, v15")
    A(f"v_lshl_add_u32 {vQ64}, v20, 4, {vQ64}")
    A(f"v_mul_u32_u24 {vIdx}, 0xaaaa, v17")
    A(f"v_bfe_u32 v23, {vLane}, 1, 1")
    A(f"v_mul_u32_u24 v23, 0xaaaa, v23")
    A(f"v_lshl_add_u32 {vIdx}, v23, 16, {vIdx}")
    A(f"v_add_u32 {vIdx}, 0x44444444, {vIdx}")
    A(f"v_lshlrev_b32 {vML}, 3, {vLane}")
    A(f"v_add_u32 {vML}, {L_ML+64}, {vML}")
    A(f"s_lshl_b32 {sT0}, {sW}, 3")
    A(f"s_add_u32 {sT0}, {sT0}, {L_ML}")
    A(f"v_writelane_b32 {vML}, {sT0}, 63")
    A(f"s_cmp_eq_u32 {sW}, 7"); A("s_cbranch_scc0 L_cnt_skip")
    A("s_waitcnt vmcnt(8)")
    A("s_branch L_cnt_chk")
    A("L_cnt:")
    A(f"buffer_load_dword v22, v21, {srd('DBG')}, 0 offen sc1")
    A("s_waitcnt vmcnt(0)")
    A("L_cnt_chk:")
    A("v_sad_u8 v23, v22, 0, 0")
    A(f"v_add_u32_dpp v23, v23, v23 quad_perm:[1,0,3,2] {DPPF}")
    A("v_cmp_ne_u32 vcc, 32, v23")
    A("s_and_b32 vcc_lo, vcc_lo, 0xffff")
    A("s_mov_b32 vcc_hi, 0")
    A("s_cmp_eq_u32 vcc_lo, 0")
    A("s_cbranch_scc1 L_cnt_ok")
    A(f"s_sub_u32 {sTO}, {sTO}, 1")
    A("s_sleep 8")
    A("s_cbranch_scc0 L_cnt")
    A("s_branch L_end")
    A("L_cnt_ok:")
    A("v_and_b32 v23, 0x20202020, v22")
    A("v_cmp_ne_u32 vcc, 0, v23")
    A(f"s_lshl_b32 {sT0}, {sX}, 1")
    A(f"s_lshr_b32 {sT0}, vcc_lo, {sT0}")
    A(f"s_and_b32 {sT0}, {sT0}, {0 if force_slow else 3}")
    A(f"v_mov_b32 v23, {sT0}")
    A(f"v_mov_b32 v24, {L_FLAG}")
    A("ds_write_b32 v24, v23")
    A("L_cnt_skip:")
    A("s_waitcnt vmcnt(16) lgkmcnt(0)")
    stamp()
    A("s_barrier")
    A(f"v_mov_b32 v24, {L_FLAG}")
    A("ds_read_b32 v23, v24")
    A("s_waitcnt lgkmcnt(0)")
    A(f"v_readfirstlane_b32 {sFast}, v23")

    A("L_xg:")
    A(f"s_and_b32 {sT3}, {sIt}, 1")
    A(f"s_cmp_lt_u32 {sW}, 5")
    A("s_cbranch_scc0 L_xg_m")
    T = S0
    A(f"s_lshl_b32 {sT0}, {sW}, 8")
    A(f"v_lshl_add_u32 v44, {vLane}, 2, {sT0}")
    A(f"s_mul_i32 {sT1}, {sT3}, 1280")
    A(f"s_add_u32 {sT2}, {sT1}, {L_XI}")
    A(f"v_add_u32 v45, {sT2}, v44")
    A(f"s_lshl_b32 {sT1}, {sT1}, 1")
    A(f"s_add_u32 {sT2}, {sT1}, {L_ST}")
    A(f"v_lshl_add_u32 v46, v44, 1, {sT2}")
    A(f"v_mov_b32 v47, {vXp1}")
    A(f"s_cmp_eq_u32 {sIt}, 0")
    A("s_cbranch_scc1 L_xg_have")
    A(f"s_sub_u32 {sT0}, {sIt}, 1")
    A(f"s_lshr_b32 {sT0}, {sT0}, 1")
    A(f"s_lshl_b32 {sT0}, {sT0}, 17")
    A(f"s_mul_i32 {sT1}, {sT3}, {ZB - YB}")
    A(f"s_sub_u32 {sT1}, {ZB}, {sT1}")
    A(f"s_add_u32 {sA1}, {sT0}, {sT1}")
    A(f"s_add_u32 {sA2}, {sA1}, 5120")
    stamp()
    A("L_ypoll:")
    if sl_y: A(f"s_sleep {sl_y}")
    for p in range(8):
        A(f"buffer_load_dword v{T+p}, v44, {srd('WS')}, {sA1 if p < 4 else sA2} offen offset:{(p&3)*1280} sc1")
    A("s_waitcnt vmcnt(0)")
    A(f"v_max3_u32 v40, v{T}, v{T+1}, v{T+2}")
    A(f"v_max3_u32 v41, v{T+3}, v{T+4}, v{T+5}")
    A(f"v_max3_u32 v40, v40, v{T+6}, v{T+7}")
    A("v_max_u32 v40, v40, v41")
    A("v_cmp_eq_u32 vcc, -1, v40")
    retry("L_ypoll", 0)
    stamp()
    for p in range(8):
        A(f"v_lshlrev_b32 v{48+p}, 16, v{T+p}")
        A(f"v_and_b32 v{T+p}, {sHI}, v{T+p}")
    for (a, b) in [(0,1),(2,3),(4,5),(6,7),(0,2),(4,6),(0,4)]:
        A(f"v_add_f32 v{48+a}, v{48+a}, v{48+b}")
        A(f"v_add_f32 v{T+a}, v{T+a}, v{T+b}")
    A(f"v_add_f32 v48, v48, {vXp0}")
    A(f"v_add_f32 v{T}, v{T}, {vXp1}")
    A(f"v_cvt_pk_bf16_f32 v47, v48, v{T}")
    A(f"s_cmp_eq_u32 {sIt}, 4")
    A("s_cbranch_scc1 L_final")
    A("L_xg_have:")
    A("ds_write_b32 v45, v47")
    A(f"v_lshlrev_b32 {vXp0}, 16, v47")
    A(f"v_and_b32 {vXp1}, {sHI}, v47")
    A(f"v_add_f32 v42, {vXp0}, {vXp1}")
    A(f"v_mul_f32 v43, {vXp0}, {vXp0}")
    A(f"v_fmac_f32 v43, {vXp1}, {vXp1}")
    A("ds_write_b64 v46, v[42:43]")
    A("s_waitcnt lgkmcnt(0)")
    A("L_xg_bar:")
    A("s_barrier")
    A("s_branch L_xg_done")
    A("L_xg_m:")
    A(f"s_cmp_eq_u32 {sW}, 7")
    A("s_cbranch_scc1 L_xg_bar")
    A(f"s_cmp_lt_u32 {sJ}, 5")
    A(f"s_cselect_b32 {sT0}, {sT3}, 0")
    A(f"s_cmp_eq_u32 {sT0}, 1")
    A("s_cbranch_scc1 L_xg_bar")
    W = L0; XA = L0 + 40; D = 44; DC = 48; ONE = 52
    A(f"s_sub_u32 {sV_}, {sW}, 5")
    A(f"v_and_b32 v56, 32, {vLane}")
    A(f"v_and_b32 v57, 2, {vLane}")
    A(f"v_lshl_add_u32 v56, v57, 3, v56")
    A(f"v_add_u32 v56, v56, {vR0}")
    A(f"v_lshlrev_b32 v56, 5, v56")
    A(f"v_and_b32 v57, 1, {vLane}")
    A(f"s_add_u32 {sT0}, {sT3}, 3")
    A(f"v_lshlrev_b32 v57, {sT0}, v57")
    A(f"s_sub_u32 {sT0}, 4, {sT3}")
    A(f"s_lshl_b32 {sT0}, {sV_}, {sT0}")
    A(f"s_mul_i32 {sT1}, {sT3}, {L_W13 - L_WQ}")
    A(f"s_add_u32 {sT0}, {sT0}, {sT1}")
    A(f"v_add3_u32 v56, v56, v57, {sT0}")
    for u in range(5):
        for rp in range(4):
            hb, rho = rp >> 1, rp & 1
            A(f"ds_read_b64_tr_b16 {vr(W+8*u+2*rp,2)}, v56 offset:{L_WQ + (128*u+64*hb+2*rho)*32}")
    for r in range(4):
        A(f"v_mov_b32 v{D+r}, 0"); A(f"v_mov_b32 v{DC+r}, 0"); A(f"v_mov_b32 v{ONE+r}, 0x3f803f80")
    A(f"s_mul_i32 {sT1}, {sT3}, 1280")
    A(f"s_add_u32 {sT2}, {sT1}, {L_XI}")
    A(f"v_add_u32 v58, {sT2}, {vQ64}")
    A(f"s_lshl_b32 {sT1}, {sT1}, 1")
    A(f"s_add_u32 {sT2}, {sT1}, {L_ST}")
    A(f"v_lshl_add_u32 v59, {vLane}, 3, {sT2}")
    A(f"v_mov_b32 v61, {OOB}")
    A(f"s_cmp_eq_u32 {sT3}, 1")
    A("s_cbranch_scc1 L_xg_m_up")
    A(f"v_and_b32 v60, 2, {vLane}")
    A(f"v_lshlrev_b32 v60, 3, v60")
    A(f"v_and_b32 v57, 4, {vLane}")
    A(f"v_add_u32 v60, v60, v57")
    A(f"v_and_b32 v57, 0x39, {vLane}")
    A(f"s_lshl_b32 {sA1}, {sHead}, 8")
    A(f"s_and_b32 {sT0}, {sC}, 3"); A(f"s_lshl_b32 {sT0}, {sT0}, 6"); A(f"s_add_u32 {sA1}, {sA1}, {sT0}")
    A(f"s_lshr_b32 {sT0}, {sC}, 2"); A(f"s_lshl_b32 {sT0}, {sT0}, 5"); A(f"s_add_u32 {sA1}, {sA1}, {sT0}")
    A(f"s_add_u32 {sA1}, {sA1}, {QB}")
    A("s_branch L_xg_m_j")
    A("L_xg_m_up:")
    A(f"v_lshlrev_b32 v60, 1, {vLane}")
    A(f"v_and_b32 v57, 0x3d, {vLane}")
    A(f"s_lshl_b32 {sA1}, {sX}, 9")
    A(f"s_lshl_b32 {sT0}, {sJ}, 4"); A(f"s_add_u32 {sA1}, {sA1}, {sT0}")
    A(f"s_add_u32 {sA1}, {sA1}, {HB - 80}")
    A("L_xg_m_j:")
    A("v_cmp_eq_u32 vcc, 0, v57")
    A(f"s_lshl_b32 {sT0}, {sV_}, 3"); A(f"s_add_u32 {sA1}, {sA1}, {sT0}")
    A(f"s_add_u32 {sA1}, {sA1}, {sLay}")
    A("v_cndmask_b32 v60, v61, v60, vcc")
    A("s_waitcnt lgkmcnt(0)")
    for u in range(5):
        A(f"v_smfmac_f32_16x16x64_bf16 {vr(DC,4)}, {vr(ONE,4)}, {vr(W+8*u,8)}, {vIdx}")
    A(f"v_add_f32 v{DC}, v{DC}, v{DC+1}")
    A(f"v_add_f32 v{DC+2}, v{DC+2}, v{DC+3}")
    A(f"v_add_f32_dpp v{DC}, v{DC+2}, v{DC} row_shl:8 {DPPF}")
    stamp()
    A("s_barrier")
    stamp()
    for k in range(5): A(f"ds_read_b64 {vr(32+2*k,2)}, v59 offset:{512*k}")
    for u in range(5): A(f"ds_read_b128 {vr(XA+4*u,4)}, v58 offset:{256*u}")
    A("s_waitcnt lgkmcnt(5)" if not stamps else "s_waitcnt lgkmcnt(0)")
    A("v_pk_add_f32 v[32:33], v[32:33], v[34:35]")
    A("v_pk_add_f32 v[36:37], v[36:37], v[38:39]")
    A("v_pk_add_f32 v[32:33], v[32:33], v[40:41]")
    A("v_pk_add_f32 v[32:33], v[32:33], v[36:37]")
    steps = [f"quad_perm:[1,0,3,2] {DPPF}", f"quad_perm:[2,3,0,1] {DPPF}", f"row_half_mirror {DPPF}", f"row_mirror {DPPF}",
             "row_bcast:15 row_mask:0xa bank_mask:0xf", "row_bcast:31 row_mask:0xc bank_mask:0xf"]
    for i, st in enumerate(steps):
        if i < 5:
            A(f"s_waitcnt lgkmcnt({4-i})")
            A(f"v_smfmac_f32_16x16x64_bf16 {vr(D,4)}, {vr(XA+4*i,4)}, {vr(W+8*i,8)}, {vIdx}")
        A(f"v_add_f32_dpp v32, v32, v32 {st}")
        A(f"v_add_f32_dpp v33, v33, v33 {st}")
    A(f"v_mul_f32 v32, {1/640!r}, v32")
    A(f"v_mul_f32 v33, {1/640!r}, v33")
    A("v_fma_f32 v33, -v32, v32, v33")
    A("v_max_f32 v33, 0, v33")
    A("v_add_f32 v33, 1e-05, v33")
    A("v_rsq_f32 v33, v33")
    A(f"v_readlane_b32 {sT0}, v32, 63")
    A(f"v_add_f32 v{D}, v{D}, v{D+1}")
    A(f"v_add_f32 v{D+2}, v{D+2}, v{D+3}")
    A(f"v_readlane_b32 {sT1}, v33, 63")
    A(f"v_add_f32_dpp v{D}, v{D+2}, v{D} row_shl:8 {DPPF}")
    A(f"v_fma_f32 v{D}, -{sT0}, v{DC}, v{D}")
    A(f"v_mul_f32 v{D}, {sT1}, v{D}")
    A(f"s_cmp_eq_u32 {sT3}, 1")
    A("s_cbranch_scc1 L_xg_silu")
    A(f"v_mul_f32 v{D}, {math.log2(math.e)/math.sqrt(128)!r}, v{D}")
    A("s_branch L_xg_pub")
    A("L_xg_silu:")
    A(f"v_mul_f32 v34, {-math.log2(math.e)!r}, v{D}")
    A("v_exp_f32 v34, v34")
    A(f"v_mul_f32_dpp v{D}, v{D}, v{D} row_shl:4 {DPPF}")
    A("v_add_f32 v34, 1.0, v34")
    A("v_rcp_f32 v34, v34")
    A(f"v_mul_f32 v{D}, v{D}, v34")
    A("L_xg_pub:")
    A("s_nop 1")
    packpair("v35", f"v{D}", "v34")
    store_intra("L_xg_st", [f"buffer_store_dword v35, v60, {srd('WS')}, {sA1} offen"])
    stamp()
    A("L_xg_done:")
    A(f"s_cmp_eq_u32 {sT3}, 1")
    A("s_cbranch_scc1 L_down")

    A(f"s_lshl_b32 {sA1}, {sHead}, 8")
    A(f"s_add_u32 {sA1}, {sA1}, {QB}")
    A(f"s_add_u32 {sA1}, {sA1}, {sLay}")
    for Tt in range(4):
        for r in (0, 1, 6, 7): A(f"v_mov_b32 v{S0+8*Tt+r}, 0")
    def vload(j):
        A(f"buffer_load_dwordx4 {vr(L0+4*j,4)}, {vVoff}, {srd('V')}, {sKV if j < 8 else sT0} offen offset:{(j&7)*256} {nt}")
    def vperm(u):
        for q in range(4):
            a, b = L0 + 8*u + q, L0 + 8*u + 4 + q
            A(f"v_perm_b32 v{V0+8*(2*q)+u}, v{b}, v{a}, {sPL}")
            A(f"v_perm_b32 v{V0+8*(2*q+1)+u}, v{b}, v{a}, {sPH}")
    qload = f"buffer_load_dwordx4 {vr(vA,4)}, {vQ64}, {srd('WS')}, {sA1} offen sc1"
    A(f"s_cmp_eq_u32 {sIt}, 0")
    A("s_cbranch_scc0 L_qpoll0")
    A(f"s_add_u32 {sT0}, {sKV}, 8192")
    for j in range(8): vload(j)
    A(qload)
    for j in range(8, 16): vload(j)
    A("s_waitcnt vmcnt(8)")
    for u in range(4): vperm(u)
    stamp()
    A("s_branch L_qchk")
    A("L_qpoll0:")
    stamp()
    A("L_qpoll:")
    A(qload)
    A("s_waitcnt vmcnt(0)")
    A("L_qchk:")
    A(f"v_max3_u32 v14, v{vA}, v{vA+1}, v{vA+2}")
    A(f"v_max_u32 v14, v14, v{vA+3}")
    A("v_cmp_eq_u32 vcc, -1, v14")
    retry("L_qpoll", sl_q)
    stamp()
    def sadd(Tt):
        b = S0 + 8*Tt
        A(f"v_add_f32 v{b}, v{b}, v{b+1}")
        A(f"v_add_f32 v{b+6}, v{b+6}, v{b+7}")
    def ssel(Tt):
        b = S0 + 8*Tt
        A(f"v_add_f32_dpp v14, v{b}, v{b+6} quad_perm:[0,1,2,3] row_mask:{hex(1<<Tt)} bank_mask:0xf")
    for Tt in range(4):
        for kp in range(2):
            A(f"v_smfmac_f32_16x16x64_bf16 {vr(S0+8*Tt+4*kp,4)}, {vr(vA,4)}, {vr(K0+16*Tt+8*kp,8)}, {vIdx}")
            e = 2*Tt + kp
            A(f"v_mov_b32 v{L0+4*e}, 0"); A(f"v_mov_b32 v{L0+4*e+2}, 0")
    for Tt in range(4): sadd(Tt)
    for Tt in range(4): ssel(Tt)
    A(f"v_max_f32_dpp v16, v14, v14 {steps[0]}")
    for st in steps[1:]: A(f"v_max_f32_dpp v16, v16, v16 {st}")
    A(f"v_readlane_b32 {sM}, v16, 63")
    A(f"v_subrev_f32 v14, {sM}, v14")
    A("v_exp_f32 v14, v14")
    A(f"v_mov_b32_dpp v15, v14 quad_perm:[1,1,3,3] {DPPF}")
    A(f"v_cvt_pk_bf16_f32 v{vA}, v14, v15")
    A(f"v_add_f32_dpp v17, v14, v14 {steps[0]}")
    for q in range(1, 4): A(f"v_mov_b32_dpp v{vA+q}, v{vA} row_ror:{16-4*q} {DPPF}")
    A(f"s_cmp_eq_u32 {sIt}, 0")
    A("s_cbranch_scc0 L_pv")
    for u in range(4, 8):
        A(f"s_waitcnt vmcnt({14-2*u})")
        vperm(u)
    stamp()
    A("L_pv:")
    A("s_nop 0")
    for e in range(8):
        A(f"v_smfmac_f32_16x16x64_bf16 {vr(L0+4*e,4)}, {vr(vA,4)}, {vr(V0+8*e,8)}, {vIdx} abid:1")
        if e < 5: A(f"v_add_f32_dpp v17, v17, v17 {steps[e+1]}")
        if e == 5: A(f"ds_write_b64 {vML}, v[16:17]")
    A(f"s_lshl_b32 {sT0}, {sW}, 9")
    A(f"s_add_u32 {sT0}, {sT0}, {L_OP}")
    A(f"v_lshl_add_u32 v18, {vLane}, 5, {sT0}")
    for e in range(8): A(f"v_add_f32 v{S0+e}, v{L0+4*e}, v{L0+4*e+2}")
    A("s_mov_b64 exec, 0xffff")
    A(f"ds_write_b128 v18, {vr(S0,4)}")
    A(f"ds_write_b128 v18, {vr(S0+4,4)} offset:16")
    A("s_mov_b64 exec, -1")
    A(f"v_and_b32 v19, 7, {vLane}")
    A(f"v_lshlrev_b32 v20, 3, v19")
    A(f"v_add_u32 v20, {L_ML}, v20")
    A(f"v_lshlrev_b32 v21, 3, {vLane}")
    A(f"v_add_u32 v21, {L_OP}, v21")
    A("s_waitcnt lgkmcnt(0)")
    stamp()
    A("s_barrier")
    A(f"s_cmp_eq_u32 {sW}, 0")
    A("s_cbranch_scc0 L_wo")
    A("ds_read_b64 v[16:17], v20")
    for w in range(8): A(f"ds_read_b64 {vr(40+2*w,2)}, v21 offset:{512*w}")
    A(f"v_lshrrev_b32 v22, 3, {vLane}")
    A(f"v_lshlrev_b32 v22, 8, v22")
    A(f"v_lshl_add_u32 v22, v19, 2, v22")
    A(f"s_lshl_b32 {sA1}, {sHead}, 11")
    A(f"s_lshl_b32 {sT0}, {sC}, 5"); A(f"s_add_u32 {sA1}, {sA1}, {sT0}")
    A(f"s_add_u32 {sA1}, {sA1}, {sLay}")
    A(f"s_lshl_b32 {sA2}, {sHead}, 5")
    A(f"s_lshl_b32 {sT0}, {sC}, 2"); A(f"s_add_u32 {sA2}, {sA2}, {sT0}")
    A(f"s_add_u32 {sA2}, {sA2}, {sLay}")
    A(f"v_mov_b32 v23, {OOB}")
    A(f"s_mov_b32 {sT0}, {AB}")
    A(f"v_writelane_b32 v23, {sT0}, 0")
    A("s_waitcnt lgkmcnt(8)" if not stamps else "s_waitcnt lgkmcnt(0)")
    A(f"v_max_f32_dpp v24, v16, v16 {steps[0]}")
    for st in steps[1:3]: A(f"v_max_f32_dpp v24, v24, v24 {st}")
    A("v_sub_f32 v16, v16, v24")
    A("v_exp_f32 v16, v16")
    A("v_mul_f32 v17, v16, v17")
    A("s_waitcnt lgkmcnt(0)")
    A(f"v_mul_f32_dpp v26, v16, v40 row_newbcast:0 {DPPF}")
    A(f"v_mul_f32_dpp v27, v16, v41 row_newbcast:0 {DPPF}")
    for w in range(1, 8):
        if w < 4: A(f"v_add_f32_dpp v17, v17, v17 {steps[w-1]}")
        if w == 4: A("v_rcp_f32 v25, v17")
        if w == 5: A("v_log_f32 v17, v17")
        A(f"v_fmac_f32_dpp v26, v16, v{40+2*w} row_newbcast:{w} {DPPF}")
        A(f"v_fmac_f32_dpp v27, v16, v{41+2*w} row_newbcast:{w} {DPPF}")
    A("v_mul_f32 v26, v26, v25")
    A("v_mul_f32 v27, v27, v25")
    A("v_add_f32 v17, v17, v24")
    A("v_cvt_pk_bf16_f32 v26, v26, v27")
    A("v_min_u32 v17, -2, v17")
    A("v_min_u32 v26, -2, v26")
    store_intra("L_att_st", [f"buffer_store_dword v26, v22, {srd('WS')}, {sA1} offen",
                             f"buffer_store_dword v17, v23, {srd('WS')}, {sA2} offen"])
    stamp()

    A("L_wo:")
    A(f"s_cmp_lt_u32 {sJ}, 20")
    A("s_cbranch_scc0 L_next")
    W = L0; D0 = 32; D1 = 36
    A(f"v_and_b32 v18, 32, {vLane}")
    A(f"v_lshrrev_b32 v18, 1, v18")
    A(f"v_add_u32 v18, v18, {vR0}")
    A(f"v_lshlrev_b32 v18, 6, v18")
    A(f"v_and_b32 v19, 3, {vLane}")
    A(f"v_lshl_add_u32 v18, v19, 3, v18")
    A(f"s_lshl_b32 {sT0}, {sW}, 12")
    A(f"s_add_u32 {sT0}, {sT0}, {L_WO}")
    A(f"v_add_u32 v18, {sT0}, v18")
    for cb in range(2):
        for rp in range(4):
            hb, rho = rp >> 1, rp & 1
            A(f"ds_read_b64_tr_b16 {vr(W+8*cb+2*rp,2)}, v18 offset:{32*cb + (32*hb+2*rho)*64}")
    for r in range(8): A(f"v_mov_b32 v{D0+r}, 0")
    A(f"v_lshlrev_b32 v19, 4, {vLane}")
    A(f"v_lshrrev_b32 v20, 3, {vLane}")
    A(f"v_and_b32 v20, 6, v20")
    A(f"v_add_u32 v20, v20, {vLane}")
    A(f"v_and_b32 v20, 7, v20")
    A(f"v_lshlrev_b32 v20, 2, v20")
    A(f"s_lshl_b32 {sA1}, {sX}, 13")
    A(f"s_lshl_b32 {sT0}, {sW}, 10"); A(f"s_add_u32 {sA1}, {sA1}, {sT0}")
    A(f"s_add_u32 {sA1}, {sA1}, {sLay}")
    A(f"s_lshl_b32 {sA2}, {sX}, 7")
    A(f"s_lshr_b32 {sT0}, {sW}, 1"); A(f"s_lshl_b32 {sT0}, {sT0}, 5"); A(f"s_add_u32 {sA2}, {sA2}, {sT0}")
    A(f"s_add_u32 {sA2}, {sA2}, {sLay}")
    A(f"s_add_u32 {sA2}, {sA2}, {AB}")
    A(f"s_lshl_b32 {sT0}, {sW}, 8")
    A(f"s_add_u32 {sT0}, {sT0}, {L_RED}")
    A(f"v_lshl_add_u32 v21, {vLane}, 2, {sT0}")
    A(f"v_and_b32 v22, 15, {vLane}")
    A(f"v_lshlrev_b32 v22, 1, v22")
    A(f"v_and_b32 v23, 32, {vLane}")
    A(f"v_add_u32 v22, v22, v23")
    A(f"v_and_b32 v23, 17, {vLane}")
    A("v_cmp_eq_u32 vcc, 0, v23")
    A(f"v_mov_b32 v23, {OOB}")
    A(f"s_mul_i32 {sT2}, {sX}, 1280")
    A("v_cndmask_b32 v22, v23, v22, vcc")
    A(f"s_lshl_b32 {sT0}, {sJ}, 6"); A(f"s_add_u32 {sT2}, {sT2}, {sT0}")
    A(f"s_add_u32 {sT2}, {sT2}, {sLay}")
    A(f"s_add_u32 {sT2}, {sT2}, {YB}")
    A("s_waitcnt lgkmcnt(0)")
    stamp()
    A("L_opoll:")
    A(f"buffer_load_dword v14, v20, {srd('WS')}, {sA2} offen sc1")
    A(f"buffer_load_dwordx4 {vr(vA,4)}, v19, {srd('WS')}, {sA1} offen sc1")
    A("s_waitcnt vmcnt(0)")
    A(f"v_max3_u32 v15, v{vA}, v{vA+1}, v{vA+2}")
    A(f"v_max3_u32 v15, v15, v{vA+3}, v14")
    A("v_cmp_eq_u32 vcc, -1, v15")
    retry("L_opoll", sl_o)
    stamp()
    A(f"v_smfmac_f32_16x16x64_bf16 {vr(D0,4)}, {vr(vA,4)}, {vr(W,8)}, {vIdx}")
    A(f"v_max_f32_dpp v24, v14, v14 {steps[0]}")
    A(f"v_smfmac_f32_16x16x64_bf16 {vr(D1,4)}, {vr(vA,4)}, {vr(W+8,8)}, {vIdx}")
    for st in steps[1:3]: A(f"v_max_f32_dpp v24, v24, v24 {st}")
    A("v_sub_f32 v14, v14, v24")
    A("v_exp_f32 v14, v14")
    for d in (D0, D1):
        A(f"v_add_f32 v{d}, v{d}, v{d+1}")
        A(f"v_add_f32 v{d+2}, v{d+2}, v{d+3}")
    A(f"v_add_f32_dpp v25, v14, v14 {steps[0]}")
    A(f"v_mul_f32_dpp v26, v14, v{D0} row_newbcast:0 {DPPF}")
    A(f"v_mul_f32_dpp v27, v14, v{D1} row_newbcast:0 {DPPF}")
    A(f"v_add_f32_dpp v25, v25, v25 {steps[1]}")
    A(f"v_fmac_f32_dpp v26, v14, v{D0+2} row_newbcast:1 {DPPF}")
    A(f"v_fmac_f32_dpp v27, v14, v{D1+2} row_newbcast:1 {DPPF}")
    A(f"v_add_f32_dpp v25, v25, v25 {steps[2]}")
    A("v_rcp_f32 v25, v25")
    A("v_permlane32_swap_b32 v26, v27")
    A("v_add_f32 v26, v26, v27")
    A("v_mul_f32 v26, v26, v25")
    A("ds_write_b32 v21, v26")
    A("s_waitcnt lgkmcnt(0)")
    A("s_barrier")
    A(f"s_cmp_eq_u32 {sW}, 0")
    A("s_cbranch_scc0 L_next")
    for w in range(8): A(f"ds_read_b32 v{40+w}, v21 offset:{256*w}")
    A("s_waitcnt lgkmcnt(0)")
    for (a, b) in [(0,1),(2,3),(4,5),(6,7),(0,2),(4,6),(0,4)]:
        A(f"v_add_f32 v{40+a}, v{40+a}, v{40+b}")
    A("v_mov_b32 v41, v40")
    A("v_permlane16_swap_b32 v40, v41")
    A("v_add_f32 v40, v40, v41")
    packpair("v42", "v40", "v41")
    A(f"buffer_store_dword v42, v22, {srd('WS')}, {sT2} offen sc1")
    stamp()
    A("L_next:")
    A(f"s_add_u32 {sIt}, {sIt}, 1")
    A("s_branch L_xg")

    A("L_down:")
    A(f"s_cmp_ge_u32 {sJ}, 12")
    A(f"s_cselect_b32 {sT0}, {sW}, 7")
    A(f"s_cmp_lt_u32 {sT0}, 2")
    A("s_cbranch_scc0 L_down_done")
    A1 = 16
    A(f"v_and_b32 v20, 32, {vLane}")
    A(f"v_add_u32 v20, v20, {vR0}")
    A(f"v_lshlrev_b32 v20, 6, v20")
    A(f"v_and_b32 v21, 3, {vLane}")
    A(f"v_lshl_add_u32 v20, v21, 3, v20")
    A(f"s_lshl_b32 {sT0}, {sW}, 5")
    A(f"s_add_u32 {sT1}, {sT0}, {L_W2}")
    A(f"v_add_u32 v20, {sT1}, v20")
    for u in range(2):
        for kp in range(2):
            for rp in range(4):
                hb, rho = rp >> 1, rp & 1
                A(f"ds_read_b64_tr_b16 {vr(W+16*u+8*kp+2*rp,2)}, v20 offset:{(128*u+64*hb+16*kp+2*rho)*64}")
    for r in range(8): A(f"v_mov_b32 v{D0+r}, 0")
    A(f"v_mov_b32 v23, {OOB}")
    A(f"v_cmp_gt_u32 vcc, 176, {vQ64}")
    A(f"s_lshl_b32 {sA1}, {sX}, 9")
    A(f"s_add_u32 {sA1}, {sA1}, {sLay}")
    A(f"v_cndmask_b32 v21, v23, {vQ64}, vcc")
    A(f"s_add_u32 {sA1}, {sA1}, {HB}")
    A(f"v_and_b32 v24, 0x31, {vLane}")
    A("v_cmp_eq_u32 vcc, 0, v24")
    A(f"v_lshlrev_b32 v22, 1, {vLane}")
    A(f"s_mul_i32 {sT2}, {sX}, 1280")
    A("v_cndmask_b32 v22, v23, v22, vcc")
    A(f"s_add_u32 {sT2}, {sT2}, {sT0}")
    A(f"s_lshl_b32 {sT0}, {sJ}, 6"); A(f"s_add_u32 {sT2}, {sT2}, {sT0}")
    A(f"s_add_u32 {sT2}, {sT2}, {sLay}")
    A(f"s_add_u32 {sT2}, {sT2}, {ZB - 12*64}")
    A("s_waitcnt lgkmcnt(0)")
    stamp()
    A("L_hpoll:")
    A(f"buffer_load_dwordx4 {vr(vA,4)}, {vQ64}, {srd('WS')}, {sA1} offen sc1")
    A(f"buffer_load_dwordx4 {vr(A1,4)}, v21, {srd('WS')}, {sA1} offen offset:256 sc1")
    A("s_waitcnt vmcnt(0)")
    A(f"v_max3_u32 v14, v{vA}, v{vA+1}, v{vA+2}")
    A(f"v_max3_u32 v15, v{A1}, v{A1+1}, v{A1+2}")
    A(f"v_max3_u32 v14, v14, v{vA+3}, v{A1+3}")
    A("v_max_u32 v14, v14, v15")
    A("v_cmp_eq_u32 vcc, -1, v14")
    retry("L_hpoll", sl_h)
    stamp()
    for u in range(2):
        for kp in range(2):
            A(f"v_smfmac_f32_16x16x64_bf16 {vr(D1 if kp else D0,4)}, {vr(A1 if u else vA,4)}, {vr(W+16*u+8*kp,8)}, {vIdx}")
    A(f"v_add_f32 v{D0}, v{D0}, v{D0+1}")
    A(f"v_add_f32 v{D1+2}, v{D1+2}, v{D1+3}")
    A(f"v_add_f32 v{D0}, v{D0}, v{D1+2}")
    packpair("v42", f"v{D0}", "v41")
    A(f"buffer_store_dword v42, v22, {srd('WS')}, {sT2} offen sc1")
    stamp()
    A("L_down_done:")
    A(f"s_add_u32 {sIt}, {sIt}, 1")
    A(f"s_mov_b32 {sLay}, {LSTRIDE}")
    A(f"s_cmp_eq_u32 {sIt}, 4")
    A("s_cbranch_scc0 L_xg")
    A(f"s_lshl_b32 {sT0}, {sW}, 3")
    A(f"s_cmp_eq_u32 {sT0}, s2")
    A("s_cbranch_scc0 L_end")
    A(f"s_cmp_lt_u32 {sW}, 5")
    A("s_cbranch_scc1 L_xg")
    A("s_branch L_end")
    A("L_final:")
    A(f"buffer_store_dword v47, v44, {srd('OUT')}, 0 offen")
    A("L_end:")
    if stamps:
        stamp()
        A(f"s_lshl_b32 {sT0}, s2, 3"); A(f"s_add_u32 {sT0}, {sT0}, {sW}"); A(f"s_lshl_b32 {sT0}, {sT0}, 8")
        A(f"s_add_u32 {sT0}, {sT0}, {WS_STAMP}")
        A(f"v_lshl_add_u32 v14, {vLane}, 2, {sT0}")
        A(f"global_store_dword v14, {vST}, s[{P(11)[0]}:{P(11)[1]}]")
    A("L_exit:")
    A("s_endpgm")

    ref = open("cdna_kernels/" + NAME + ".s.ref").read().split("\n")
    head = [l for l in ref if l.startswith(";") and "@launch" not in l and "Override launch" not in l and "grid=ceil" not in l]
    out = "\n".join(head) + f"\n; @launch grid=(256,1,1) block=(512,1,1) lds={LDS_BYTES}\n"
    out += f""".amdgcn_target "amdgcn-amd-amdhsa--gfx950"
.text
.globl {NAME}_kernel
.p2align 8
.type {NAME}_kernel,@function
{NAME}_kernel:
"""
    out += A.text()
    out += f""".section .rodata,"a"
.p2align 6
.amdhsa_kernel {NAME}_kernel
  .amdhsa_next_free_vgpr 256
  .amdhsa_next_free_sgpr 102
  .amdhsa_accum_offset 256
  .amdhsa_group_segment_fixed_size 0
  .amdhsa_kernarg_size 96
  .amdhsa_user_sgpr_count 2
  .amdhsa_user_sgpr_kernarg_segment_ptr 1
  .amdhsa_system_sgpr_workgroup_id_x 1
  .amdhsa_float_denorm_mode_32 3
.end_amdhsa_kernel
"""
    return out

if __name__ == "__main__":
    kw = {}
    dst = "cdna_kernels/" + NAME + ".s"
    for a in sys.argv[1:]:
        k, v = a.split("=", 1)
        if k == "out": dst = v
        else:
            try: kw[k] = int(v)
            except ValueError: kw[k] = v
    open(dst, "w").write(gen(**kw))
    print("wrote", dst)
```

```python
import sys, math
from asmlib import Asm

NAME = "interleave_layers__mha_block_cached__glu_gated_swiglu__decode"

LSTRIDE = 0x20000
OB, QB, YB, ZB, HB, AB = 0x0, 0x10000, 0x12000, 0x17000, 0x1c000, 0x1d000
WS_COMM = 0x40000
WS_STAMP = 0x100000
OOB = 0x7f000000
L_WQ = 0; L_W13 = 20480; L_WO = 40960; L_W2 = 73728
L_XI = 90112
L_ST = L_XI + 2560
L_ML = L_ST + 5120
L_OP = L_ML + 640
L_RED = L_OP + 4096
L_FLAG = L_RED + 2048
LDS_BYTES = L_FLAG + 64
sX, sJ, sW, sHead, sC, sKV, sIt, sLay, sFast, sTO, sT0, sT1, sT2, sT3, sPL, sPH, sSI = \
    ["s%d" % i for i in range(3, 20)]
sV_ = "s20"; sM = "s21"; sA1 = "s22"; sA2 = "s23"; sHI = "s24"
P = lambda i: (36 + 2*i, 37 + 2*i)
SRD = dict(K=60, V=64, WS=68, WQ=72, WO=76, W2=80, X=84, OUT=88, DBG=92)
def srd(n): return f"s[{SRD[n]}:{SRD[n]+3}]"
vLane, vR0, vQ64, vIdx, vXp0, vXp1, vML, vST = ["v%d" % i for i in range(8)]
vA = 8
vKoff, vVoff = "v12", "v13"
S0 = 32; K0 = 64; V0 = 128; L0 = 192
def vr(a, n): return f"v[{a}:{a+n-1}]" if n > 1 else f"v{a}"
DPPF = "row_mask:0xf bank_mask:0xf"

def gen(stamps=False, sl_q=0, sl_o=0, sl_y=2, sl_h=0, force_slow=False, nt="nt"):
    A = Asm()
    def stamp():
        if not stamps: return
        A("s_memrealtime s[96:97]")
        A("s_waitcnt lgkmcnt(0)")
        A(f"s_mov_b32 m0, {sSI}")
        A(f"v_writelane_b32 {vST}, s96, m0")
        A(f"s_add_u32 {sSI}, {sSI}, 1")
    def mksrd(n, ptr, size):
        b = SRD[n]; lo, hi = P(ptr)
        A(f"s_mov_b32 s{b}, s{lo}")
        A(f"s_and_b32 s{b+1}, s{hi}, 0xffff")
        A(f"s_mov_b32 s{b+2}, {size}")
        A(f"s_mov_b32 s{b+3}, 0x20000")
    def retry(label, sleep):
        A(f"s_cbranch_vccz {label}_ok")
        A(f"s_sub_u32 {sTO}, {sTO}, 1")
        if sleep: A(f"s_sleep {sleep}")
        A(f"s_cbranch_scc0 {label}")
        A("s_branch L_end")
        A(f"{label}_ok:")
    def store_intra(label, stores):
        A(f"s_cmp_eq_u32 {sFast}, 0")
        A(f"s_cbranch_scc1 {label}_slow")
        for s in stores: A(s)
        A(f"s_branch {label}_done")
        A(f"{label}_slow:")
        for s in stores: A(s + " sc1")
        A(f"{label}_done:")
    def packpair(dst, val, tmp):
        A(f"v_mov_b32_dpp {tmp}, {val} quad_perm:[1,1,3,3] {DPPF}")
        A(f"v_cvt_pk_bf16_f32 {dst}, {val}, {tmp}")
        A(f"v_min_u32 {dst}, -2, {dst}")

    A("s_cmp_ge_u32 s2, 256")
    A("s_cbranch_scc1 L_exit")
    A("s_load_dwordx16 s[36:51], s[0:1], 0")
    A("s_load_dwordx8 s[52:59], s[0:1], 64")
    if stamps:
        A(f"s_mov_b32 {sSI}, 0"); A(f"v_mov_b32 {vST}, 0")
        stamp()
    A("v_lshrrev_b32 v14, 6, v0")
    A(f"v_and_b32 {vLane}, 63, v0")
    A(f"v_readfirstlane_b32 {sW}, v14")
    A(f"s_and_b32 {sX}, s2, 7")
    A(f"s_lshr_b32 {sJ}, s2, 3")
    A(f"s_lshr_b32 {sT0}, {sJ}, 3")
    A(f"s_lshl_b32 {sHead}, {sX}, 2")
    A(f"s_add_u32 {sHead}, {sHead}, {sT0}")
    A(f"s_and_b32 {sC}, {sJ}, 7")
    A(f"s_lshl_b32 {sKV}, {sHead}, 20")
    A(f"s_lshl_b32 {sT0}, {sC}, 17")
    A(f"s_add_u32 {sKV}, {sKV}, {sT0}")
    A(f"s_lshl_b32 {sT0}, {sW}, 14")
    A(f"s_add_u32 {sKV}, {sKV}, {sT0}")
    A(f"s_mov_b32 {sTO}, 0x80000")
    A(f"s_mov_b32 {sIt}, 0")
    A(f"s_mov_b32 {sLay}, 0")
    A(f"s_mov_b32 {sPL}, 0x05040100")
    A(f"s_mov_b32 {sPH}, 0x07060302")
    A(f"s_mov_b32 {sHI}, 0xffff0000")
    A(f"v_and_b32 v14, 15, {vLane}")
    A(f"v_lshrrev_b32 v15, 4, {vLane}")
    A(f"v_lshlrev_b32 {vKoff}, 8, v14")
    A(f"v_lshl_add_u32 {vKoff}, v15, 4, {vKoff}")
    A(f"v_lshlrev_b32 {vVoff}, 11, v15")
    A(f"v_lshl_add_u32 {vVoff}, v14, 4, {vVoff}")
    A(f"v_lshrrev_b32 v16, 1, {vLane}")
    A(f"v_and_b32 v17, 1, {vLane}")
    A(f"v_lshlrev_b32 v18, 13, v16")
    A(f"v_lshl_add_u32 v18, v17, 4, v18")
    A(f"v_lshrrev_b32 v19, 2, {vLane}")
    A(f"v_mul_u32_u24 v19, 1280, v19")
    A(f"v_and_b32 v20, 3, {vLane}")
    A(f"v_lshl_add_u32 v19, v20, 4, v19")
    A("s_waitcnt lgkmcnt(0)")
    mksrd("WS", 11, WS_COMM); mksrd("X", 0, 1280); mksrd("WQ", 3, 640*4096*2)
    mksrd("K", 1, 1 << 25); mksrd("V", 2, 1 << 25); mksrd("WO", 4, 4096*640*2)
    mksrd("W2", 8, 1728*640*2); mksrd("OUT", 9, 1280); mksrd("DBG", 10, 256)
    A(f"s_cmp_eq_u32 {sW}, 0")
    A("s_cbranch_scc0 L_noclear")
    for r in range(24, 28): A(f"v_mov_b32 v{r}, -1")
    A(f"v_lshlrev_b32 v21, 4, {vLane}")
    A(f"s_lshl_b32 {sT0}, s2, 10")
    A(f"buffer_store_dwordx4 v[24:27], v21, {srd('WS')}, {sT0} offen sc1")
    A(f"s_getreg_b32 {sT1}, hwreg(HW_REG_XCC_ID, 0, 3)")
    A(f"s_lshl_b32 {sT1}, {sT1}, 3")
    A(f"s_lshl_b64 s[26:27], 1, {sT1}")
    A("v_mov_b32 v22, s26"); A("v_mov_b32 v23, s27")
    A(f"s_lshl_b32 {sT0}, {sX}, 3")
    A(f"v_mov_b32 v21, {OOB}")
    A(f"v_writelane_b32 v21, {sT0}, 0")
    A("s_waitcnt vmcnt(0)")
    A(f"buffer_atomic_add_x2 v[22:23], v21, {srd('DBG')}, 0 offen sc0 sc1")
    A("s_waitcnt vmcnt(0)")
    A("v_sad_u8 v24, v22, 0, 0")
    A("v_sad_u8 v24, v23, 0, v24")
    A(f"v_readfirstlane_b32 {sT1}, v24")
    A(f"s_cmp_eq_u32 {sT1}, 31")
    A("s_cbranch_scc0 L_noclear")
    A("v_add_u32 v22, s26, v22"); A("v_add_u32 v23, s27, v23")
    A("v_or_b32 v22, v22, v23")
    A(f"v_and_b32 v22, {0 if force_slow else 0x20202020}, v22")
    A("v_or_b32 v22, 1, v22")
    A("v_lshrrev_b32 v21, 1, v21")
    A(f"buffer_store_dword v22, v21, {srd('DBG')}, 0 offen offset:128 sc1")
    A("L_noclear:")
    A(f"s_lshl_b32 {sT0}, {sW}, 8")
    A(f"v_lshl_add_u32 v21, {vLane}, 2, {sT0}")
    A(f"buffer_load_dword {vXp1}, v21, {srd('X')}, 0 offen")
    A(f"s_lshl_b32 {sT0}, {sHead}, 8")
    A(f"s_lshl_b32 {sT1}, {sC}, 5")
    A(f"s_add_u32 {sT0}, {sT0}, {sT1}")
    A(f"s_lshl_b32 {sT1}, {sW}, 18")
    A(f"s_add_u32 {sT0}, {sT0}, {sT1}")
    A(f"s_lshl_b32 {sT2}, {sW}, 10")
    for k in range(3):
        if k == 2:
            A(f"s_cmp_lt_u32 {sW}, 4"); A("s_cbranch_scc0 L_wq_done")
        A(f"s_add_u32 m0, {sT2}, {L_WQ + k*8192}")
        if k: A(f"s_add_u32 {sT0}, {sT0}, {8*262144}")
        A(f"buffer_load_dwordx4 v18, {srd('WQ')}, {sT0} offen {nt} lds")
    A("L_wq_done:")
    A(f"s_cmp_lt_u32 {sJ}, 20"); A("s_cbranch_scc0 L_wo_done")
    A(f"s_lshl_b32 {sT0}, {sX}, 9")
    A(f"s_lshl_b32 {sT1}, {sW}, 6")
    A(f"s_add_u32 {sT0}, {sT0}, {sT1}")
    A(f"s_mul_i32 {sT0}, {sT0}, 1280")
    A(f"s_lshl_b32 {sT1}, {sJ}, 6")
    A(f"s_add_u32 {sT0}, {sT0}, {sT1}")
    A(f"s_lshl_b32 {sT3}, {sW}, 12")
    for k in range(4):
        A(f"s_add_u32 m0, {sT3}, {L_WO + k*1024}")
        if k: A(f"s_add_u32 {sT0}, {sT0}, {16*1280}")
        A(f"buffer_load_dwordx4 v19, {srd('WO')}, {sT0} offen {nt} lds")
    A("L_wo_done:")
    A(f"s_cmp_ge_u32 {sJ}, 5"); A("s_cbranch_scc0 L_w13_done")
    A(f"s_mul_i32 {sT0}, {sX}, 432")
    A(f"s_lshl_b32 {sT1}, {sJ}, 4")
    A(f"s_add_u32 {sT0}, {sT0}, {sT1}")
    A(f"s_sub_u32 {sT0}, {sT0}, 80")
    A(f"s_mul_i32 {sT1}, {sW}, {32*3456}")
    A(f"s_add_u32 {sT0}, {sT0}, {sT1}")
    A("v_mul_u32_u24 v21, 3456, v16")
    A(f"v_add_u32 v21, {sT0}, v21")
    A("v_cmp_eq_u32 vcc, 1, v17")
    A(f"v_mov_b32 v22, s{P(6)[0]}"); A(f"v_mov_b32 v23, s{P(6)[1]}")
    A(f"v_mov_b32 v24, s{P(7)[0]}"); A(f"v_mov_b32 v25, s{P(7)[1]}")
    A("v_cndmask_b32 v22, v22, v24, vcc"); A("v_cndmask_b32 v23, v23, v25, vcc")
    A("v_add_co_u32 v22, vcc, v22, v21"); A("v_addc_co_u32 v23, vcc, 0, v23, vcc")
    for k in range(3):
        if k == 2:
            A(f"s_cmp_lt_u32 {sW}, 4"); A("s_cbranch_scc0 L_w13_done")
        if k:
            A(f"v_add_co_u32 v22, vcc, {8*32*3456}, v22"); A("v_addc_co_u32 v23, vcc, 0, v23, vcc")
        A(f"s_add_u32 m0, {sT2}, {L_W13 + k*8192}")
        A(f"global_load_lds_dwordx4 v[22:23], off {nt}")
    A("L_w13_done:")
    A(f"s_cmp_ge_u32 {sJ}, 12"); A("s_cbranch_scc0 L_w2_done")
    A(f"s_mul_i32 {sT0}, {sX}, 216")
    A(f"s_lshl_b32 {sT1}, {sW}, 5")
    A(f"s_add_u32 {sT0}, {sT0}, {sT1}")
    A(f"s_mul_i32 {sT0}, {sT0}, 1280")
    A(f"s_lshl_b32 {sT1}, {sJ}, 6")
    A(f"s_add_u32 {sT0}, {sT0}, {sT1}")
    A(f"s_sub_u32 {sT0}, {sT0}, {12*64}")
    A(f"s_lshl_b32 {sT3}, {sW}, 11")
    for k in range(2):
        A(f"s_add_u32 m0, {sT3}, {L_W2 + k*1024}")
        if k: A(f"s_add_u32 {sT0}, {sT0}, {16*1280}")
        A(f"buffer_load_dwordx4 v19, {srd('W2')}, {sT0} offen {nt} lds")
    A("L_w2_done:")
    A(f"v_lshlrev_b32 v21, 2, {vLane}")
    for T in range(4):
        if T: A(f"s_add_u32 {sT0}, {sKV}, {T*4096}")
        so = sT0 if T else sKV
        for t in range(4):
            A(f"buffer_load_dwordx4 {vr(K0+16*T+4*t,4)}, {vKoff}, {srd('K')}, {so} offen offset:{64*t} {nt}")
        if T == 1:
            A(f"s_cmp_eq_u32 {sW}, 7"); A("s_cbranch_scc0 L_nocnt")
            A(f"buffer_load_dword v22, v21, {srd('DBG')}, 0 offen offset:128 sc1")
            A("L_nocnt:")
    A(f"v_and_b32 {vR0}, 8, {vLane}")
    A(f"v_bfe_u32 v23, {vLane}, 4, 1")
    A(f"v_lshl_add_u32 {vR0}, v23, 2, {vR0}")
    A(f"v_bfe_u32 v23, {vLane}, 2, 1")
    A(f"v_add_u32 {vR0}, {vR0}, v23")
    A(f"v_lshlrev_b32 {vQ64}, 6, v15")
    A(f"v_lshl_add_u32 {vQ64}, v20, 4, {vQ64}")
    A(f"v_mul_u32_u24 {vIdx}, 0xaaaa, v17")
    A(f"v_bfe_u32 v23, {vLane}, 1, 1")
    A(f"v_mul_u32_u24 v23, 0xaaaa, v23")
    A(f"v_lshl_add_u32 {vIdx}, v23, 16, {vIdx}")
    A(f"v_add_u32 {vIdx}, 0x44444444, {vIdx}")
    A(f"v_lshlrev_b32 {vML}, 3, {vLane}")
    A(f"v_add_u32 {vML}, {L_ML+64}, {vML}")
    A(f"s_lshl_b32 {sT0}, {sW}, 3")
    A(f"s_add_u32 {sT0}, {sT0}, {L_ML}")
    A(f"v_writelane_b32 {vML}, {sT0}, 63")
    A(f"s_cmp_eq_u32 {sW}, 7"); A("s_cbranch_scc0 L_cnt_skip")
    A("s_waitcnt vmcnt(8)")
    A("s_branch L_cnt_chk")
    A("L_cnt:")
    A(f"buffer_load_dword v22, v21, {srd('DBG')}, 0 offen offset:128 sc1")
    A("s_waitcnt vmcnt(0)")
    A("L_cnt_chk:")
    A("v_cmp_eq_u32 vcc, 0, v22")
    A("s_and_b32 vcc_lo, vcc_lo, 0xff")
    A("s_cbranch_scc0 L_cnt_ok")
    A(f"s_sub_u32 {sTO}, {sTO}, 1")
    A("s_sleep 8")
    A("s_cbranch_scc0 L_cnt")
    A("s_branch L_end")
    A("L_cnt_ok:")
    A(f"v_readlane_b32 {sT0}, v22, {sX}")
    A(f"s_lshr_b32 {sT0}, {sT0}, 1")
    A(f"v_mov_b32 v23, {sT0}")
    A(f"v_mov_b32 v24, {L_FLAG}")
    A("ds_write_b32 v24, v23")
    A("L_cnt_skip:")
    A("s_waitcnt vmcnt(16) lgkmcnt(0)")
    stamp()
    A("s_barrier")
    A(f"v_mov_b32 v24, {L_FLAG}")
    A("ds_read_b32 v23, v24")
    A("s_waitcnt lgkmcnt(0)")
    A(f"v_readfirstlane_b32 {sFast}, v23")

    A("L_xg:")
    A(f"s_and_b32 {sT3}, {sIt}, 1")
    A(f"s_cmp_lt_u32 {sW}, 5")
    A("s_cbranch_scc0 L_xg_m")
    T = S0
    A(f"s_lshl_b32 {sT0}, {sW}, 8")
    A(f"v_lshl_add_u32 v44, {vLane}, 2, {sT0}")
    A(f"s_mul_i32 {sT1}, {sT3}, 1280")
    A(f"s_add_u32 {sT2}, {sT1}, {L_XI}")
    A(f"v_add_u32 v45, {sT2}, v44")
    A(f"s_lshl_b32 {sT1}, {sT1}, 1")
    A(f"s_add_u32 {sT2}, {sT1}, {L_ST}")
    A(f"v_lshl_add_u32 v46, v44, 1, {sT2}")
    A(f"v_mov_b32 v47, {vXp1}")
    A(f"s_cmp_eq_u32 {sIt}, 0")
    A("s_cbranch_scc1 L_xg_have")
    A(f"s_sub_u32 {sT0}, {sIt}, 1")
    A(f"s_lshr_b32 {sT0}, {sT0}, 1")
    A(f"s_lshl_b32 {sT0}, {sT0}, 17")
    A(f"s_mul_i32 {sT1}, {sT3}, {ZB - YB}")
    A(f"s_sub_u32 {sT1}, {ZB}, {sT1}")
    A(f"s_add_u32 {sA1}, {sT0}, {sT1}")
    A(f"v_lshrrev_b32 v43, 6, v44")
    A(f"v_and_b32 v42, 63, v44")
    A(f"v_lshl_add_u32 v43, v43, 10, v42")
    stamp()
    A("L_ypoll:")
    if sl_y: A(f"s_sleep {sl_y}")
    for p in range(8):
        A(f"buffer_load_dword v{T+p}, v43, {srd('WS')}, {sA1} offen offset:{p*128} sc1")
    A("s_waitcnt vmcnt(0)")
    A(f"v_max3_u32 v40, v{T}, v{T+1}, v{T+2}")
    A(f"v_max3_u32 v41, v{T+3}, v{T+4}, v{T+5}")
    A(f"v_max3_u32 v40, v40, v{T+6}, v{T+7}")
    A("v_max_u32 v40, v40, v41")
    A("v_cmp_eq_u32 vcc, -1, v40")
    retry("L_ypoll", 0)
    stamp()
    for p in range(8):
        A(f"v_lshlrev_b32 v{48+p}, 16, v{T+p}")
        A(f"v_and_b32 v{T+p}, {sHI}, v{T+p}")
    for (a, b) in [(0,1),(2,3),(4,5),(6,7),(0,2),(4,6),(0,4)]:
        A(f"v_add_f32 v{48+a}, v{48+a}, v{48+b}")
        A(f"v_add_f32 v{T+a}, v{T+a}, v{T+b}")
    A(f"v_add_f32 v48, v48, {vXp0}")
    A(f"v_add_f32 v{T}, v{T}, {vXp1}")
    A(f"v_cvt_pk_bf16_f32 v47, v48, v{T}")
    A(f"s_cmp_eq_u32 {sIt}, 4")
    A("s_cbranch_scc1 L_final")
    A("L_xg_have:")
    A("ds_write_b32 v45, v47")
    A(f"v_lshlrev_b32 {vXp0}, 16, v47")
    A(f"v_and_b32 {vXp1}, {sHI}, v47")
    A(f"v_add_f32 v42, {vXp0}, {vXp1}")
    A(f"v_mul_f32 v43, {vXp0}, {vXp0}")
    A(f"v_fmac_f32 v43, {vXp1}, {vXp1}")
    A("ds_write_b64 v46, v[42:43]")
    A("s_waitcnt lgkmcnt(0)")
    A("L_xg_bar:")
    A("s_barrier")
    A("s_branch L_xg_done")
    A("L_xg_m:")
    A(f"s_cmp_eq_u32 {sW}, 7")
    A("s_cbranch_scc1 L_xg_bar")
    A(f"s_cmp_lt_u32 {sJ}, 5")
    A(f"s_cselect_b32 {sT0}, {sT3}, 0")
    A(f"s_cmp_eq_u32 {sT0}, 1")
    A("s_cbranch_scc1 L_xg_bar")
    W = L0; XA = L0 + 40; D = 44; DC = 48; ONE = 52
    A(f"s_sub_u32 {sV_}, {sW}, 5")
    A(f"v_and_b32 v56, 32, {vLane}")
    A(f"v_and_b32 v57, 2, {vLane}")
    A(f"v_lshl_add_u32 v56, v57, 3, v56")
    A(f"v_add_u32 v56, v56, {vR0}")
    A(f"v_lshlrev_b32 v56, 5, v56")
    A(f"v_and_b32 v57, 1, {vLane}")
    A(f"s_add_u32 {sT0}, {sT3}, 3")
    A(f"v_lshlrev_b32 v57, {sT0}, v57")
    A(f"s_sub_u32 {sT0}, 4, {sT3}")
    A(f"s_lshl_b32 {sT0}, {sV_}, {sT0}")
    A(f"s_mul_i32 {sT1}, {sT3}, {L_W13 - L_WQ}")
    A(f"s_add_u32 {sT0}, {sT0}, {sT1}")
    A(f"v_add3_u32 v56, v56, v57, {sT0}")
    for u in range(5):
        for rp in range(4):
            hb, rho = rp >> 1, rp & 1
            A(f"ds_read_b64_tr_b16 {vr(W+8*u+2*rp,2)}, v56 offset:{L_WQ + (128*u+64*hb+2*rho)*32}")
    for r in range(4):
        A(f"v_mov_b32 v{D+r}, 0"); A(f"v_mov_b32 v{DC+r}, 0"); A(f"v_mov_b32 v{ONE+r}, 0x3f803f80")
    A(f"s_mul_i32 {sT1}, {sT3}, 1280")
    A(f"s_add_u32 {sT2}, {sT1}, {L_XI}")
    A(f"v_add_u32 v58, {sT2}, {vQ64}")
    A(f"s_lshl_b32 {sT1}, {sT1}, 1")
    A(f"s_add_u32 {sT2}, {sT1}, {L_ST}")
    A(f"v_lshl_add_u32 v59, {vLane}, 3, {sT2}")
    A(f"v_mov_b32 v61, {OOB}")
    A(f"s_cmp_eq_u32 {sT3}, 1")
    A("s_cbranch_scc1 L_xg_m_up")
    A(f"v_and_b32 v60, 2, {vLane}")
    A(f"v_lshlrev_b32 v60, 3, v60")
    A(f"v_and_b32 v57, 4, {vLane}")
    A(f"v_add_u32 v60, v60, v57")
    A(f"v_and_b32 v57, 0x39, {vLane}")
    A(f"s_lshl_b32 {sA1}, {sHead}, 8")
    A(f"s_and_b32 {sT0}, {sC}, 3"); A(f"s_lshl_b32 {sT0}, {sT0}, 6"); A(f"s_add_u32 {sA1}, {sA1}, {sT0}")
    A(f"s_lshr_b32 {sT0}, {sC}, 2"); A(f"s_lshl_b32 {sT0}, {sT0}, 5"); A(f"s_add_u32 {sA1}, {sA1}, {sT0}")
    A(f"s_add_u32 {sA1}, {sA1}, {QB}")
    A("s_branch L_xg_m_j")
    A("L_xg_m_up:")
    A(f"v_lshlrev_b32 v60, 1, {vLane}")
    A(f"v_and_b32 v57, 0x3d, {vLane}")
    A(f"s_lshl_b32 {sA1}, {sX}, 9")
    A(f"s_lshl_b32 {sT0}, {sJ}, 4"); A(f"s_add_u32 {sA1}, {sA1}, {sT0}")
    A(f"s_add_u32 {sA1}, {sA1}, {HB - 80}")
    A("L_xg_m_j:")
    A("v_cmp_eq_u32 vcc, 0, v57")
    A(f"s_lshl_b32 {sT0}, {sV_}, 3"); A(f"s_add_u32 {sA1}, {sA1}, {sT0}")
    A(f"s_add_u32 {sA1}, {sA1}, {sLay}")
    A("v_cndmask_b32 v60, v61, v60, vcc")
    A("s_waitcnt lgkmcnt(0)")
    for u in range(5):
        A(f"v_smfmac_f32_16x16x64_bf16 {vr(DC,4)}, {vr(ONE,4)}, {vr(W+8*u,8)}, {vIdx}")
    A(f"v_add_f32 v{DC}, v{DC}, v{DC+1}")
    A(f"v_add_f32 v{DC+2}, v{DC+2}, v{DC+3}")
    A(f"v_add_f32_dpp v{DC}, v{DC+2}, v{DC} row_shl:8 {DPPF}")
    stamp()
    A("s_barrier")
    stamp()
    for k in range(5): A(f"ds_read_b64 {vr(32+2*k,2)}, v59 offset:{512*k}")
    for u in range(5): A(f"ds_read_b128 {vr(XA+4*u,4)}, v58 offset:{256*u}")
    A("s_waitcnt lgkmcnt(5)" if not stamps else "s_waitcnt lgkmcnt(0)")
    A("v_pk_add_f32 v[32:33], v[32:33], v[34:35]")
    A("v_pk_add_f32 v[36:37], v[36:37], v[38:39]")
    A("v_pk_add_f32 v[32:33], v[32:33], v[40:41]")
    A("v_pk_add_f32 v[32:33], v[32:33], v[36:37]")
    steps = [f"quad_perm:[1,0,3,2] {DPPF}", f"quad_perm:[2,3,0,1] {DPPF}", f"row_half_mirror {DPPF}", f"row_mirror {DPPF}",
             "row_bcast:15 row_mask:0xa bank_mask:0xf", "row_bcast:31 row_mask:0xc bank_mask:0xf"]
    for i, st in enumerate(steps):
        if i < 5:
            A(f"s_waitcnt lgkmcnt({4-i})")
            A(f"v_smfmac_f32_16x16x64_bf16 {vr(D,4)}, {vr(XA+4*i,4)}, {vr(W+8*i,8)}, {vIdx}")
        A(f"v_add_f32_dpp v32, v32, v32 {st}")
        A(f"v_add_f32_dpp v33, v33, v33 {st}")
    A(f"v_mul_f32 v32, {1/640!r}, v32")
    A(f"v_mul_f32 v33, {1/640!r}, v33")
    A("v_fma_f32 v33, -v32, v32, v33")
    A("v_max_f32 v33, 0, v33")
    A("v_add_f32 v33, 1e-05, v33")
    A("v_rsq_f32 v33, v33")
    A(f"v_readlane_b32 {sT0}, v32, 63")
    A(f"v_add_f32 v{D}, v{D}, v{D+1}")
    A(f"v_add_f32 v{D+2}, v{D+2}, v{D+3}")
    A(f"v_readlane_b32 {sT1}, v33, 63")
    A(f"v_add_f32_dpp v{D}, v{D+2}, v{D} row_shl:8 {DPPF}")
    A(f"v_fma_f32 v{D}, -{sT0}, v{DC}, v{D}")
    A(f"v_mul_f32 v{D}, {sT1}, v{D}")
    A(f"s_cmp_eq_u32 {sT3}, 1")
    A("s_cbranch_scc1 L_xg_silu")
    A(f"v_mul_f32 v{D}, {math.log2(math.e)/math.sqrt(128)!r}, v{D}")
    A("s_branch L_xg_pub")
    A("L_xg_silu:")
    A(f"v_mul_f32 v34, {-math.log2(math.e)!r}, v{D}")
    A("v_exp_f32 v34, v34")
    A(f"v_mul_f32_dpp v{D}, v{D}, v{D} row_shl:4 {DPPF}")
    A("v_add_f32 v34, 1.0, v34")
    A("v_rcp_f32 v34, v34")
    A(f"v_mul_f32 v{D}, v{D}, v34")
    A("L_xg_pub:")
    A("s_nop 1")
    packpair("v35", f"v{D}", "v34")
    store_intra("L_xg_st", [f"buffer_store_dword v35, v60, {srd('WS')}, {sA1} offen"])
    stamp()
    A("L_xg_done:")
    A(f"s_cmp_eq_u32 {sT3}, 1")
    A("s_cbranch_scc1 L_down")

    A(f"s_lshl_b32 {sA1}, {sHead}, 8")
    A(f"s_add_u32 {sA1}, {sA1}, {QB}")
    A(f"s_add_u32 {sA1}, {sA1}, {sLay}")
    for Tt in range(4):
        for r in (0, 1, 6, 7): A(f"v_mov_b32 v{S0+8*Tt+r}, 0")
    def vload(j):
        A(f"buffer_load_dwordx4 {vr(L0+4*j,4)}, {vVoff}, {srd('V')}, {sKV if j < 8 else sT0} offen offset:{(j&7)*256} {nt}")
    def vperm(u):
        for q in range(4):
            a, b = L0 + 8*u + q, L0 + 8*u + 4 + q
            A(f"v_perm_b32 v{V0+8*(2*q)+u}, v{b}, v{a}, {sPL}")
            A(f"v_perm_b32 v{V0+8*(2*q+1)+u}, v{b}, v{a}, {sPH}")
    qload = f"buffer_load_dwordx4 {vr(vA,4)}, {vQ64}, {srd('WS')}, {sA1} offen sc1"
    A(f"s_cmp_eq_u32 {sIt}, 0")
    A("s_cbranch_scc0 L_qpoll0")
    A(f"s_add_u32 {sT0}, {sKV}, 8192")
    for j in range(8): vload(j)
    A(qload)
    for j in range(8, 16): vload(j)
    A("s_waitcnt vmcnt(8)")
    for u in range(4): vperm(u)
    stamp()
    A("s_branch L_qchk")
    A("L_qpoll0:")
    stamp()
    A("L_qpoll:")
    A(qload)
    A("s_waitcnt vmcnt(0)")
    A("L_qchk:")
    A(f"v_max3_u32 v14, v{vA}, v{vA+1}, v{vA+2}")
    A(f"v_max_u32 v14, v14, v{vA+3}")
    A("v_cmp_eq_u32 vcc, -1, v14")
    retry("L_qpoll", sl_q)
    stamp()
    def sadd(Tt):
        b = S0 + 8*Tt
        A(f"v_add_f32 v{b}, v{b}, v{b+1}")
        A(f"v_add_f32 v{b+6}, v{b+6}, v{b+7}")
    def ssel(Tt):
        b = S0 + 8*Tt
        A(f"v_add_f32_dpp v14, v{b}, v{b+6} quad_perm:[0,1,2,3] row_mask:{hex(1<<Tt)} bank_mask:0xf")
    for Tt in range(4):
        for kp in range(2):
            A(f"v_smfmac_f32_16x16x64_bf16 {vr(S0+8*Tt+4*kp,4)}, {vr(vA,4)}, {vr(K0+16*Tt+8*kp,8)}, {vIdx}")
            e = 2*Tt + kp
            A(f"v_mov_b32 v{L0+4*e}, 0"); A(f"v_mov_b32 v{L0+4*e+2}, 0")
    for Tt in range(4): sadd(Tt)
    for Tt in range(4): ssel(Tt)
    A(f"v_max_f32_dpp v16, v14, v14 {steps[0]}")
    for st in steps[1:]: A(f"v_max_f32_dpp v16, v16, v16 {st}")
    A(f"v_readlane_b32 {sM}, v16, 63")
    A(f"v_subrev_f32 v14, {sM}, v14")
    A("v_exp_f32 v14, v14")
    A(f"v_mov_b32_dpp v15, v14 quad_perm:[1,1,3,3] {DPPF}")
    A(f"v_cvt_pk_bf16_f32 v{vA}, v14, v15")
    A(f"v_add_f32_dpp v17, v14, v14 {steps[0]}")
    for q in range(1, 4): A(f"v_mov_b32_dpp v{vA+q}, v{vA} row_ror:{16-4*q} {DPPF}")
    A(f"s_cmp_eq_u32 {sIt}, 0")
    A("s_cbranch_scc0 L_pv")
    for u in range(4, 8):
        A(f"s_waitcnt vmcnt({14-2*u})")
        vperm(u)
    stamp()
    A("L_pv:")
    A("s_nop 0")
    for e in range(8):
        A(f"v_smfmac_f32_16x16x64_bf16 {vr(L0+4*e,4)}, {vr(vA,4)}, {vr(V0+8*e,8)}, {vIdx} abid:1")
        if e < 5: A(f"v_add_f32_dpp v17, v17, v17 {steps[e+1]}")
        if e == 5: A(f"ds_write_b64 {vML}, v[16:17]")
    A(f"s_lshl_b32 {sT0}, {sW}, 9")
    A(f"s_add_u32 {sT0}, {sT0}, {L_OP}")
    A(f"v_lshl_add_u32 v18, {vLane}, 5, {sT0}")
    for e in range(8): A(f"v_add_f32 v{S0+e}, v{L0+4*e}, v{L0+4*e+2}")
    A("s_mov_b64 exec, 0xffff")
    A(f"ds_write_b128 v18, {vr(S0,4)}")
    A(f"ds_write_b128 v18, {vr(S0+4,4)} offset:16")
    A("s_mov_b64 exec, -1")
    A(f"v_and_b32 v19, 7, {vLane}")
    A(f"v_lshlrev_b32 v20, 3, v19")
    A(f"v_add_u32 v20, {L_ML}, v20")
    A(f"v_lshlrev_b32 v21, 3, {vLane}")
    A(f"v_add_u32 v21, {L_OP}, v21")
    A("s_waitcnt lgkmcnt(0)")
    stamp()
    A("s_barrier")
    A(f"s_cmp_eq_u32 {sW}, 0")
    A("s_cbranch_scc0 L_wo")
    A("ds_read_b64 v[16:17], v20")
    for w in range(8): A(f"ds_read_b64 {vr(40+2*w,2)}, v21 offset:{512*w}")
    A(f"v_lshrrev_b32 v22, 3, {vLane}")
    A(f"v_lshlrev_b32 v22, 8, v22")
    A(f"v_lshl_add_u32 v22, v19, 2, v22")
    A(f"s_lshl_b32 {sA1}, {sHead}, 11")
    A(f"s_lshl_b32 {sT0}, {sC}, 5"); A(f"s_add_u32 {sA1}, {sA1}, {sT0}")
    A(f"s_add_u32 {sA1}, {sA1}, {sLay}")
    A(f"s_lshl_b32 {sA2}, {sHead}, 5")
    A(f"s_lshl_b32 {sT0}, {sC}, 2"); A(f"s_add_u32 {sA2}, {sA2}, {sT0}")
    A(f"s_add_u32 {sA2}, {sA2}, {sLay}")
    A(f"v_mov_b32 v23, {OOB}")
    A(f"s_mov_b32 {sT0}, {AB}")
    A(f"v_writelane_b32 v23, {sT0}, 0")
    A("s_waitcnt lgkmcnt(8)" if not stamps else "s_waitcnt lgkmcnt(0)")
    A(f"v_max_f32_dpp v24, v16, v16 {steps[0]}")
    for st in steps[1:3]: A(f"v_max_f32_dpp v24, v24, v24 {st}")
    A("v_sub_f32 v16, v16, v24")
    A("v_exp_f32 v16, v16")
    A("v_mul_f32 v17, v16, v17")
    A("s_waitcnt lgkmcnt(0)")
    A(f"v_mul_f32_dpp v26, v16, v40 row_newbcast:0 {DPPF}")
    A(f"v_mul_f32_dpp v27, v16, v41 row_newbcast:0 {DPPF}")
    for w in range(1, 8):
        if w < 4: A(f"v_add_f32_dpp v17, v17, v17 {steps[w-1]}")
        if w == 4: A("v_rcp_f32 v25, v17")
        if w == 5: A("v_log_f32 v17, v17")
        A(f"v_fmac_f32_dpp v26, v16, v{40+2*w} row_newbcast:{w} {DPPF}")
        A(f"v_fmac_f32_dpp v27, v16, v{41+2*w} row_newbcast:{w} {DPPF}")
    A("v_mul_f32 v26, v26, v25")
    A("v_mul_f32 v27, v27, v25")
    A("v_add_f32 v17, v17, v24")
    A("v_cvt_pk_bf16_f32 v26, v26, v27")
    A("v_min_u32 v17, -2, v17")
    A("v_min_u32 v26, -2, v26")
    store_intra("L_att_st", [f"buffer_store_dword v26, v22, {srd('WS')}, {sA1} offen",
                             f"buffer_store_dword v17, v23, {srd('WS')}, {sA2} offen"])
    stamp()

    A("L_wo:")
    A(f"s_cmp_lt_u32 {sJ}, 20")
    A("s_cbranch_scc0 L_next")
    W = L0; D0 = 32; D1 = 36
    A(f"v_and_b32 v18, 32, {vLane}")
    A(f"v_lshrrev_b32 v18, 1, v18")
    A(f"v_add_u32 v18, v18, {vR0}")
    A(f"v_lshlrev_b32 v18, 6, v18")
    A(f"v_and_b32 v19, 3, {vLane}")
    A(f"v_lshl_add_u32 v18, v19, 3, v18")
    A(f"s_lshl_b32 {sT0}, {sW}, 12")
    A(f"s_add_u32 {sT0}, {sT0}, {L_WO}")
    A(f"v_add_u32 v18, {sT0}, v18")
    for cb in range(2):
        for rp in range(4):
            hb, rho = rp >> 1, rp & 1
            A(f"ds_read_b64_tr_b16 {vr(W+8*cb+2*rp,2)}, v18 offset:{32*cb + (32*hb+2*rho)*64}")
    for r in range(8): A(f"v_mov_b32 v{D0+r}, 0")
    A(f"v_lshlrev_b32 v19, 4, {vLane}")
    A(f"v_lshrrev_b32 v20, 3, {vLane}")
    A(f"v_and_b32 v20, 6, v20")
    A(f"v_add_u32 v20, v20, {vLane}")
    A(f"v_and_b32 v20, 7, v20")
    A(f"v_lshlrev_b32 v20, 2, v20")
    A(f"s_lshl_b32 {sA1}, {sX}, 13")
    A(f"s_lshl_b32 {sT0}, {sW}, 10"); A(f"s_add_u32 {sA1}, {sA1}, {sT0}")
    A(f"s_add_u32 {sA1}, {sA1}, {sLay}")
    A(f"s_lshl_b32 {sA2}, {sX}, 7")
    A(f"s_lshr_b32 {sT0}, {sW}, 1"); A(f"s_lshl_b32 {sT0}, {sT0}, 5"); A(f"s_add_u32 {sA2}, {sA2}, {sT0}")
    A(f"s_add_u32 {sA2}, {sA2}, {sLay}")
    A(f"s_add_u32 {sA2}, {sA2}, {AB}")
    A(f"s_lshl_b32 {sT0}, {sW}, 8")
    A(f"s_add_u32 {sT0}, {sT0}, {L_RED}")
    A(f"v_lshl_add_u32 v21, {vLane}, 2, {sT0}")
    A(f"v_and_b32 v22, 15, {vLane}")
    A(f"v_lshlrev_b32 v22, 1, v22")
    A(f"v_and_b32 v23, 32, {vLane}")
    A(f"v_add_u32 v22, v22, v23")
    A(f"v_and_b32 v23, 17, {vLane}")
    A("v_cmp_eq_u32 vcc, 0, v23")
    A(f"v_mov_b32 v23, {OOB}")
    A(f"s_lshl_b32 {sT2}, {sX}, 7")
    A("v_cndmask_b32 v22, v23, v22, vcc")
    A(f"s_lshl_b32 {sT0}, {sJ}, 10"); A(f"s_add_u32 {sT2}, {sT2}, {sT0}")
    A(f"s_add_u32 {sT2}, {sT2}, {sLay}")
    A(f"s_add_u32 {sT2}, {sT2}, {YB}")
    A("s_waitcnt lgkmcnt(0)")
    stamp()
    A("L_opoll:")
    A(f"buffer_load_dword v14, v20, {srd('WS')}, {sA2} offen sc1")
    A(f"buffer_load_dwordx4 {vr(vA,4)}, v19, {srd('WS')}, {sA1} offen sc1")
    A("s_waitcnt vmcnt(0)")
    A(f"v_max3_u32 v15, v{vA}, v{vA+1}, v{vA+2}")
    A(f"v_max3_u32 v15, v15, v{vA+3}, v14")
    A("v_cmp_eq_u32 vcc, -1, v15")
    retry("L_opoll", sl_o)
    stamp()
    A(f"v_smfmac_f32_16x16x64_bf16 {vr(D0,4)}, {vr(vA,4)}, {vr(W,8)}, {vIdx}")
    A(f"v_max_f32_dpp v24, v14, v14 {steps[0]}")
    A(f"v_smfmac_f32_16x16x64_bf16 {vr(D1,4)}, {vr(vA,4)}, {vr(W+8,8)}, {vIdx}")
    for st in steps[1:3]: A(f"v_max_f32_dpp v24, v24, v24 {st}")
    A("v_sub_f32 v14, v14, v24")
    A("v_exp_f32 v14, v14")
    for d in (D0, D1):
        A(f"v_add_f32 v{d}, v{d}, v{d+1}")
        A(f"v_add_f32 v{d+2}, v{d+2}, v{d+3}")
    A(f"v_add_f32_dpp v25, v14, v14 {steps[0]}")
    A(f"v_mul_f32_dpp v26, v14, v{D0} row_newbcast:0 {DPPF}")
    A(f"v_mul_f32_dpp v27, v14, v{D1} row_newbcast:0 {DPPF}")
    A(f"v_add_f32_dpp v25, v25, v25 {steps[1]}")
    A(f"v_fmac_f32_dpp v26, v14, v{D0+2} row_newbcast:1 {DPPF}")
    A(f"v_fmac_f32_dpp v27, v14, v{D1+2} row_newbcast:1 {DPPF}")
    A(f"v_add_f32_dpp v25, v25, v25 {steps[2]}")
    A("v_rcp_f32 v25, v25")
    A("v_permlane32_swap_b32 v26, v27")
    A("v_add_f32 v26, v26, v27")
    A("v_mul_f32 v26, v26, v25")
    A("ds_write_b32 v21, v26")
    A("s_waitcnt lgkmcnt(0)")
    A("s_barrier")
    A(f"s_cmp_eq_u32 {sW}, 0")
    A("s_cbranch_scc0 L_next")
    for w in range(8): A(f"ds_read_b32 v{40+w}, v21 offset:{256*w}")
    A("s_waitcnt lgkmcnt(0)")
    for (a, b) in [(0,1),(2,3),(4,5),(6,7),(0,2),(4,6),(0,4)]:
        A(f"v_add_f32 v{40+a}, v{40+a}, v{40+b}")
    A("v_mov_b32 v41, v40")
    A("v_permlane16_swap_b32 v40, v41")
    A("v_add_f32 v40, v40, v41")
    packpair("v42", "v40", "v41")
    A(f"buffer_store_dword v42, v22, {srd('WS')}, {sT2} offen sc1")
    stamp()
    A("L_next:")
    A(f"s_add_u32 {sIt}, {sIt}, 1")
    A("s_branch L_xg")

    A("L_down:")
    A(f"s_cmp_ge_u32 {sJ}, 12")
    A(f"s_cselect_b32 {sT0}, {sW}, 0")
    A(f"s_cmp_eq_u32 {sT0}, 7")
    A("s_cbranch_scc0 L_down_done")
    A1 = 16
    A(f"v_and_b32 v20, 32, {vLane}")
    A(f"v_add_u32 v20, v20, {vR0}")
    A(f"v_lshlrev_b32 v20, 6, v20")
    A(f"v_and_b32 v21, 3, {vLane}")
    A(f"v_lshl_add_u32 v20, v21, 3, v20")
    A(f"v_add_u32 v20, {L_W2}, v20")
    for cb in range(2):
        for u in range(2):
            for kp in range(2):
                for rp in range(4):
                    hb, rho = rp >> 1, rp & 1
                    A(f"ds_read_b64_tr_b16 {vr(W+32*cb+16*u+8*kp+2*rp,2)}, v20 offset:{32*cb+(128*u+64*hb+16*kp+2*rho)*64}")
    for r in range(16): A(f"v_mov_b32 v{D0+r}, 0")
    A(f"v_mov_b32 v23, {OOB}")
    A(f"v_cmp_gt_u32 vcc, 176, {vQ64}")
    A(f"s_lshl_b32 {sA1}, {sX}, 9")
    A(f"s_add_u32 {sA1}, {sA1}, {sLay}")
    A(f"v_cndmask_b32 v21, v23, {vQ64}, vcc")
    A(f"s_add_u32 {sA1}, {sA1}, {HB}")
    A(f"v_and_b32 v24, 0x21, {vLane}")
    A("v_cmp_eq_u32 vcc, 0, v24")
    A(f"v_lshlrev_b32 v22, 1, {vLane}")
    A(f"s_lshl_b32 {sT2}, {sX}, 7")
    A("v_cndmask_b32 v22, v23, v22, vcc")
    A(f"s_lshl_b32 {sT0}, {sJ}, 10"); A(f"s_add_u32 {sT2}, {sT2}, {sT0}")
    A(f"s_add_u32 {sT2}, {sT2}, {sLay}")
    A(f"s_add_u32 {sT2}, {sT2}, {ZB - 12*1024}")
    A("s_waitcnt lgkmcnt(0)")
    stamp()
    A("L_hpoll:")
    A(f"buffer_load_dwordx4 {vr(vA,4)}, {vQ64}, {srd('WS')}, {sA1} offen sc1")
    A(f"buffer_load_dwordx4 {vr(A1,4)}, v21, {srd('WS')}, {sA1} offen offset:256 sc1")
    A("s_waitcnt vmcnt(0)")
    A(f"v_max3_u32 v14, v{vA}, v{vA+1}, v{vA+2}")
    A(f"v_max3_u32 v15, v{A1}, v{A1+1}, v{A1+2}")
    A(f"v_max3_u32 v14, v14, v{vA+3}, v{A1+3}")
    A("v_max_u32 v14, v14, v15")
    A("v_cmp_eq_u32 vcc, -1, v14")
    retry("L_hpoll", sl_h)
    stamp()
    for cb in range(2):
        for u in range(2):
            for kp in range(2):
                A(f"v_smfmac_f32_16x16x64_bf16 {vr(D0+8*cb+4*kp,4)}, {vr(A1 if u else vA,4)}, {vr(W+32*cb+16*u+8*kp,8)}, {vIdx}")
    for cb in range(2):
        b_ = D0 + 8*cb
        A(f"v_add_f32 v{b_}, v{b_}, v{b_+1}")
        A(f"v_add_f32 v{b_+6}, v{b_+6}, v{b_+7}")
    A(f"v_add_f32 v14, v{D0}, v{D0+6}")
    A(f"v_add_f32_dpp v14, v{D0+8}, v{D0+14} quad_perm:[0,1,2,3] row_mask:0x2 bank_mask:0xf")
    packpair("v24", "v14", "v15")
    A(f"buffer_store_dword v24, v22, {srd('WS')}, {sT2} offen sc1")
    stamp()
    A("L_down_done:")
    A(f"s_add_u32 {sIt}, {sIt}, 1")
    A(f"s_mov_b32 {sLay}, {LSTRIDE}")
    A(f"s_cmp_eq_u32 {sIt}, 4")
    A("s_cbranch_scc0 L_xg")
    A(f"s_lshl_b32 {sT0}, {sW}, 3")
    A(f"s_cmp_eq_u32 {sT0}, s2")
    A("s_cbranch_scc0 L_end")
    A(f"s_cmp_lt_u32 {sW}, 5")
    A("s_cbranch_scc1 L_xg")
    A("s_branch L_end")
    A("L_final:")
    A(f"buffer_store_dword v47, v44, {srd('OUT')}, 0 offen")
    A("L_end:")
    if stamps:
        stamp()
        A(f"s_lshl_b32 {sT0}, s2, 3"); A(f"s_add_u32 {sT0}, {sT0}, {sW}"); A(f"s_lshl_b32 {sT0}, {sT0}, 8")
        A(f"s_add_u32 {sT0}, {sT0}, {WS_STAMP}")
        A(f"v_lshl_add_u32 v14, {vLane}, 2, {sT0}")
        A(f"global_store_dword v14, {vST}, s[{P(11)[0]}:{P(11)[1]}]")
    A("L_exit:")
    A("s_endpgm")

    ref = open("cdna_kernels/" + NAME + ".s.ref").read().split("\n")
    head = [l for l in ref if l.startswith(";") and "@launch" not in l and "Override launch" not in l and "grid=ceil" not in l]
    out = "\n".join(head) + f"\n; @launch grid=(256,1,1) block=(512,1,1) lds={LDS_BYTES}\n"
    out += f""".amdgcn_target "amdgcn-amd-amdhsa--gfx950"
.text
.globl {NAME}_kernel
.p2align 8
.type {NAME}_kernel,@function
{NAME}_kernel:
"""
    out += A.text()
    out += f""".section .rodata,"a"
.p2align 6
.amdhsa_kernel {NAME}_kernel
  .amdhsa_next_free_vgpr 256
  .amdhsa_next_free_sgpr 102
  .amdhsa_accum_offset 256
  .amdhsa_group_segment_fixed_size 0
  .amdhsa_kernarg_size 96
  .amdhsa_user_sgpr_count 2
  .amdhsa_user_sgpr_kernarg_segment_ptr 1
  .amdhsa_system_sgpr_workgroup_id_x 1
  .amdhsa_float_denorm_mode_32 3
.end_amdhsa_kernel
"""
    return out

if __name__ == "__main__":
    kw = {}
    dst = "cdna_kernels/" + NAME + ".s"
    for a in sys.argv[1:]:
        k, v = a.split("=", 1)
        if k == "out": dst = v
        else:
            try: kw[k] = int(v)
            except ValueError: kw[k] = v
    open(dst, "w").write(gen(**kw))
    print("wrote", dst)
```

```python
import sys, math
from asmlib import Asm

NAME = "interleave_layers__mha_block_cached__glu_gated_swiglu__decode"

LSTRIDE = 0x20000
OB, QB, YB, ZB, HB, AB = 0x0, 0x10000, 0x12000, 0x17000, 0x1c000, 0x1d000
WS_COMM = 0x40000
WS_STAMP = 0x100000
OOB = 0x7f000000
L_WQ = 0; L_W13 = 20480; L_WO = 40960; L_W2 = 73728
L_XI = 90112
L_ST = L_XI + 2560
L_ML = L_ST + 5120
L_OP = L_ML + 640
L_RED = L_OP + 4096
L_FLAG = L_RED + 2048
LDS_BYTES = L_FLAG + 64
sX, sJ, sW, sHead, sC, sKV, sIt, sLay, sFast, sTO, sT0, sT1, sT2, sT3, sPL, sPH, sSI = \
    ["s%d" % i for i in range(3, 20)]
sV_ = "s20"; sM = "s21"; sA1 = "s22"; sA2 = "s23"; sHI = "s24"
P = lambda i: (36 + 2*i, 37 + 2*i)
SRD = dict(K=60, V=64, WS=68, WQ=72, WO=76, W2=80, X=84, OUT=88, DBG=92)
def srd(n): return f"s[{SRD[n]}:{SRD[n]+3}]"
vLane, vR0, vQ64, vIdx, vXp0, vXp1, vML, vST = ["v%d" % i for i in range(8)]
vA = 8
vKoff, vVoff = "v12", "v13"
S0 = 32; K0 = 64; V0 = 128; L0 = 192
def vr(a, n): return f"v[{a}:{a+n-1}]" if n > 1 else f"v{a}"
DPPF = "row_mask:0xf bank_mask:0xf"

def gen(stamps=False, sl_q=0, sl_o=0, sl_y=2, sl_h=0, force_slow=False, nt="nt", amp=""):
    A = Asm()
    def mark(name, it=None):
        if not amp or name not in amp.split(","): return
        r = 28 + 2*amp.split(",").index(name)
        if it is not None:
            A(f"s_cmp_eq_u32 {sIt}, {it}"); A(f"s_cbranch_scc0 L_mark_{name}")
        A(f"s_memrealtime s[{r}:{r+1}]"); A("s_waitcnt lgkmcnt(0)")
        if it is not None: A(f"L_mark_{name}:")
    def stamp():
        if not stamps: return
        A("s_memrealtime s[96:97]")
        A("s_waitcnt lgkmcnt(0)")
        A(f"s_mov_b32 m0, {sSI}")
        A(f"v_writelane_b32 {vST}, s96, m0")
        A(f"s_add_u32 {sSI}, {sSI}, 1")
    def mksrd(n, ptr, size):
        b = SRD[n]; lo, hi = P(ptr)
        A(f"s_mov_b32 s{b}, s{lo}")
        A(f"s_and_b32 s{b+1}, s{hi}, 0xffff")
        A(f"s_mov_b32 s{b+2}, {size}")
        A(f"s_mov_b32 s{b+3}, 0x20000")
    def retry(label, sleep):
        A(f"s_cbranch_vccz {label}_ok")
        A(f"s_sub_u32 {sTO}, {sTO}, 1")
        if sleep: A(f"s_sleep {sleep}")
        A(f"s_cbranch_scc0 {label}")
        A("s_branch L_end")
        A(f"{label}_ok:")
    def store_intra(label, stores):
        A(f"s_cmp_eq_u32 {sFast}, 0")
        A(f"s_cbranch_scc1 {label}_slow")
        for s in stores: A(s)
        A(f"s_branch {label}_done")
        A(f"{label}_slow:")
        for s in stores: A(s + " sc1")
        A(f"{label}_done:")
    def packpair(dst, val, tmp):
        A(f"v_mov_b32_dpp {tmp}, {val} quad_perm:[1,1,3,3] {DPPF}")
        A(f"v_cvt_pk_bf16_f32 {dst}, {val}, {tmp}")
        A(f"v_min_u32 {dst}, -2, {dst}")

    A("s_cmp_ge_u32 s2, 256")
    A("s_cbranch_scc1 L_exit")
    mark("start")
    A("s_load_dwordx16 s[36:51], s[0:1], 0")
    A("s_load_dwordx8 s[52:59], s[0:1], 64")
    if stamps:
        A(f"s_mov_b32 {sSI}, 0"); A(f"v_mov_b32 {vST}, 0")
        stamp()
    A("v_lshrrev_b32 v14, 6, v0")
    A(f"v_and_b32 {vLane}, 63, v0")
    A(f"v_readfirstlane_b32 {sW}, v14")
    A(f"s_and_b32 {sX}, s2, 7")
    A(f"s_lshr_b32 {sJ}, s2, 3")
    A(f"s_lshr_b32 {sT0}, {sJ}, 3")
    A(f"s_lshl_b32 {sHead}, {sX}, 2")
    A(f"s_add_u32 {sHead}, {sHead}, {sT0}")
    A(f"s_and_b32 {sC}, {sJ}, 7")
    A(f"s_lshl_b32 {sKV}, {sHead}, 20")
    A(f"s_lshl_b32 {sT0}, {sC}, 17")
    A(f"s_add_u32 {sKV}, {sKV}, {sT0}")
    A(f"s_lshl_b32 {sT0}, {sW}, 14")
    A(f"s_add_u32 {sKV}, {sKV}, {sT0}")
    A(f"s_mov_b32 {sTO}, 0x80000")
    A(f"s_mov_b32 {sIt}, 0")
    A(f"s_mov_b32 {sLay}, 0")
    A(f"s_mov_b32 {sPL}, 0x05040100")
    A(f"s_mov_b32 {sPH}, 0x07060302")
    A(f"s_mov_b32 {sHI}, 0xffff0000")
    A(f"v_and_b32 v14, 15, {vLane}")
    A(f"v_lshrrev_b32 v15, 4, {vLane}")
    A(f"v_lshlrev_b32 {vKoff}, 8, v14")
    A(f"v_lshl_add_u32 {vKoff}, v15, 4, {vKoff}")
    A(f"v_lshlrev_b32 {vVoff}, 11, v15")
    A(f"v_lshl_add_u32 {vVoff}, v14, 4, {vVoff}")
    A(f"v_lshrrev_b32 v16, 1, {vLane}")
    A(f"v_and_b32 v17, 1, {vLane}")
    A(f"v_lshlrev_b32 v18, 13, v16")
    A(f"v_lshl_add_u32 v18, v17, 4, v18")
    A(f"v_lshrrev_b32 v19, 2, {vLane}")
    A(f"v_mul_u32_u24 v19, 1280, v19")
    A(f"v_and_b32 v20, 3, {vLane}")
    A(f"v_lshl_add_u32 v19, v20, 4, v19")
    A("s_waitcnt lgkmcnt(0)")
    mark("karg")
    mksrd("WS", 11, WS_COMM); mksrd("X", 0, 1280); mksrd("WQ", 3, 640*4096*2)
    mksrd("K", 1, 1 << 25); mksrd("V", 2, 1 << 25); mksrd("WO", 4, 4096*640*2)
    mksrd("W2", 8, 1728*640*2); mksrd("OUT", 9, 1280); mksrd("DBG", 10, 256)
    A(f"s_cmp_eq_u32 {sW}, 0")
    A("s_cbranch_scc0 L_noclear")
    for r in range(24, 28): A(f"v_mov_b32 v{r}, -1")
    A(f"v_lshlrev_b32 v21, 4, {vLane}")
    A(f"s_lshl_b32 {sT0}, s2, 10")
    A(f"buffer_store_dwordx4 v[24:27], v21, {srd('WS')}, {sT0} offen sc1")
    A(f"s_getreg_b32 {sT1}, hwreg(HW_REG_XCC_ID, 0, 3)")
    A(f"s_lshl_b32 {sT1}, {sT1}, 3")
    A(f"s_lshl_b64 s[26:27], 1, {sT1}")
    A("v_mov_b32 v22, s26"); A("v_mov_b32 v23, s27")
    A(f"s_lshl_b32 {sT0}, {sX}, 3")
    A(f"v_mov_b32 v21, {OOB}")
    A(f"v_writelane_b32 v21, {sT0}, 0")
    A("s_waitcnt vmcnt(0)")
    A(f"buffer_atomic_add_x2 v[22:23], v21, {srd('DBG')}, 0 offen sc0 sc1")
    A("s_waitcnt vmcnt(0)")
    A("v_sad_u8 v24, v22, 0, 0")
    A("v_sad_u8 v24, v23, 0, v24")
    A(f"v_readfirstlane_b32 {sT1}, v24")
    A(f"s_cmp_eq_u32 {sT1}, 31")
    A("s_cbranch_scc0 L_noclear")
    A("v_add_u32 v22, s26, v22"); A("v_add_u32 v23, s27, v23")
    A("v_or_b32 v22, v22, v23")
    A(f"v_and_b32 v22, {0 if force_slow else 0x20202020}, v22")
    A("v_or_b32 v22, 1, v22")
    A("v_lshrrev_b32 v21, 1, v21")
    A(f"buffer_store_dword v22, v21, {srd('DBG')}, 0 offen offset:128 sc1")
    A("L_noclear:")
    A(f"s_lshl_b32 {sT0}, {sW}, 8")
    A(f"v_lshl_add_u32 v21, {vLane}, 2, {sT0}")
    A(f"buffer_load_dword {vXp1}, v21, {srd('X')}, 0 offen")
    A(f"s_lshl_b32 {sT0}, {sHead}, 8")
    A(f"s_lshl_b32 {sT1}, {sC}, 5")
    A(f"s_add_u32 {sT0}, {sT0}, {sT1}")
    A(f"s_lshl_b32 {sT1}, {sW}, 18")
    A(f"s_add_u32 {sT0}, {sT0}, {sT1}")
    A(f"s_lshl_b32 {sT2}, {sW}, 10")
    for k in range(3):
        if k == 2:
            A(f"s_cmp_lt_u32 {sW}, 4"); A("s_cbranch_scc0 L_wq_done")
        A(f"s_add_u32 m0, {sT2}, {L_WQ + k*8192}")
        if k: A(f"s_add_u32 {sT0}, {sT0}, {8*262144}")
        A(f"buffer_load_dwordx4 v18, {srd('WQ')}, {sT0} offen {nt} lds")
    A("L_wq_done:")
    A(f"s_cmp_lt_u32 {sJ}, 20"); A("s_cbranch_scc0 L_wo_done")
    A(f"s_lshl_b32 {sT0}, {sX}, 9")
    A(f"s_lshl_b32 {sT1}, {sW}, 6")
    A(f"s_add_u32 {sT0}, {sT0}, {sT1}")
    A(f"s_mul_i32 {sT0}, {sT0}, 1280")
    A(f"s_lshl_b32 {sT1}, {sJ}, 6")
    A(f"s_add_u32 {sT0}, {sT0}, {sT1}")
    A(f"s_lshl_b32 {sT3}, {sW}, 12")
    for k in range(4):
        A(f"s_add_u32 m0, {sT3}, {L_WO + k*1024}")
        if k: A(f"s_add_u32 {sT0}, {sT0}, {16*1280}")
        A(f"buffer_load_dwordx4 v19, {srd('WO')}, {sT0} offen {nt} lds")
    A("L_wo_done:")
    A(f"s_cmp_ge_u32 {sJ}, 5"); A("s_cbranch_scc0 L_w13_done")
    A(f"s_mul_i32 {sT0}, {sX}, 432")
    A(f"s_lshl_b32 {sT1}, {sJ}, 4")
    A(f"s_add_u32 {sT0}, {sT0}, {sT1}")
    A(f"s_sub_u32 {sT0}, {sT0}, 80")
    A(f"s_mul_i32 {sT1}, {sW}, {32*3456}")
    A(f"s_add_u32 {sT0}, {sT0}, {sT1}")
    A("v_mul_u32_u24 v21, 3456, v16")
    A(f"v_add_u32 v21, {sT0}, v21")
    A("v_cmp_eq_u32 vcc, 1, v17")
    A(f"v_mov_b32 v22, s{P(6)[0]}"); A(f"v_mov_b32 v23, s{P(6)[1]}")
    A(f"v_mov_b32 v24, s{P(7)[0]}"); A(f"v_mov_b32 v25, s{P(7)[1]}")
    A("v_cndmask_b32 v22, v22, v24, vcc"); A("v_cndmask_b32 v23, v23, v25, vcc")
    A("v_add_co_u32 v22, vcc, v22, v21"); A("v_addc_co_u32 v23, vcc, 0, v23, vcc")
    for k in range(3):
        if k == 2:
            A(f"s_cmp_lt_u32 {sW}, 4"); A("s_cbranch_scc0 L_w13_done")
        if k:
            A(f"v_add_co_u32 v22, vcc, {8*32*3456}, v22"); A("v_addc_co_u32 v23, vcc, 0, v23, vcc")
        A(f"s_add_u32 m0, {sT2}, {L_W13 + k*8192}")
        A(f"global_load_lds_dwordx4 v[22:23], off {nt}")
    A("L_w13_done:")
    A(f"s_cmp_ge_u32 {sJ}, 12"); A("s_cbranch_scc0 L_w2_done")
    A(f"s_mul_i32 {sT0}, {sX}, 216")
    A(f"s_lshl_b32 {sT1}, {sW}, 5")
    A(f"s_add_u32 {sT0}, {sT0}, {sT1}")
    A(f"s_mul_i32 {sT0}, {sT0}, 1280")
    A(f"s_lshl_b32 {sT1}, {sJ}, 6")
    A(f"s_add_u32 {sT0}, {sT0}, {sT1}")
    A(f"s_sub_u32 {sT0}, {sT0}, {12*64}")
    A(f"s_lshl_b32 {sT3}, {sW}, 11")
    for k in range(2):
        A(f"s_add_u32 m0, {sT3}, {L_W2 + k*1024}")
        if k: A(f"s_add_u32 {sT0}, {sT0}, {16*1280}")
        A(f"buffer_load_dwordx4 v19, {srd('W2')}, {sT0} offen {nt} lds")
    A("L_w2_done:")
    A(f"v_lshlrev_b32 v21, 2, {vLane}")
    for T in range(4):
        if T: A(f"s_add_u32 {sT0}, {sKV}, {T*4096}")
        so = sT0 if T else sKV
        for t in range(4):
            A(f"buffer_load_dwordx4 {vr(K0+16*T+4*t,4)}, {vKoff}, {srd('K')}, {so} offen offset:{64*t} {nt}")
        if T == 1:
            A(f"s_cmp_eq_u32 {sW}, 7"); A("s_cbranch_scc0 L_nocnt")
            A(f"buffer_load_dword v22, v21, {srd('DBG')}, 0 offen offset:128 sc1")
            A("L_nocnt:")
    A(f"v_and_b32 {vR0}, 8, {vLane}")
    A(f"v_bfe_u32 v23, {vLane}, 4, 1")
    A(f"v_lshl_add_u32 {vR0}, v23, 2, {vR0}")
    A(f"v_bfe_u32 v23, {vLane}, 2, 1")
    A(f"v_add_u32 {vR0}, {vR0}, v23")
    A(f"v_lshlrev_b32 {vQ64}, 6, v15")
    A(f"v_lshl_add_u32 {vQ64}, v20, 4, {vQ64}")
    A(f"v_mul_u32_u24 {vIdx}, 0xaaaa, v17")
    A(f"v_bfe_u32 v23, {vLane}, 1, 1")
    A(f"v_mul_u32_u24 v23, 0xaaaa, v23")
    A(f"v_lshl_add_u32 {vIdx}, v23, 16, {vIdx}")
    A(f"v_add_u32 {vIdx}, 0x44444444, {vIdx}")
    A(f"v_lshlrev_b32 {vML}, 3, {vLane}")
    A(f"v_add_u32 {vML}, {L_ML+64}, {vML}")
    A(f"s_lshl_b32 {sT0}, {sW}, 3")
    A(f"s_add_u32 {sT0}, {sT0}, {L_ML}")
    A(f"v_writelane_b32 {vML}, {sT0}, 63")
    A(f"s_cmp_eq_u32 {sW}, 7"); A("s_cbranch_scc0 L_cnt_skip")
    A("s_waitcnt vmcnt(8)")
    A("s_branch L_cnt_chk")
    A("L_cnt:")
    A(f"buffer_load_dword v22, v21, {srd('DBG')}, 0 offen offset:128 sc1")
    A("s_waitcnt vmcnt(0)")
    A("L_cnt_chk:")
    A("v_cmp_eq_u32 vcc, 0, v22")
    A("s_and_b32 vcc_lo, vcc_lo, 0xff")
    A("s_cbranch_scc0 L_cnt_ok")
    A(f"s_sub_u32 {sTO}, {sTO}, 1")
    A("s_sleep 8")
    A("s_cbranch_scc0 L_cnt")
    A("s_branch L_end")
    A("L_cnt_ok:")
    A(f"v_readlane_b32 {sT0}, v22, {sX}")
    A(f"s_lshr_b32 {sT0}, {sT0}, 1")
    A(f"v_mov_b32 v23, {sT0}")
    A(f"v_mov_b32 v24, {L_FLAG}")
    A("ds_write_b32 v24, v23")
    A("L_cnt_skip:")
    A("s_waitcnt vmcnt(16) lgkmcnt(0)")
    stamp()
    A("s_barrier")
    A(f"v_mov_b32 v24, {L_FLAG}")
    A("ds_read_b32 v23, v24")
    A("s_waitcnt lgkmcnt(0)")
    A(f"v_readfirstlane_b32 {sFast}, v23")
    mark("barA")

    A("L_xg:")
    A(f"s_and_b32 {sT3}, {sIt}, 1")
    A(f"s_cmp_lt_u32 {sW}, 5")
    A("s_cbranch_scc0 L_xg_m")
    T = S0
    A(f"s_lshl_b32 {sT0}, {sW}, 8")
    A(f"v_lshl_add_u32 v44, {vLane}, 2, {sT0}")
    A(f"s_mul_i32 {sT1}, {sT3}, 1280")
    A(f"s_add_u32 {sT2}, {sT1}, {L_XI}")
    A(f"v_add_u32 v45, {sT2}, v44")
    A(f"s_lshl_b32 {sT1}, {sT1}, 1")
    A(f"s_add_u32 {sT2}, {sT1}, {L_ST}")
    A(f"v_lshl_add_u32 v46, v44, 1, {sT2}")
    A(f"v_mov_b32 v47, {vXp1}")
    A(f"s_cmp_eq_u32 {sIt}, 0")
    A("s_cbranch_scc1 L_xg_have")
    A(f"s_sub_u32 {sT0}, {sIt}, 1")
    A(f"s_lshr_b32 {sT0}, {sT0}, 1")
    A(f"s_lshl_b32 {sT0}, {sT0}, 17")
    A(f"s_mul_i32 {sT1}, {sT3}, {ZB - YB}")
    A(f"s_sub_u32 {sT1}, {ZB}, {sT1}")
    A(f"s_add_u32 {sA1}, {sT0}, {sT1}")
    A(f"v_lshrrev_b32 v43, 6, v44")
    A(f"v_and_b32 v42, 63, v44")
    A(f"v_lshl_add_u32 v43, v43, 10, v42")
    stamp()
    A("L_ypoll:")
    if sl_y: A(f"s_sleep {sl_y}")
    for p in range(8):
        A(f"buffer_load_dword v{T+p}, v43, {srd('WS')}, {sA1} offen offset:{p*128} sc1")
    A("s_waitcnt vmcnt(0)")
    A(f"v_max3_u32 v40, v{T}, v{T+1}, v{T+2}")
    A(f"v_max3_u32 v41, v{T+3}, v{T+4}, v{T+5}")
    A(f"v_max3_u32 v40, v40, v{T+6}, v{T+7}")
    A("v_max_u32 v40, v40, v41")
    A("v_cmp_eq_u32 vcc, -1, v40")
    retry("L_ypoll", 0)
    mark("y1", 1); mark("z1", 2); mark("y2", 3); mark("end", 4)
    stamp()
    for p in range(8):
        A(f"v_lshlrev_b32 v{48+p}, 16, v{T+p}")
        A(f"v_and_b32 v{T+p}, {sHI}, v{T+p}")
    for (a, b) in [(0,1),(2,3),(4,5),(6,7),(0,2),(4,6),(0,4)]:
        A(f"v_add_f32 v{48+a}, v{48+a}, v{48+b}")
        A(f"v_add_f32 v{T+a}, v{T+a}, v{T+b}")
    A(f"v_add_f32 v48, v48, {vXp0}")
    A(f"v_add_f32 v{T}, v{T}, {vXp1}")
    A(f"v_cvt_pk_bf16_f32 v47, v48, v{T}")
    A(f"s_cmp_eq_u32 {sIt}, 4")
    A("s_cbranch_scc1 L_final")
    A("L_xg_have:")
    A("ds_write_b32 v45, v47")
    A(f"v_lshlrev_b32 {vXp0}, 16, v47")
    A(f"v_and_b32 {vXp1}, {sHI}, v47")
    A(f"v_add_f32 v42, {vXp0}, {vXp1}")
    A(f"v_mul_f32 v43, {vXp0}, {vXp0}")
    A(f"v_fmac_f32 v43, {vXp1}, {vXp1}")
    A("ds_write_b64 v46, v[42:43]")
    A("s_waitcnt lgkmcnt(0)")
    A("L_xg_bar:")
    A("s_barrier")
    A("s_branch L_xg_done")
    A("L_xg_m:")
    A(f"s_cmp_eq_u32 {sW}, 7")
    A("s_cbranch_scc1 L_xg_bar")
    A(f"s_cmp_lt_u32 {sJ}, 5")
    A(f"s_cselect_b32 {sT0}, {sT3}, 0")
    A(f"s_cmp_eq_u32 {sT0}, 1")
    A("s_cbranch_scc1 L_xg_bar")
    W = L0; XA = L0 + 40; D = 44; DC = 48; ONE = 52
    A(f"s_sub_u32 {sV_}, {sW}, 5")
    A(f"v_and_b32 v56, 32, {vLane}")
    A(f"v_and_b32 v57, 2, {vLane}")
    A(f"v_lshl_add_u32 v56, v57, 3, v56")
    A(f"v_add_u32 v56, v56, {vR0}")
    A(f"v_lshlrev_b32 v56, 5, v56")
    A(f"v_and_b32 v57, 1, {vLane}")
    A(f"s_add_u32 {sT0}, {sT3}, 3")
    A(f"v_lshlrev_b32 v57, {sT0}, v57")
    A(f"s_sub_u32 {sT0}, 4, {sT3}")
    A(f"s_lshl_b32 {sT0}, {sV_}, {sT0}")
    A(f"s_mul_i32 {sT1}, {sT3}, {L_W13 - L_WQ}")
    A(f"s_add_u32 {sT0}, {sT0}, {sT1}")
    A(f"v_add3_u32 v56, v56, v57, {sT0}")
    for u in range(5):
        for rp in range(4):
            hb, rho = rp >> 1, rp & 1
            A(f"ds_read_b64_tr_b16 {vr(W+8*u+2*rp,2)}, v56 offset:{L_WQ + (128*u+64*hb+2*rho)*32}")
    for r in range(4):
        A(f"v_mov_b32 v{D+r}, 0"); A(f"v_mov_b32 v{DC+r}, 0"); A(f"v_mov_b32 v{ONE+r}, 0x3f803f80")
    A(f"s_mul_i32 {sT1}, {sT3}, 1280")
    A(f"s_add_u32 {sT2}, {sT1}, {L_XI}")
    A(f"v_add_u32 v58, {sT2}, {vQ64}")
    A(f"s_lshl_b32 {sT1}, {sT1}, 1")
    A(f"s_add_u32 {sT2}, {sT1}, {L_ST}")
    A(f"v_lshl_add_u32 v59, {vLane}, 3, {sT2}")
    A(f"v_mov_b32 v61, {OOB}")
    A(f"s_cmp_eq_u32 {sT3}, 1")
    A("s_cbranch_scc1 L_xg_m_up")
    A(f"v_and_b32 v60, 2, {vLane}")
    A(f"v_lshlrev_b32 v60, 3, v60")
    A(f"v_and_b32 v57, 4, {vLane}")
    A(f"v_add_u32 v60, v60, v57")
    A(f"v_and_b32 v57, 0x39, {vLane}")
    A(f"s_lshl_b32 {sA1}, {sHead}, 8")
    A(f"s_and_b32 {sT0}, {sC}, 3"); A(f"s_lshl_b32 {sT0}, {sT0}, 6"); A(f"s_add_u32 {sA1}, {sA1}, {sT0}")
    A(f"s_lshr_b32 {sT0}, {sC}, 2"); A(f"s_lshl_b32 {sT0}, {sT0}, 5"); A(f"s_add_u32 {sA1}, {sA1}, {sT0}")
    A(f"s_add_u32 {sA1}, {sA1}, {QB}")
    A("s_branch L_xg_m_j")
    A("L_xg_m_up:")
    A(f"v_lshlrev_b32 v60, 1, {vLane}")
    A(f"v_and_b32 v57, 0x3d, {vLane}")
    A(f"s_lshl_b32 {sA1}, {sX}, 9")
    A(f"s_lshl_b32 {sT0}, {sJ}, 4"); A(f"s_add_u32 {sA1}, {sA1}, {sT0}")
    A(f"s_add_u32 {sA1}, {sA1}, {HB - 80}")
    A("L_xg_m_j:")
    A("v_cmp_eq_u32 vcc, 0, v57")
    A(f"s_lshl_b32 {sT0}, {sV_}, 3"); A(f"s_add_u32 {sA1}, {sA1}, {sT0}")
    A(f"s_add_u32 {sA1}, {sA1}, {sLay}")
    A("v_cndmask_b32 v60, v61, v60, vcc")
    A("s_waitcnt lgkmcnt(0)")
    for u in range(5):
        A(f"v_smfmac_f32_16x16x64_bf16 {vr(DC,4)}, {vr(ONE,4)}, {vr(W+8*u,8)}, {vIdx}")
    A(f"v_add_f32 v{DC}, v{DC}, v{DC+1}")
    A(f"v_add_f32 v{DC+2}, v{DC+2}, v{DC+3}")
    A(f"v_add_f32_dpp v{DC}, v{DC+2}, v{DC} row_shl:8 {DPPF}")
    stamp()
    A("s_barrier")
    stamp()
    for k in range(5): A(f"ds_read_b64 {vr(32+2*k,2)}, v59 offset:{512*k}")
    for u in range(5): A(f"ds_read_b128 {vr(XA+4*u,4)}, v58 offset:{256*u}")
    A("s_waitcnt lgkmcnt(5)" if not stamps else "s_waitcnt lgkmcnt(0)")
    A("v_pk_add_f32 v[32:33], v[32:33], v[34:35]")
    A("v_pk_add_f32 v[36:37], v[36:37], v[38:39]")
    A("v_pk_add_f32 v[32:33], v[32:33], v[40:41]")
    A("v_pk_add_f32 v[32:33], v[32:33], v[36:37]")
    steps = [f"quad_perm:[1,0,3,2] {DPPF}", f"quad_perm:[2,3,0,1] {DPPF}", f"row_half_mirror {DPPF}", f"row_mirror {DPPF}",
             "row_bcast:15 row_mask:0xa bank_mask:0xf", "row_bcast:31 row_mask:0xc bank_mask:0xf"]
    for i, st in enumerate(steps):
        if i < 5:
            A(f"s_waitcnt lgkmcnt({4-i})")
            A(f"v_smfmac_f32_16x16x64_bf16 {vr(D,4)}, {vr(XA+4*i,4)}, {vr(W+8*i,8)}, {vIdx}")
        A(f"v_add_f32_dpp v32, v32, v32 {st}")
        A(f"v_add_f32_dpp v33, v33, v33 {st}")
    A(f"v_mul_f32 v32, {1/640!r}, v32")
    A(f"v_mul_f32 v33, {1/640!r}, v33")
    A("v_fma_f32 v33, -v32, v32, v33")
    A("v_max_f32 v33, 0, v33")
    A("v_add_f32 v33, 1e-05, v33")
    A("v_rsq_f32 v33, v33")
    A(f"v_readlane_b32 {sT0}, v32, 63")
    A(f"v_add_f32 v{D}, v{D}, v{D+1}")
    A(f"v_add_f32 v{D+2}, v{D+2}, v{D+3}")
    A(f"v_readlane_b32 {sT1}, v33, 63")
    A(f"v_add_f32_dpp v{D}, v{D+2}, v{D} row_shl:8 {DPPF}")
    A(f"v_fma_f32 v{D}, -{sT0}, v{DC}, v{D}")
    A(f"v_mul_f32 v{D}, {sT1}, v{D}")
    A(f"s_cmp_eq_u32 {sT3}, 1")
    A("s_cbranch_scc1 L_xg_silu")
    A(f"v_mul_f32 v{D}, {math.log2(math.e)/math.sqrt(128)!r}, v{D}")
    A("s_branch L_xg_pub")
    A("L_xg_silu:")
    A(f"v_mul_f32 v34, {-math.log2(math.e)!r}, v{D}")
    A("v_exp_f32 v34, v34")
    A(f"v_mul_f32_dpp v{D}, v{D}, v{D} row_shl:4 {DPPF}")
    A("v_add_f32 v34, 1.0, v34")
    A("v_rcp_f32 v34, v34")
    A(f"v_mul_f32 v{D}, v{D}, v34")
    A("L_xg_pub:")
    A("s_nop 1")
    packpair("v35", f"v{D}", "v34")
    store_intra("L_xg_st", [f"buffer_store_dword v35, v60, {srd('WS')}, {sA1} offen"])
    stamp()
    A("L_xg_done:")
    A(f"s_cmp_eq_u32 {sT3}, 1")
    A("s_cbranch_scc1 L_down")

    A(f"s_lshl_b32 {sA1}, {sHead}, 8")
    A(f"s_add_u32 {sA1}, {sA1}, {QB}")
    A(f"s_add_u32 {sA1}, {sA1}, {sLay}")
    for Tt in range(4):
        for r in (0, 1, 6, 7): A(f"v_mov_b32 v{S0+8*Tt+r}, 0")
    def vload(j):
        A(f"buffer_load_dwordx4 {vr(L0+4*j,4)}, {vVoff}, {srd('V')}, {sKV if j < 8 else sT0} offen offset:{(j&7)*256} {nt}")
    def vperm(u):
        for q in range(4):
            a, b = L0 + 8*u + q, L0 + 8*u + 4 + q
            A(f"v_perm_b32 v{V0+8*(2*q)+u}, v{b}, v{a}, {sPL}")
            A(f"v_perm_b32 v{V0+8*(2*q+1)+u}, v{b}, v{a}, {sPH}")
    qload = f"buffer_load_dwordx4 {vr(vA,4)}, {vQ64}, {srd('WS')}, {sA1} offen sc1"
    A(f"s_cmp_eq_u32 {sIt}, 0")
    A("s_cbranch_scc0 L_qpoll0")
    A(f"s_add_u32 {sT0}, {sKV}, 8192")
    for j in range(8): vload(j)
    A(qload)
    for j in range(8, 16): vload(j)
    A("s_waitcnt vmcnt(8)")
    for u in range(4): vperm(u)
    stamp()
    A("s_branch L_qchk")
    A("L_qpoll0:")
    stamp()
    A("L_qpoll:")
    A(qload)
    A("s_waitcnt vmcnt(0)")
    A("L_qchk:")
    A(f"v_max3_u32 v14, v{vA}, v{vA+1}, v{vA+2}")
    A(f"v_max_u32 v14, v14, v{vA+3}")
    A("v_cmp_eq_u32 vcc, -1, v14")
    retry("L_qpoll", sl_q)
    stamp()
    def sadd(Tt):
        b = S0 + 8*Tt
        A(f"v_add_f32 v{b}, v{b}, v{b+1}")
        A(f"v_add_f32 v{b+6}, v{b+6}, v{b+7}")
    def ssel(Tt):
        b = S0 + 8*Tt
        A(f"v_add_f32_dpp v14, v{b}, v{b+6} quad_perm:[0,1,2,3] row_mask:{hex(1<<Tt)} bank_mask:0xf")
    for Tt in range(4):
        for kp in range(2):
            A(f"v_smfmac_f32_16x16x64_bf16 {vr(S0+8*Tt+4*kp,4)}, {vr(vA,4)}, {vr(K0+16*Tt+8*kp,8)}, {vIdx}")
            e = 2*Tt + kp
            A(f"v_mov_b32 v{L0+4*e}, 0"); A(f"v_mov_b32 v{L0+4*e+2}, 0")
    for Tt in range(4): sadd(Tt)
    for Tt in range(4): ssel(Tt)
    A(f"v_max_f32_dpp v16, v14, v14 {steps[0]}")
    for st in steps[1:]: A(f"v_max_f32_dpp v16, v16, v16 {st}")
    A(f"v_readlane_b32 {sM}, v16, 63")
    A(f"v_subrev_f32 v14, {sM}, v14")
    A("v_exp_f32 v14, v14")
    A(f"v_mov_b32_dpp v15, v14 quad_perm:[1,1,3,3] {DPPF}")
    A(f"v_cvt_pk_bf16_f32 v{vA}, v14, v15")
    A(f"v_add_f32_dpp v17, v14, v14 {steps[0]}")
    for q in range(1, 4): A(f"v_mov_b32_dpp v{vA+q}, v{vA} row_ror:{16-4*q} {DPPF}")
    A(f"s_cmp_eq_u32 {sIt}, 0")
    A("s_cbranch_scc0 L_pv")
    for u in range(4, 8):
        A(f"s_waitcnt vmcnt({14-2*u})")
        vperm(u)
    stamp()
    A("L_pv:")
    A("s_nop 0")
    for e in range(8):
        A(f"v_smfmac_f32_16x16x64_bf16 {vr(L0+4*e,4)}, {vr(vA,4)}, {vr(V0+8*e,8)}, {vIdx} abid:1")
        if e < 5: A(f"v_add_f32_dpp v17, v17, v17 {steps[e+1]}")
        if e == 5: A(f"ds_write_b64 {vML}, v[16:17]")
    A(f"s_lshl_b32 {sT0}, {sW}, 9")
    A(f"s_add_u32 {sT0}, {sT0}, {L_OP}")
    A(f"v_lshl_add_u32 v18, {vLane}, 5, {sT0}")
    for e in range(8): A(f"v_add_f32 v{S0+e}, v{L0+4*e}, v{L0+4*e+2}")
    A("s_mov_b64 exec, 0xffff")
    A(f"ds_write_b128 v18, {vr(S0,4)}")
    A(f"ds_write_b128 v18, {vr(S0+4,4)} offset:16")
    A("s_mov_b64 exec, -1")
    A(f"v_and_b32 v19, 7, {vLane}")
    A(f"v_lshlrev_b32 v20, 3, v19")
    A(f"v_add_u32 v20, {L_ML}, v20")
    A(f"v_lshlrev_b32 v21, 3, {vLane}")
    A(f"v_add_u32 v21, {L_OP}, v21")
    A("s_waitcnt lgkmcnt(0)")
    stamp()
    A("s_barrier")
    A(f"s_cmp_eq_u32 {sW}, 0")
    A("s_cbranch_scc0 L_wo")
    mark("att1", 0)
    A("ds_read_b64 v[16:17], v20")
    for w in range(8): A(f"ds_read_b64 {vr(40+2*w,2)}, v21 offset:{512*w}")
    A(f"v_lshrrev_b32 v22, 3, {vLane}")
    A(f"v_lshlrev_b32 v22, 8, v22")
    A(f"v_lshl_add_u32 v22, v19, 2, v22")
    A(f"s_lshl_b32 {sA1}, {sHead}, 11")
    A(f"s_lshl_b32 {sT0}, {sC}, 5"); A(f"s_add_u32 {sA1}, {sA1}, {sT0}")
    A(f"s_add_u32 {sA1}, {sA1}, {sLay}")
    A(f"s_lshl_b32 {sA2}, {sHead}, 5")
    A(f"s_lshl_b32 {sT0}, {sC}, 2"); A(f"s_add_u32 {sA2}, {sA2}, {sT0}")
    A(f"s_add_u32 {sA2}, {sA2}, {sLay}")
    A(f"v_mov_b32 v23, {OOB}")
    A(f"s_mov_b32 {sT0}, {AB}")
    A(f"v_writelane_b32 v23, {sT0}, 0")
    A("s_waitcnt lgkmcnt(8)" if not stamps else "s_waitcnt lgkmcnt(0)")
    A(f"v_max_f32_dpp v24, v16, v16 {steps[0]}")
    for st in steps[1:3]: A(f"v_max_f32_dpp v24, v24, v24 {st}")
    A("v_sub_f32 v16, v16, v24")
    A("v_exp_f32 v16, v16")
    A("v_mul_f32 v17, v16, v17")
    A("s_waitcnt lgkmcnt(0)")
    A(f"v_mul_f32_dpp v26, v16, v40 row_newbcast:0 {DPPF}")
    A(f"v_mul_f32_dpp v27, v16, v41 row_newbcast:0 {DPPF}")
    for w in range(1, 8):
        if w < 4: A(f"v_add_f32_dpp v17, v17, v17 {steps[w-1]}")
        if w == 4: A("v_rcp_f32 v25, v17")
        if w == 5: A("v_log_f32 v17, v17")
        A(f"v_fmac_f32_dpp v26, v16, v{40+2*w} row_newbcast:{w} {DPPF}")
        A(f"v_fmac_f32_dpp v27, v16, v{41+2*w} row_newbcast:{w} {DPPF}")
    A("v_mul_f32 v26, v26, v25")
    A("v_mul_f32 v27, v27, v25")
    A("v_add_f32 v17, v17, v24")
    A("v_cvt_pk_bf16_f32 v26, v26, v27")
    A("v_min_u32 v17, -2, v17")
    A("v_min_u32 v26, -2, v26")
    store_intra("L_att_st", [f"buffer_store_dword v26, v22, {srd('WS')}, {sA1} offen",
                             f"buffer_store_dword v17, v23, {srd('WS')}, {sA2} offen"])
    stamp()

    A("L_wo:")
    A(f"s_cmp_lt_u32 {sJ}, 20")
    A("s_cbranch_scc0 L_next")
    W = L0; D0 = 32; D1 = 36
    A(f"v_and_b32 v18, 32, {vLane}")
    A(f"v_lshrrev_b32 v18, 1, v18")
    A(f"v_add_u32 v18, v18, {vR0}")
    A(f"v_lshlrev_b32 v18, 6, v18")
    A(f"v_and_b32 v19, 3, {vLane}")
    A(f"v_lshl_add_u32 v18, v19, 3, v18")
    A(f"s_lshl_b32 {sT0}, {sW}, 12")
    A(f"s_add_u32 {sT0}, {sT0}, {L_WO}")
    A(f"v_add_u32 v18, {sT0}, v18")
    for cb in range(2):
        for rp in range(4):
            hb, rho = rp >> 1, rp & 1
            A(f"ds_read_b64_tr_b16 {vr(W+8*cb+2*rp,2)}, v18 offset:{32*cb + (32*hb+2*rho)*64}")
    for r in range(8): A(f"v_mov_b32 v{D0+r}, 0")
    A(f"v_lshlrev_b32 v19, 4, {vLane}")
    A(f"v_lshrrev_b32 v20, 3, {vLane}")
    A(f"v_and_b32 v20, 6, v20")
    A(f"v_add_u32 v20, v20, {vLane}")
    A(f"v_and_b32 v20, 7, v20")
    A(f"v_lshlrev_b32 v20, 2, v20")
    A(f"s_lshl_b32 {sA1}, {sX}, 13")
    A(f"s_lshl_b32 {sT0}, {sW}, 10"); A(f"s_add_u32 {sA1}, {sA1}, {sT0}")
    A(f"s_add_u32 {sA1}, {sA1}, {sLay}")
    A(f"s_lshl_b32 {sA2}, {sX}, 7")
    A(f"s_lshr_b32 {sT0}, {sW}, 1"); A(f"s_lshl_b32 {sT0}, {sT0}, 5"); A(f"s_add_u32 {sA2}, {sA2}, {sT0}")
    A(f"s_add_u32 {sA2}, {sA2}, {sLay}")
    A(f"s_add_u32 {sA2}, {sA2}, {AB}")
    A(f"s_lshl_b32 {sT0}, {sW}, 8")
    A(f"s_add_u32 {sT0}, {sT0}, {L_RED}")
    A(f"v_lshl_add_u32 v21, {vLane}, 2, {sT0}")
    A(f"v_and_b32 v22, 15, {vLane}")
    A(f"v_lshlrev_b32 v22, 1, v22")
    A(f"v_and_b32 v23, 32, {vLane}")
    A(f"v_add_u32 v22, v22, v23")
    A(f"v_and_b32 v23, 17, {vLane}")
    A("v_cmp_eq_u32 vcc, 0, v23")
    A(f"v_mov_b32 v23, {OOB}")
    A(f"s_lshl_b32 {sT2}, {sX}, 7")
    A("v_cndmask_b32 v22, v23, v22, vcc")
    A(f"s_lshl_b32 {sT0}, {sJ}, 10"); A(f"s_add_u32 {sT2}, {sT2}, {sT0}")
    A(f"s_add_u32 {sT2}, {sT2}, {sLay}")
    A(f"s_add_u32 {sT2}, {sT2}, {YB}")
    A("s_waitcnt lgkmcnt(0)")
    stamp()
    A("L_opoll:")
    A(f"buffer_load_dword v14, v20, {srd('WS')}, {sA2} offen sc1")
    A(f"buffer_load_dwordx4 {vr(vA,4)}, v19, {srd('WS')}, {sA1} offen sc1")
    A("s_waitcnt vmcnt(0)")
    A(f"v_max3_u32 v15, v{vA}, v{vA+1}, v{vA+2}")
    A(f"v_max3_u32 v15, v15, v{vA+3}, v14")
    A("v_cmp_eq_u32 vcc, -1, v15")
    retry("L_opoll", sl_o)
    stamp()
    A(f"v_smfmac_f32_16x16x64_bf16 {vr(D0,4)}, {vr(vA,4)}, {vr(W,8)}, {vIdx}")
    A(f"v_max_f32_dpp v24, v14, v14 {steps[0]}")
    A(f"v_smfmac_f32_16x16x64_bf16 {vr(D1,4)}, {vr(vA,4)}, {vr(W+8,8)}, {vIdx}")
    for st in steps[1:3]: A(f"v_max_f32_dpp v24, v24, v24 {st}")
    A("v_sub_f32 v14, v14, v24")
    A("v_exp_f32 v14, v14")
    for d in (D0, D1):
        A(f"v_add_f32 v{d}, v{d}, v{d+1}")
        A(f"v_add_f32 v{d+2}, v{d+2}, v{d+3}")
    A(f"v_add_f32_dpp v25, v14, v14 {steps[0]}")
    A(f"v_mul_f32_dpp v26, v14, v{D0} row_newbcast:0 {DPPF}")
    A(f"v_mul_f32_dpp v27, v14, v{D1} row_newbcast:0 {DPPF}")
    A(f"v_add_f32_dpp v25, v25, v25 {steps[1]}")
    A(f"v_fmac_f32_dpp v26, v14, v{D0+2} row_newbcast:1 {DPPF}")
    A(f"v_fmac_f32_dpp v27, v14, v{D1+2} row_newbcast:1 {DPPF}")
    A(f"v_add_f32_dpp v25, v25, v25 {steps[2]}")
    A("v_rcp_f32 v25, v25")
    A("v_permlane32_swap_b32 v26, v27")
    A("v_add_f32 v26, v26, v27")
    A("v_mul_f32 v26, v26, v25")
    A("ds_write_b32 v21, v26")
    A("s_waitcnt lgkmcnt(0)")
    A("s_barrier")
    A(f"s_cmp_eq_u32 {sW}, 0")
    A("s_cbranch_scc0 L_next")
    for w in range(8): A(f"ds_read_b32 v{40+w}, v21 offset:{256*w}")
    A("s_waitcnt lgkmcnt(0)")
    for (a, b) in [(0,1),(2,3),(4,5),(6,7),(0,2),(4,6),(0,4)]:
        A(f"v_add_f32 v{40+a}, v{40+a}, v{40+b}")
    A("v_mov_b32 v41, v40")
    A("v_permlane16_swap_b32 v40, v41")
    A("v_add_f32 v40, v40, v41")
    packpair("v42", "v40", "v41")
    A(f"buffer_store_dword v42, v22, {srd('WS')}, {sT2} offen sc1")
    stamp()
    A("L_next:")
    A(f"s_add_u32 {sIt}, {sIt}, 1")
    A("s_branch L_xg")

    A("L_down:")
    A(f"s_cmp_ge_u32 {sJ}, 12")
    A(f"s_cselect_b32 {sT0}, {sW}, 0")
    A(f"s_cmp_eq_u32 {sT0}, 7")
    A("s_cbranch_scc0 L_down_done")
    A1 = 16
    A(f"v_and_b32 v20, 32, {vLane}")
    A(f"v_add_u32 v20, v20, {vR0}")
    A(f"v_lshlrev_b32 v20, 6, v20")
    A(f"v_and_b32 v21, 3, {vLane}")
    A(f"v_lshl_add_u32 v20, v21, 3, v20")
    A(f"v_add_u32 v20, {L_W2}, v20")
    for cb in range(2):
        for u in range(2):
            for kp in range(2):
                for rp in range(4):
                    hb, rho = rp >> 1, rp & 1
                    A(f"ds_read_b64_tr_b16 {vr(W+32*cb+16*u+8*kp+2*rp,2)}, v20 offset:{32*cb+(128*u+64*hb+16*kp+2*rho)*64}")
    for r in range(16): A(f"v_mov_b32 v{D0+r}, 0")
    A(f"v_mov_b32 v23, {OOB}")
    A(f"v_cmp_gt_u32 vcc, 176, {vQ64}")
    A(f"s_lshl_b32 {sA1}, {sX}, 9")
    A(f"s_add_u32 {sA1}, {sA1}, {sLay}")
    A(f"v_cndmask_b32 v21, v23, {vQ64}, vcc")
    A(f"s_add_u32 {sA1}, {sA1}, {HB}")
    A(f"v_and_b32 v24, 0x21, {vLane}")
    A("v_cmp_eq_u32 vcc, 0, v24")
    A(f"v_lshlrev_b32 v22, 1, {vLane}")
    A(f"s_lshl_b32 {sT2}, {sX}, 7")
    A("v_cndmask_b32 v22, v23, v22, vcc")
    A(f"s_lshl_b32 {sT0}, {sJ}, 10"); A(f"s_add_u32 {sT2}, {sT2}, {sT0}")
    A(f"s_add_u32 {sT2}, {sT2}, {sLay}")
    A(f"s_add_u32 {sT2}, {sT2}, {ZB - 12*1024}")
    A("s_waitcnt lgkmcnt(0)")
    stamp()
    A("L_hpoll:")
    A(f"buffer_load_dwordx4 {vr(vA,4)}, {vQ64}, {srd('WS')}, {sA1} offen sc1")
    A(f"buffer_load_dwordx4 {vr(A1,4)}, v21, {srd('WS')}, {sA1} offen offset:256 sc1")
    A("s_waitcnt vmcnt(0)")
    A(f"v_max3_u32 v14, v{vA}, v{vA+1}, v{vA+2}")
    A(f"v_max3_u32 v15, v{A1}, v{A1+1}, v{A1+2}")
    A(f"v_max3_u32 v14, v14, v{vA+3}, v{A1+3}")
    A("v_max_u32 v14, v14, v15")
    A("v_cmp_eq_u32 vcc, -1, v14")
    retry("L_hpoll", sl_h)
    stamp()
    for cb in range(2):
        for u in range(2):
            for kp in range(2):
                A(f"v_smfmac_f32_16x16x64_bf16 {vr(D0+8*cb+4*kp,4)}, {vr(A1 if u else vA,4)}, {vr(W+32*cb+16*u+8*kp,8)}, {vIdx}")
    for cb in range(2):
        b_ = D0 + 8*cb
        A(f"v_add_f32 v{b_}, v{b_}, v{b_+1}")
        A(f"v_add_f32 v{b_+6}, v{b_+6}, v{b_+7}")
    A(f"v_add_f32 v14, v{D0}, v{D0+6}")
    A(f"v_add_f32_dpp v14, v{D0+8}, v{D0+14} quad_perm:[0,1,2,3] row_mask:0x2 bank_mask:0xf")
    packpair("v24", "v14", "v15")
    A(f"buffer_store_dword v24, v22, {srd('WS')}, {sT2} offen sc1")
    stamp()
    A("L_down_done:")
    A(f"s_add_u32 {sIt}, {sIt}, 1")
    A(f"s_mov_b32 {sLay}, {LSTRIDE}")
    A(f"s_cmp_eq_u32 {sIt}, 4")
    A("s_cbranch_scc0 L_xg")
    A(f"s_lshl_b32 {sT0}, {sW}, 3")
    A(f"s_cmp_eq_u32 {sT0}, s2")
    A("s_cbranch_scc0 L_end")
    A(f"s_cmp_lt_u32 {sW}, 5")
    A("s_cbranch_scc1 L_xg")
    A("s_branch L_end")
    A("L_final:")
    A(f"buffer_store_dword v47, v44, {srd('OUT')}, 0 offen")
    if amp:
        A("s_cmp_eq_u32 s2, 0"); A("s_cbranch_scc0 L_end")
        if amp == "slow":
            A(f"s_cmp_eq_u32 {sFast}, 0"); A("s_cselect_b32 s30, 1000, 0")
        else:
            A("s_sub_u32 s30, s30, s28")
        A("s_mul_i32 s30, s30, 10")
        A("s_memrealtime s[28:29]"); A("s_waitcnt lgkmcnt(0)")
        A("L_amp:")
        A("s_memrealtime s[32:33]"); A("s_waitcnt lgkmcnt(0)")
        A("s_sub_u32 s32, s32, s28")
        A("s_cmp_lt_u32 s32, s30")
        A("s_cbranch_scc1 L_amp")
    A("L_end:")
    if stamps:
        stamp()
        A(f"s_lshl_b32 {sT0}, s2, 3"); A(f"s_add_u32 {sT0}, {sT0}, {sW}"); A(f"s_lshl_b32 {sT0}, {sT0}, 8")
        A(f"s_add_u32 {sT0}, {sT0}, {WS_STAMP}")
        A(f"v_lshl_add_u32 v14, {vLane}, 2, {sT0}")
        A(f"global_store_dword v14, {vST}, s[{P(11)[0]}:{P(11)[1]}]")
    A("L_exit:")
    A("s_endpgm")

    ref = open("cdna_kernels/" + NAME + ".s.ref").read().split("\n")
    head = [l for l in ref if l.startswith(";") and "@launch" not in l and "Override launch" not in l and "grid=ceil" not in l]
    out = "\n".join(head) + f"\n; @launch grid=(256,1,1) block=(512,1,1) lds={LDS_BYTES}\n"
    out += f""".amdgcn_target "amdgcn-amd-amdhsa--gfx950"
.text
.globl {NAME}_kernel
.p2align 8
.type {NAME}_kernel,@function
{NAME}_kernel:
"""
    out += A.text()
    out += f""".section .rodata,"a"
.p2align 6
.amdhsa_kernel {NAME}_kernel
  .amdhsa_next_free_vgpr 256
  .amdhsa_next_free_sgpr 102
  .amdhsa_accum_offset 256
  .amdhsa_group_segment_fixed_size 0
  .amdhsa_kernarg_size 96
  .amdhsa_user_sgpr_count 2
  .amdhsa_user_sgpr_kernarg_segment_ptr 1
  .amdhsa_system_sgpr_workgroup_id_x 1
  .amdhsa_float_denorm_mode_32 3
.end_amdhsa_kernel
"""
    return out

if __name__ == "__main__":
    kw = {}
    dst = "cdna_kernels/" + NAME + ".s"
    for a in sys.argv[1:]:
        k, v = a.split("=", 1)
        if k == "out": dst = v
        else:
            try: kw[k] = int(v)
            except ValueError: kw[k] = v
    open(dst, "w").write(gen(**kw))
    print("wrote", dst)
```

```python
import sys, math
from asmlib import Asm

NAME = "interleave_layers__mha_block_cached__glu_gated_swiglu__decode"

LSTRIDE = 0x1a000
OB, YB, ZB, HB, AB = 0x0, 0x10000, 0x13000, 0x18000, 0x19000
QB1, QB0 = 0x34000, 0x40000
WS_COMM = 0x48000
WS_STAMP = 0x100000
OOB = 0x7f000000
L_WQ = 0; L_R1 = 20480; L_W2 = L_R1 + 65536
L_XI = L_W2 + 28672
L_ST = L_XI + 2560
L_ML = L_ST + 5120
L_OP = L_ML + 640
L_RED = L_OP + 4096
L_ZERO = L_RED + 2048
L_Q = L_ZERO + 64
L_FLAG = L_Q + 1024
LDS_BYTES = L_FLAG + 64
sX, sJ, sW, sHead, sC, sKV, sL, sLay, sFast, sTO, sT0, sT1, sT2, sT3, sPL, sPH, sSI = \
    ["s%d" % i for i in range(3, 20)]
sV_ = "s20"; sM = "s21"; sA1 = "s22"; sA2 = "s23"; sHI = "s24"; sRole = "s25"; sMode = "s34"; sNCH = "s35"
P = lambda i: (36 + 2*i, 37 + 2*i)
SRD = dict(K=60, V=64, WS=68, WQ=72, WO=76, W2=80, X=84, OUT=88, DBG=92, WP=96)
def srd(n): return f"s[{SRD[n]}:{SRD[n]+3}]"
vLane, vR0, vQ64, vIdx, vXp0, vXp1, vML, vST = ["v%d" % i for i in range(8)]
vA = 8
vKoff, vVoff = "v12", "v13"
vL16 = "v30"; vDum = "v31"
S0 = 32; K0 = 64; V0 = 128; L0 = 192
def vr(a, n): return f"v[{a}:{a+n-1}]" if n > 1 else f"v{a}"
DPPF = "row_mask:0xf bank_mask:0xf"
steps = [f"quad_perm:[1,0,3,2] {DPPF}", f"quad_perm:[2,3,0,1] {DPPF}", f"row_half_mirror {DPPF}", f"row_mirror {DPPF}",
         "row_bcast:15 row_mask:0xa bank_mask:0xf", "row_bcast:31 row_mask:0xc bank_mask:0xf"]
SMF = "v_smfmac_f32_16x16x64_bf16"

def gen(stamps=False, sl_q=0, sl_o=0, sl_y=1, sl_h=0, sl_t=4, d_y=0, d_z=0, force_slow=False, nt="nt", amp="",
        klin=1, npf13=2, prio=1, upbar=1, dbg='', pfl='nt', dfl='nt'):
    A = Asm()
    NPF = 2
    def mark(name, lay=None):
        if not amp or name not in amp.split(","): return
        r = 28 + 2*amp.split(",").index(name)
        if lay is not None:
            A(f"s_cmp_eq_u32 {sL}, {lay}"); A(f"s_cbranch_scc0 L_mark_{name}")
        A(f"s_memrealtime s[{r}:{r+1}]"); A("s_waitcnt lgkmcnt(0)")
        if lay is not None: A(f"L_mark_{name}:")
    def stamp(code):
        if not stamps: return
        if stamps == 2 and code not in (0, 10, 14, 63): return
        A("s_memrealtime s[100:101]")
        A("s_waitcnt lgkmcnt(0)")
        A(f"s_add_u32 m0, {sSI}, {code}")
        A(f"v_writelane_b32 {vST}, s100, m0")
    def lgk(n): A(f"s_waitcnt lgkmcnt({n})")
    def mksrd(n, ptr, size):
        b = SRD[n]; lo, hi = P(ptr)
        A(f"s_mov_b32 s{b}, s{lo}")
        A(f"s_and_b32 s{b+1}, s{hi}, 0xffff")
        A(f"s_mov_b32 s{b+2}, {size}")
        A(f"s_mov_b32 s{b+3}, 0x20000")
    def retry(label, sleep):
        A(f"s_cbranch_vccz {label}_ok")
        A(f"s_sub_u32 {sTO}, {sTO}, 1")
        if sleep: A(f"s_sleep {sleep}")
        A(f"s_cbranch_scc0 {label}")
        A("s_branch L_end")
        A(f"{label}_ok:")
    def store_intra(label, stores):
        A(f"s_cmp_eq_u32 {sFast}, 0")
        A(f"s_cbranch_scc1 {label}_slow")
        for s in stores: A(s)
        A(f"s_branch {label}_done")
        A(f"{label}_slow:")
        for s in stores: A(s + " sc1")
        A(f"{label}_done:")
    def packpair(dst, val, tmp):
        A(f"v_mov_b32_dpp {tmp}, {val} quad_perm:[1,1,3,3] {DPPF}")
        A(f"v_cvt_pk_bf16_f32 {dst}, {val}, {tmp}")
        A(f"v_min_u32 {dst}, -2, {dst}")
    def kload(T):
        if T: A(f"s_add_u32 {sT0}, {sKV}, {T*4096}")
        so = sT0 if T else sKV
        for t in range(4):
            A(f"buffer_load_dwordx4 {vr(K0+16*T+4*t,4)}, {vKoff}, {srd('K')}, {so} offen offset:{(256 if klin else 64)*t} {nt}")
    def vload(j0, j1):
        if j0 >= 8: A(f"s_add_u32 {sT0}, {sKV}, 8192")
        for j in range(j0, j1):
            A(f"buffer_load_dwordx4 {vr(L0+4*j,4)}, {vVoff}, {srd('V')}, {sKV if j < 8 else sT0} offen offset:{(j&7)*256} {nt}")
    def vperm(u):
        for q in range(4):
            a, b = L0 + 8*u + q, L0 + 8*u + 4 + q
            A(f"v_perm_b32 v{V0+8*(2*q)+u}, v{b}, v{a}, {sPL}")
            A(f"v_perm_b32 v{V0+8*(2*q+1)+u}, v{b}, v{a}, {sPH}")
    def setvcc(c):
        A(f"s_mov_b32 vcc_lo, {hex(c)}"); A(f"s_mov_b32 vcc_hi, {hex(c)}")
    def ktrans(T0):
        for (src, dst, d, perm, mb) in ((lambda T: K0+16*T, lambda T: S0+16*(T-T0), 1, "[1,0,3,2]", 0xaaaaaaaa),
                                        (lambda T: S0+16*(T-T0), lambda T: K0+16*T, 2, "[2,3,0,1]", 0xcccccccc)):
            for hi in (0, 1):
                setvcc(mb if hi else mb ^ 0xffffffff)
                for T in (T0, T0+1):
                    for i in range(4):
                        if bool(i & d) != bool(hi): continue
                        for r in range(4):
                            A(f"v_cndmask_b32_dpp v{dst(T)+4*i+r}, v{src(T)+4*(i^d)+r}, v{src(T)+4*i+r}, vcc quad_perm:{perm} {DPPF}")
    def qpub_off(dst, tmp, lane_n, v_is_lane):
        if klin:
            A(f"v_and_b32 {dst}, 8, {lane_n}"); A(f"v_lshlrev_b32 {dst}, 6, {dst}")
            A(f"v_and_b32 {tmp}, 2, {lane_n}"); A(f"v_lshl_add_u32 {dst}, {tmp}, 3, {dst}")
            A(f"v_and_b32 {tmp}, 4, {lane_n}"); A(f"v_add_u32 {dst}, {dst}, {tmp}")
            if v_is_lane:
                A(f"v_and_b32 {tmp}, 16, {lane_n}"); A(f"v_lshl_add_u32 {dst}, {tmp}, 1, {dst}")
                A(f"v_and_b32 {tmp}, 32, {lane_n}"); A(f"v_lshrrev_b32 {tmp}, 2, {tmp}"); A(f"v_add_u32 {dst}, {dst}, {tmp}")
        else:
            A(f"v_and_b32 {dst}, 2, {lane_n}"); A(f"v_lshlrev_b32 {dst}, 3, {dst}")
            A(f"v_and_b32 {tmp}, 12, {lane_n}"); A(f"v_add_u32 {dst}, {dst}, {tmp}")
            if v_is_lane:
                A(f"v_and_b32 {tmp}, 48, {lane_n}"); A(f"v_lshl_add_u32 {dst}, {tmp}, 4, {dst}")
    def qpub_cu(dst, tmp):
        A(f"s_lshl_b32 {dst}, {sHead}, 10")
        A(f"s_lshr_b32 {tmp}, {sC}, 1"); A(f"s_lshl_b32 {tmp}, {tmp}, 6"); A(f"s_add_u32 {dst}, {dst}, {tmp}")
        A(f"s_and_b32 {tmp}, {sC}, 1"); A(f"s_lshl_b32 {tmp}, {tmp}, {8 if klin else 5}"); A(f"s_add_u32 {dst}, {dst}, {tmp}")
    def stats_and_mfma(mf, nA):
        lgk(nA)
        A("v_pk_add_f32 v[32:33], v[32:33], v[34:35]")
        A("v_pk_add_f32 v[36:37], v[36:37], v[38:39]")
        A("v_pk_add_f32 v[32:33], v[32:33], v[40:41]")
        A("v_pk_add_f32 v[32:33], v[32:33], v[36:37]")
        for i, st in enumerate(steps):
            if i < nA:
                lgk(nA-1-i); mf(i)
            A(f"v_add_f32_dpp v32, v32, v32 {st}")
            A(f"v_add_f32_dpp v33, v33, v33 {st}")
        A(f"v_mul_f32 v32, {1/640!r}, v32")
        A(f"v_mul_f32 v33, {1/640!r}, v33")
        A("v_fma_f32 v33, -v32, v32, v33")
        A("v_max_f32 v33, 0, v33")
        A("v_add_f32 v33, 1e-05, v33")
        A("v_rsq_f32 v33, v33")
        A(f"v_readlane_b32 {sT0}, v32, 63")

    A("s_cmp_ge_u32 s2, 256")
    A("s_cbranch_scc1 L_exit")
    mark("start")
    A("s_load_dwordx16 s[36:51], s[0:1], 0")
    A("s_load_dwordx8 s[52:59], s[0:1], 64")
    if stamps:
        A(f"s_mov_b32 {sSI}, 0"); A(f"v_mov_b32 {vST}, 0")
        stamp(0)
    A("v_lshrrev_b32 v14, 6, v0")
    A(f"v_and_b32 {vLane}, 63, v0")
    A(f"v_readfirstlane_b32 {sW}, v14")
    A(f"s_and_b32 {sX}, s2, 7")
    A(f"s_lshr_b32 {sJ}, s2, 3")
    A(f"s_lshr_b32 {sT0}, {sJ}, 3")
    A(f"s_lshl_b32 {sHead}, {sX}, 2")
    A(f"s_add_u32 {sHead}, {sHead}, {sT0}")
    A(f"s_and_b32 {sC}, {sJ}, 7")
    A(f"s_lshl_b32 {sKV}, {sHead}, 20")
    A(f"s_lshl_b32 {sT0}, {sC}, 17")
    A(f"s_add_u32 {sKV}, {sKV}, {sT0}")
    A(f"s_lshl_b32 {sT0}, {sW}, 14")
    A(f"s_add_u32 {sKV}, {sKV}, {sT0}")
    A(f"v_and_b32 v14, 15, {vLane}")
    A(f"v_lshrrev_b32 v15, 4, {vLane}")
    A(f"v_and_b32 v20, 3, {vLane}")
    A(f"v_lshlrev_b32 {vQ64}, 6, v15")
    A(f"v_lshl_add_u32 {vQ64}, v20, 4, {vQ64}")
    if klin:
        A(f"v_and_b32 {vKoff}, 12, {vLane}")
        A(f"v_lshl_add_u32 {vKoff}, {vKoff}, 8, {vQ64}")
    else:
        A(f"v_lshlrev_b32 {vKoff}, 8, v14")
        A(f"v_lshl_add_u32 {vKoff}, v15, 4, {vKoff}")
    A(f"v_lshlrev_b32 {vVoff}, 11, v15")
    A(f"v_lshl_add_u32 {vVoff}, v14, 4, {vVoff}")
    A(f"v_lshlrev_b32 {vL16}, 4, {vLane}")
    A(f"v_lshrrev_b32 v18, 3, {vLane}")
    A(f"v_lshlrev_b32 v18, 13, v18")
    A(f"v_and_b32 v19, 0x70, {vL16}")
    A(f"v_add_u32 v18, v18, v19")
    A(f"s_lshl_b32 {sT0}, {sW}, 8")
    A(f"v_lshl_add_u32 v44, {vLane}, 2, {sT0}")
    A(f"s_lshr_b32 {sT1}, {sC}, 1")
    A(f"s_mul_i32 {sT1}, {sT1}, {160*8192}")
    A(f"s_lshl_b32 {sT2}, {sW}, 16")
    A(f"s_add_u32 {sT1}, {sT1}, {sT2}")
    A(f"s_lshl_b32 {sT2}, {sHead}, 8")
    A(f"s_add_u32 {sT1}, {sT1}, {sT2}")
    A(f"s_and_b32 {sT2}, {sC}, 1")
    A(f"s_lshl_b32 {sT2}, {sT2}, 7")
    A(f"s_add_u32 {sT1}, {sT1}, {sT2}")
    A(f"s_lshl_b32 {sT2}, {sW}, 10")
    if prio: A("s_setprio 3")
    A("s_waitcnt lgkmcnt(0)")
    mark("karg")
    mksrd("WS", 11, WS_COMM); mksrd("X", 0, 1280); mksrd("WQ", 3, 640*4096*2)
    mksrd("K", 1, 1 << 25); mksrd("V", 2, 1 << 25)
    A(f"s_cmp_eq_u32 {sW}, {99 if 'noclear' in dbg else 0}")
    A("s_cbranch_scc0 L_noclear")
    for r in range(24, 28): A(f"v_mov_b32 v{r}, -1")
    A(f"s_lshl_b32 {sT0}, s2, 10")
    A(f"buffer_store_dwordx4 v[24:27], {vL16}, {srd('WS')}, {sT0} offen sc1")
    qpub_off("v21", "v22", vLane, True)
    qpub_cu(sT0, sT3)
    A(f"s_add_u32 {sT0}, {sT0}, {QB0}")
    A(f"buffer_store_dword v24, v21, {srd('WS')}, {sT0} offen sc1")
    A("L_noclear:")
    A(f"buffer_load_dword v47, v44, {srd('X')}, 0 offen")
    for k in range(3):
        if k == 2:
            A(f"s_cmp_lt_u32 {sW}, 4"); A("s_cbranch_scc0 L_wq_done")
        A(f"s_add_u32 m0, {sT2}, {L_WQ + k*8192}")
        if k: A(f"s_add_u32 {sT1}, {sT1}, {8*65536}")
        A(f"buffer_load_dwordx4 v18, {srd('WQ')}, {sT1} offen {nt} lds")
    A("L_wq_done:")
    if prio: A("s_setprio 0")
    kload(0); vload(0, 4)
    mksrd("WO", 4, 4096*640*2); mksrd("W2", 8, 1728*640*2); mksrd("OUT", 9, 1280); mksrd("DBG", 10, 256)
    A(f"s_cmp_ge_u32 {sJ}, 20")
    A(f"s_cselect_b32 s{SRD['WP']}, s{P(7)[0]}, s{P(6)[0]}")
    A(f"s_cselect_b32 s{SRD['WP']+1}, s{P(7)[1]}, s{P(6)[1]}")
    A(f"s_and_b32 s{SRD['WP']+1}, s{SRD['WP']+1}, 0xffff")
    A(f"s_mov_b32 s{SRD['WP']+2}, {640*1728*2}")
    A(f"s_mov_b32 s{SRD['WP']+3}, 0x20000")
    A(f"s_mov_b32 {sTO}, 0x80000")
    A(f"s_mov_b32 {sL}, 0")
    A(f"s_mov_b32 {sLay}, 0")
    A(f"s_mov_b32 {sFast}, 0")
    A(f"s_mov_b32 {sPL}, 0x05040100")
    A(f"s_mov_b32 {sPH}, 0x07060302")
    A(f"s_mov_b32 {sHI}, 0xffff0000")
    A(f"s_cmp_eq_u32 {sX}, 7")
    A(f"s_cselect_b32 {sT0}, 20, 24")
    A(f"s_cselect_b32 {sNCH}, {4*16}, {12*16}")
    A(f"s_cmp_lt_u32 {sJ}, {sT0}")
    A(f"s_cselect_b32 {sRole}, 1, 2")
    A(f"s_cmp_lt_u32 {sJ}, 10")
    A(f"s_cselect_b32 {sRole}, 0, {sRole}")
    A(f"v_and_b32 {vR0}, 8, {vLane}")
    A(f"v_bfe_u32 v23, {vLane}, 4, 1")
    A(f"v_lshl_add_u32 {vR0}, v23, 2, {vR0}")
    A(f"v_bfe_u32 v23, {vLane}, 2, 1")
    A(f"v_add_u32 {vR0}, {vR0}, v23")
    A(f"v_and_b32 v17, 1, {vLane}")
    A(f"v_mul_u32_u24 {vIdx}, 0xaaaa, v17")
    A(f"v_bfe_u32 v23, {vLane}, 1, 1")
    A(f"v_mul_u32_u24 v23, 0xaaaa, v23")
    A(f"v_lshl_add_u32 {vIdx}, v23, 16, {vIdx}")
    A(f"v_add_u32 {vIdx}, 0x44444444, {vIdx}")
    A(f"v_lshlrev_b32 {vML}, 3, {vLane}")
    A(f"v_add_u32 {vML}, {L_ML+64}, {vML}")
    A(f"s_lshl_b32 {sT0}, {sW}, 3")
    A(f"s_add_u32 {sT0}, {sT0}, {L_ML}")
    A(f"v_writelane_b32 {vML}, {sT0}, 63")
    A(f"v_add_u32 v45, {L_XI}, v44")
    A(f"v_lshlrev_b32 v46, 1, v44")
    A(f"v_add_u32 v46, {L_ST}, v46")
    A(f"v_mov_b32 v22, 0")
    A(f"v_lshlrev_b32 v23, 2, v14")
    A(f"v_add_u32 v23, {L_ZERO}, v23")
    A("ds_write_b32 v23, v22")
    A(f"s_mov_b32 {sMode}, 0")
    A(f"v_mov_b32 v26, {OOB}")
    A(f"s_cmp_eq_u32 {sW}, 0")
    A("s_cbranch_scc0 L_noarr")
    A(f"s_getreg_b32 s26, hwreg(HW_REG_XCC_ID, 0, 4)")
    A(f"s_or_b32 s26, s26, 0x80")
    A("v_mov_b32 v22, s26")
    A(f"s_lshl_b32 {sT0}, {sX}, 5")
    A(f"s_add_u32 {sT0}, {sT0}, {sJ}")
    A(f"v_mov_b32 v21, {OOB}")
    A(f"v_writelane_b32 v21, {sT0}, 0")
    A(f"v_add_u32 v28, {L_Q}, {vL16}")
    A("v_mov_b32 v29, -1")
    A("ds_write_b32 v28, v29")
    if prio: A("s_setprio 3")
    A("s_waitcnt vmcnt(8)")
    A(f"buffer_store_byte v22, v21, {srd('DBG')}, 0 offen sc1")
    A("s_branch L_g_have")
    A("L_noarr:")
    A("s_waitcnt vmcnt(8)")
    stamp(1)
    A(f"s_cmp_lt_u32 {sW}, 5")
    A("s_cbranch_scc1 L_g_have")
    A("s_branch L_g_bar")

    T = S0
    A("L_g:")
    A(f"s_lshl_b32 {sT0}, {sW}, 8")
    A(f"v_lshl_add_u32 v44, {vLane}, 2, {sT0}")
    A(f"s_cmp_eq_u32 {sMode}, 0")
    A(f"s_cselect_b32 {sT0}, 6, 7")
    A(f"s_cselect_b32 {sT1}, 63, 127")
    A(f"s_cselect_b32 {sT2}, {(ZB - YB - LSTRIDE) & 0xffffffff}, 0")
    A(f"s_cselect_b32 {sT3}, 0, 1280")
    A(f"v_lshrrev_b32 v43, {sT0}, v44")
    A(f"v_and_b32 v42, {sT1}, v44")
    A(f"v_lshl_add_u32 v43, v43, 10, v42")
    A(f"s_add_u32 {sA1}, {sT2}, {sLay}")
    A(f"s_add_u32 {sA1}, {sA1}, {YB}")
    A(f"s_add_u32 {sT2}, {sT3}, {L_XI}")
    A(f"v_add_u32 v45, {sT2}, v44")
    A(f"s_lshl_b32 {sT3}, {sT3}, 1")
    A(f"s_add_u32 {sT2}, {sT3}, {L_ST}")
    A(f"v_lshl_add_u32 v46, v44, 1, {sT2}")
    A("L_ypoll:")
    for p in range(8):
        A(f"buffer_load_dword v{T+p}, v43, {srd('WS')}, {sA1} offen offset:{p*128} sc1")
    A("s_waitcnt vmcnt(0)")
    A(f"v_max3_u32 v40, v{T}, v{T+1}, v{T+2}")
    A(f"v_max3_u32 v41, v{T+3}, v{T+4}, v{T+5}")
    A(f"v_max3_u32 v40, v40, v{T+6}, v{T+7}")
    A("v_max_u32 v40, v40, v41")
    A("v_cmp_eq_u32 vcc, -1, v40")
    retry("L_ypoll", sl_y)
    if stamps:
        A(f"s_add_u32 {sSI}, {sSI}, {sMode}"); stamp(2); A(f"s_sub_u32 {sSI}, {sSI}, {sMode}")
    for p in range(8):
        A(f"v_lshlrev_b32 v{48+p}, 16, v{T+p}")
        A(f"v_and_b32 v{T+p}, {sHI}, v{T+p}")
    for (a, b) in [(0,1),(2,3),(4,5),(6,7),(0,2),(4,6),(0,4)]:
        A(f"v_add_f32 v{48+a}, v{48+a}, v{48+b}")
        A(f"v_add_f32 v{T+a}, v{T+a}, v{T+b}")
    A(f"v_add_f32 v48, v48, {vXp0}")
    A(f"v_add_f32 v{T}, v{T}, {vXp1}")
    A(f"v_cvt_pk_bf16_f32 v47, v48, v{T}")
    A(f"s_cmp_eq_u32 {sL}, 2")
    A("s_cbranch_scc1 L_final")
    A("L_g_have:")
    A("ds_write_b32 v45, v47")
    A(f"v_lshlrev_b32 {vXp0}, 16, v47")
    A(f"v_and_b32 {vXp1}, {sHI}, v47")
    A(f"v_add_f32 v42, {vXp0}, {vXp1}")
    A(f"v_mul_f32 v43, {vXp0}, {vXp0}")
    A(f"v_fmac_f32 v43, {vXp1}, {vXp1}")
    A("ds_write_b64 v46, v[42:43]")
    A(f"s_cmp_eq_u32 {sMode}, 2")
    A("s_cbranch_scc1 L_nextlayer")
    A("L_g_bar:")
    A("s_waitcnt lgkmcnt(0)")
    A("s_barrier")
    A(f"s_cmp_eq_u32 {sMode}, 1")
    A("s_cbranch_scc1 L_up_m")

    QW = L0 + 32; QD = L0 + 56; QC = L0 + 60; XA = 44; ONE = 56
    def q_prep():
        A(f"s_sub_u32 {sV_}, {sW}, 4")
        A(f"v_and_b32 v14, 32, {vLane}")
        A(f"v_lshrrev_b32 v14, 1, v14")
        A(f"v_add_u32 v14, v14, {vR0}")
        A(f"v_lshlrev_b32 v14, 7, v14")
        A(f"v_and_b32 v15, 3, {vLane}")
        A(f"v_lshl_add_u32 v14, v15, 3, v14")
        A(f"s_lshl_b32 {sT0}, {sV_}, 5")
        A(f"v_add_u32 v14, {sT0}, v14")
        for t in range(3):
            for rp in range(4):
                hb, rho = rp >> 1, rp & 1
                if t == 2 and hb: continue
                A(f"ds_read_b64_tr_b16 {vr(QW+8*t+2*rp,2)}, v14 offset:{L_WQ + (64*t+32*hb+2*rho)*128}")
        for r in range(4):
            A(f"v_mov_b32 v{QW+20+r}, 0"); A(f"v_mov_b32 v{QD+r}, 0"); A(f"v_mov_b32 v{QC+r}, 0"); A(f"v_mov_b32 v{ONE+r}, 0x3f803f80")
        A(f"v_and_b32 v16, 48, {vLane}")
        A(f"v_and_b32 v15, 1, {vLane}")
        A(f"v_lshlrev_b32 v16, 1, v16")
        A(f"v_lshl_add_u32 v16, v15, 4, v16")
        A(f"s_lshr_b32 {sT0}, {sC}, 1")
        A(f"s_mul_i32 {sT0}, {sT0}, 320")
        A(f"s_add_u32 {sT0}, {sT0}, {L_XI}")
        A(f"v_add_u32 v16, {sT0}, v16")
        A(f"v_add_u32 v17, 256, v16")
        A(f"v_mov_b32 v15, {L_ZERO}")
        A(f"v_cmp_gt_u32 vcc, 32, {vLane}")
        A(f"v_lshlrev_b32 v18, 3, {vLane}")
        A(f"v_add_u32 v18, {L_ST}, v18")
        A("v_cndmask_b32 v17, v15, v17, vcc")
        qpub_off("v19", "v15", vLane, False)
        A(f"v_and_b32 v15, 0x31, {vLane}")
        A("v_cmp_eq_u32 vcc, 0, v15")
        A(f"v_mov_b32 v15, {OOB}")
        qpub_cu(sA2, sT0)
        A("v_cndmask_b32 v19, v15, v19, vcc")
        if klin:
            A(f"s_and_b32 {sT0}, {sV_}, 1"); A(f"s_lshl_b32 {sT0}, {sT0}, 5"); A(f"s_add_u32 {sA2}, {sA2}, {sT0}")
            A(f"s_lshr_b32 {sT0}, {sV_}, 1"); A(f"s_lshl_b32 {sT0}, {sT0}, 3"); A(f"s_add_u32 {sA2}, {sA2}, {sT0}")
        else:
            A(f"s_lshl_b32 {sT0}, {sV_}, 8"); A(f"s_add_u32 {sA2}, {sA2}, {sT0}")
        lgk(0)
        for t in range(3): A(f"{SMF} {vr(QC,4)}, {vr(ONE,4)}, {vr(QW+8*t,8)}, {vIdx}")
        A(f"v_add_f32 v{QC}, v{QC}, v{QC+1}")
    A(f"s_cmp_ge_u32 {sW}, 4")
    A("s_cbranch_scc0 L_att")
    A(f"s_cmp_eq_u32 {sL}, 0")
    A("s_cbranch_scc0 L_q_go")
    if prio: A("s_setprio 3")
    q_prep()
    A(f"s_add_u32 {sA2}, {sA2}, {QB0}")
    A("L_q_go:")
    stamp(5)
    for k in range(5): A(f"ds_read_b64 {vr(32+2*k,2)}, v18 offset:{512*k}")
    A(f"ds_read_b128 {vr(XA,4)}, v16")
    A(f"ds_read_b128 {vr(XA+4,4)}, v16 offset:128")
    A(f"ds_read_b128 {vr(XA+8,4)}, v17")
    stats_and_mfma(lambda i: A(f"{SMF} {vr(QD,4)}, {vr(XA+4*i,4)}, {vr(QW+8*i,8)}, {vIdx}"), 3)
    A(f"v_mul_f32 v33, {math.log2(math.e)/math.sqrt(128)!r}, v33")
    A(f"v_add_f32 v{QD}, v{QD}, v{QD+1}")
    A(f"v_readlane_b32 {sT1}, v33, 63")
    A(f"v_fma_f32 v{QD}, -{sT0}, v{QC}, v{QD}")
    A(f"v_mul_f32 v{QD}, {sT1}, v{QD}")
    packpair("v35", f"v{QD}", "v34")
    store_intra("L_q_st", [f"buffer_store_dword v35, v19, {srd('WS')}, {sA2} offen"])
    stamp(6)

    A("L_att:")
    A(f"s_lshl_b32 {sA1}, {sHead}, 10")
    qload = f"buffer_load_dwordx4 {vr(vA,4)}, {vL16}, {srd('WS')}, {sA1} offen sc1"
    def zeroS():
        for Tt in range(4):
            for r in (0, 1, 6, 7): A(f"v_mov_b32 v{S0+8*Tt+r}, 0")
    A(f"s_cmp_eq_u32 {sL}, 0")
    A("s_cbranch_scc0 L_att1")
    A(f"s_add_u32 {sA1}, {sA1}, {QB0}")
    if prio: A("s_setprio 0")
    kload(1); vload(4, 8); kload(2); kload(3)
    A(f"v_lshlrev_b32 v25, 7, {vLane}")
    A(f"v_lshrrev_b32 v26, 2, {vLane}")
    A(f"v_mul_u32_u24 v26, 3456, v26")
    A(f"v_and_b32 v27, 3, {vLane}")
    A(f"v_lshl_add_u32 v26, v27, 7, v26")
    A(f"s_sub_u32 {sV_}, {sW}, 4")
    A(f"s_lshl_b32 {sT1}, {sV_}, 5")
    A(f"s_sub_u32 {sT2}, 31, {sJ}")
    A(f"s_add_u32 {sT1}, {sT1}, {sT2}")
    A(f"s_lshl_b32 {sT2}, {sT1}, 13")
    A(f"s_mul_i32 {sT3}, {sX}, {512*1280}")
    A(f"s_add_u32 {sT2}, {sT2}, {sT3}")
    A(f"s_cmp_lt_u32 {sT1}, {0 if 'nopf' in dbg else 80}")
    A(f"s_cselect_b32 {sT1}, {sT2}, {OOB}")
    A(f"s_sub_u32 {sA2}, {sJ}, 10")
    A(f"s_cmp_ge_u32 {sJ}, 20")
    A(f"s_cselect_b32 {sM}, 10, 0")
    A(f"s_sub_u32 {sM}, {sA2}, {sM}")
    A(f"s_cmp_lt_u32 {sM}, 10")
    A(f"s_mul_i32 {sM}, {sM}, {64*3456}")
    A(f"s_cselect_b32 {sA2}, {sM}, {OOB}")
    A(f"s_mul_i32 {sM}, {sX}, 7")
    A(f"s_lshr_b32 {sM}, {sM}, 1")
    A(f"s_lshl_b32 {sM}, {sM}, 7")
    A(f"s_add_u32 {sA2}, {sA2}, {sM}")
    A(f"v_add_u32 v26, {sA2}, v26")
    A(f"s_sub_u32 {sM}, 7, {sW}")
    A(f"s_mul_i32 {sA2}, {sM}, {16*3456}")
    A(f"s_cmp_lt_u32 {sM}, {npf13}")
    A(f"s_cselect_b32 {sA2}, {sA2}, {OOB}")
    vload(8, 16)
    A(f"buffer_load_dword {vDum}, v25, {srd('WO')}, {sT1} offen {pfl}")
    A(f"buffer_load_dword {vDum}, v26, {srd('WP')}, {sA2} offen {pfl}")
    stamp(7)
    A(f"v_add_u32 v28, {L_Q}, {vL16}")
    A(f"v_mov_b32 v29, {L_FLAG}")
    A(f"s_cmp_eq_u32 {sW}, {99 if 'noq' in dbg else 0}")
    A("s_cbranch_scc0 L_nostage")
    A(f"v_lshlrev_b32 v21, 2, {vLane}")
    A("s_mov_b32 s27, 0x80808080")
    A("L_go:")
    A(f"buffer_load_dword v24, v21, {srd('DBG')}, 0 offen sc1")
    A("s_waitcnt vmcnt(0)")
    A("v_and_b32 v14, s27, v24")
    A("v_cmp_ne_u32 vcc, s27, v14")
    retry("L_go", 32)
    stamp(19)
    A("s_mul_i32 s26, s26, 0x01010101")
    A("v_cmp_eq_u32 vcc, s26, v24")
    A(f"s_lshl_b32 {sT0}, {sX}, 3")
    A(f"s_lshr_b64 s[26:27], vcc, {sT0}")
    A(f"s_and_b32 {sT0}, s26, 0xff")
    A(f"s_cmp_eq_u32 {sT0}, 0xff")
    A(f"s_cselect_b32 {sT0}, {0 if force_slow else 1}, 0")
    A(f"v_mov_b32 v24, {sT0}")
    A("ds_write_b32 v29, v24")
    A("L_q0:")
    A(qload)
    A("s_waitcnt vmcnt(0)")
    A(f"v_max3_u32 v14, v{vA}, v{vA+1}, v{vA+2}")
    A(f"v_max_u32 v14, v14, v{vA+3}")
    A("v_cmp_eq_u32 vcc, -1, v14")
    retry("L_q0", 16)
    A(f"ds_write_b128 v28, {vr(vA,4)}")
    A("L_nostage:")
    A(f"s_waitcnt vmcnt({8+NPF})")
    if klin:
        ktrans(0); ktrans(2)
    for u in range(4): vperm(u)
    zeroS()
    A("L_ql:")
    A(f"ds_read_b128 {vr(vA,4)}, v28")
    A("ds_read_b32 v24, v29")
    lgk(0)
    A(f"v_cmp_eq_u32 vcc, -1, v{vA}")
    if 'noq' not in dbg: retry("L_ql", 4)
    A(f"v_readfirstlane_b32 {sFast}, v24")
    A("s_branch L_qpoll_ok")
    A("L_att1:")
    A(f"s_add_u32 {sA1}, {sA1}, {QB1}")
    zeroS()
    stamp(7)
    A("L_qpoll:")
    A(qload)
    A("s_waitcnt vmcnt(0)")
    A(f"v_max3_u32 v14, v{vA}, v{vA+1}, v{vA+2}")
    A(f"v_max_u32 v14, v14, v{vA+3}")
    A("v_cmp_eq_u32 vcc, -1, v14")
    retry("L_qpoll", sl_q)
    stamp(8)
    order = [0, 2, 1, 3]
    for idx, Tt in enumerate(order):
        for kp in range(2):
            A(f"{SMF} {vr(S0+8*Tt+4*kp,4)}, {vr(vA,4)}, {vr(K0+16*Tt+8*kp,8)}, {vIdx}")
            e = 2*idx + kp
            A(f"v_mov_b32 v{L0+4*e}, 0"); A(f"v_mov_b32 v{L0+4*e+2}, 0")
    def tsum(Tt):
        b = S0 + 8*Tt
        A(f"v_add_f32 v{b}, v{b}, v{b+1}")
        A(f"v_add_f32 v{b+6}, v{b+6}, v{b+7}")
        A(f"v_add_f32 v{b}, v{b}, v{b+6}")
    tsum(0); tsum(2); tsum(1)
    A(f"v_permlane32_swap_b32 v{S0}, v{S0+16}")
    tsum(3)
    A(f"v_add_f32 v{S0}, v{S0}, v{S0+16}")
    A(f"v_permlane32_swap_b32 v{S0+8}, v{S0+24}")
    A(f"v_add_f32 v{S0+8}, v{S0+8}, v{S0+24}")
    A(f"v_permlane16_swap_b32 v{S0}, v{S0+8}")
    A(f"v_add_f32 v14, v{S0}, v{S0+8}")
    A(f"v_max_f32_dpp v16, v14, v14 {steps[0]}")
    for st in steps[1:]: A(f"v_max_f32_dpp v16, v16, v16 {st}")
    A(f"v_readlane_b32 {sM}, v16, 63")
    A(f"v_subrev_f32 v14, {sM}, v14")
    A("v_exp_f32 v14, v14")
    A(f"v_mov_b32_dpp v15, v14 quad_perm:[1,1,3,3] {DPPF}")
    A(f"v_cvt_pk_bf16_f32 v{vA}, v14, v15")
    A(f"v_add_f32_dpp v17, v14, v14 {steps[0]}")
    for q in range(1, 4): A(f"v_mov_b32_dpp v{vA+q}, v{vA} row_ror:{16-4*q} {DPPF}")
    A(f"s_cmp_eq_u32 {sL}, 0")
    A("s_cbranch_scc0 L_pv")
    for u in range(4, 8):
        A(f"s_waitcnt vmcnt({14-2*u+NPF})")
        vperm(u)
    stamp(9)
    A("L_pv:")
    A("s_nop 0")
    for e in range(8):
        A(f"{SMF} {vr(L0+4*e,4)}, {vr(vA,4)}, {vr(V0+8*e,8)}, {vIdx} abid:1")
        if e < 5: A(f"v_add_f32_dpp v17, v17, v17 {steps[e+1]}")
        if e == 5: A(f"ds_write_b64 {vML}, v[16:17]")
    A(f"s_lshl_b32 {sT0}, {sW}, 9")
    A(f"s_add_u32 {sT0}, {sT0}, {L_OP}")
    A(f"v_lshl_add_u32 v18, {vLane}, 5, {sT0}")
    for e in range(8): A(f"v_add_f32 v{S0+e}, v{L0+4*e}, v{L0+4*e+2}")
    A("s_mov_b64 exec, 0xffff")
    A(f"ds_write_b128 v18, {vr(S0,4)}")
    A(f"ds_write_b128 v18, {vr(S0+4,4)} offset:16")
    A("s_mov_b64 exec, -1")
    A(f"v_and_b32 v19, 7, {vLane}")
    A(f"v_lshlrev_b32 v20, 3, v19")
    A(f"v_add_u32 v20, {L_ML}, v20")
    A(f"v_lshlrev_b32 v21, 3, {vLane}")
    A(f"v_add_u32 v21, {L_OP}, v21")
    A("s_waitcnt lgkmcnt(0)")
    stamp(10)
    A("s_barrier")
    mark("att1", 0)
    if 'stop' in dbg: A("s_branch L_end")
    A(f"s_cmp_eq_u32 {sW}, 0")
    A("s_cbranch_scc0 L_roles")
    A("ds_read_b64 v[16:17], v20")
    for w in range(8): A(f"ds_read_b64 {vr(40+2*w,2)}, v21 offset:{512*w}")
    A(f"v_lshrrev_b32 v22, 3, {vLane}")
    A(f"v_lshlrev_b32 v22, 8, v22")
    A(f"v_lshl_add_u32 v22, v19, 2, v22")
    A(f"s_lshl_b32 {sA1}, {sHead}, 11")
    A(f"s_lshl_b32 {sT0}, {sC}, 5"); A(f"s_add_u32 {sA1}, {sA1}, {sT0}")
    A(f"s_add_u32 {sA1}, {sA1}, {sLay}")
    A(f"s_lshl_b32 {sA2}, {sHead}, 5")
    A(f"s_lshl_b32 {sT0}, {sC}, 2"); A(f"s_add_u32 {sA2}, {sA2}, {sT0}")
    A(f"s_add_u32 {sA2}, {sA2}, {sLay}")
    A(f"v_mov_b32 v23, {OOB}")
    A(f"s_mov_b32 {sT0}, {AB}")
    A(f"v_writelane_b32 v23, {sT0}, 0")
    lgk(8)
    A(f"v_max_f32_dpp v24, v16, v16 {steps[0]}")
    for st in steps[1:3]: A(f"v_max_f32_dpp v24, v24, v24 {st}")
    A("v_sub_f32 v16, v16, v24")
    A("v_exp_f32 v16, v16")
    A("v_mul_f32 v17, v16, v17")
    lgk(0)
    A(f"v_mul_f32_dpp v28, v16, v40 row_newbcast:0 {DPPF}")
    A(f"v_mul_f32_dpp v29, v16, v41 row_newbcast:0 {DPPF}")
    for w in range(1, 8):
        if w < 4: A(f"v_add_f32_dpp v17, v17, v17 {steps[w-1]}")
        if w == 4: A("v_rcp_f32 v25, v17")
        if w == 5: A("v_log_f32 v17, v17")
        A(f"v_fmac_f32_dpp v28, v16, v{40+2*w} row_newbcast:{w} {DPPF}")
        A(f"v_fmac_f32_dpp v29, v16, v{41+2*w} row_newbcast:{w} {DPPF}")
    A("v_mul_f32 v28, v28, v25")
    A("v_mul_f32 v29, v29, v25")
    A("v_add_f32 v17, v17, v24")
    A("v_cvt_pk_bf16_f32 v28, v28, v29")
    A("v_min_u32 v17, -2, v17")
    A("v_min_u32 v28, -2, v28")
    store_intra("L_att_st", [f"buffer_store_dword v28, v22, {srd('WS')}, {sA1} offen",
                             f"buffer_store_dword v17, v23, {srd('WS')}, {sA2} offen"])
    stamp(11)
    if npf13 < 4:
        A(f"s_cmp_eq_u32 {sL}, 0")
        A("s_cbranch_scc0 L_roles")
        for k in range(npf13, 4):
            A(f"s_mov_b32 {sT0}, {k*16*3456}")
            A(f"buffer_load_dword {vDum}, v26, {srd('WP')}, {sT0} offen {pfl}")
    A("L_roles:")
    A(f"s_cmp_eq_u32 {sRole}, 1")
    A("s_cbranch_scc1 L_up")
    A(f"s_cmp_eq_u32 {sRole}, 2")
    A("s_cbranch_scc1 L_helper")

    W = L0; D0 = 32
    A(f"v_lshrrev_b32 v27, 3, {vLane}")
    A(f"v_mul_u32_u24 v27, 1280, v27")
    A(f"v_and_b32 v19, 0x70, {vL16}")
    A(f"v_add_u32 v27, v27, v19")
    A(f"s_cmp_eq_u32 {sL}, 0")
    A("s_cbranch_scc0 L_wo_have")
    A(f"s_lshl_b32 {sT0}, {sX}, 9")
    A(f"s_lshl_b32 {sT1}, {sW}, 6")
    A(f"s_add_u32 {sT0}, {sT0}, {sT1}")
    A(f"s_mul_i32 {sT0}, {sT0}, 1280")
    A(f"s_lshl_b32 {sT1}, {sJ}, 7")
    A(f"s_add_u32 {sT0}, {sT0}, {sT1}")
    A(f"s_lshl_b32 {sT3}, {sW}, 13")
    for k in range(8):
        A(f"s_add_u32 m0, {sT3}, {L_R1 + k*1024}")
        if k: A(f"s_add_u32 {sT0}, {sT0}, {8*1280}")
        A(f"buffer_load_dwordx4 v27, {srd('WO')}, {sT0} offen {dfl} lds")
    A("L_wo_have:")
    A(f"v_and_b32 v18, 32, {vLane}")
    A(f"v_lshrrev_b32 v18, 1, v18")
    A(f"v_add_u32 v18, v18, {vR0}")
    A(f"v_lshlrev_b32 v18, 7, v18")
    A(f"v_and_b32 v19, 3, {vLane}")
    A(f"v_lshl_add_u32 v18, v19, 3, v18")
    A(f"s_lshl_b32 {sT0}, {sW}, 13")
    A(f"s_add_u32 {sT0}, {sT0}, {L_R1}")
    A(f"v_add_u32 v18, {sT0}, v18")
    for r in range(16): A(f"v_mov_b32 v{D0+r}, 0")
    A(f"v_lshrrev_b32 v20, 3, {vLane}")
    A(f"v_and_b32 v20, 6, v20")
    A(f"v_add_u32 v20, v20, {vLane}")
    A(f"v_and_b32 v20, 7, v20")
    A(f"v_lshlrev_b32 v20, 2, v20")
    A(f"s_lshl_b32 {sA1}, {sX}, 13")
    A(f"s_lshl_b32 {sT0}, {sW}, 10"); A(f"s_add_u32 {sA1}, {sA1}, {sT0}")
    A(f"s_add_u32 {sA1}, {sA1}, {sLay}")
    A(f"s_lshl_b32 {sA2}, {sX}, 7")
    A(f"s_lshr_b32 {sT0}, {sW}, 1"); A(f"s_lshl_b32 {sT0}, {sT0}, 5"); A(f"s_add_u32 {sA2}, {sA2}, {sT0}")
    A(f"s_add_u32 {sA2}, {sA2}, {sLay}")
    A(f"s_add_u32 {sA2}, {sA2}, {AB}")
    A(f"s_lshl_b32 {sT0}, {sW}, 8")
    A(f"s_add_u32 {sT0}, {sT0}, {L_RED}")
    A(f"v_lshl_add_u32 v21, {vLane}, 2, {sT0}")
    A(f"v_and_b32 v23, 1, {vLane}")
    A("v_cmp_eq_u32 vcc, 0, v23")
    A(f"v_lshlrev_b32 v22, 1, {vLane}")
    A(f"v_mov_b32 v23, {OOB}")
    A(f"s_lshl_b32 {sT2}, {sX}, 7")
    A("v_cndmask_b32 v22, v23, v22, vcc")
    A(f"s_lshl_b32 {sT0}, {sJ}, 10"); A(f"s_add_u32 {sT2}, {sT2}, {sT0}")
    A(f"s_add_u32 {sT2}, {sT2}, {sLay}")
    A(f"s_add_u32 {sT2}, {sT2}, {YB}")
    opoll = [f"buffer_load_dword v14, v20, {srd('WS')}, {sA2} offen sc1",
             f"buffer_load_dwordx4 {vr(vA,4)}, {vL16}, {srd('WS')}, {sA1} offen sc1"]
    for s in opoll: A(s)
    A("s_waitcnt vmcnt(2)")
    stamp(12)
    for cb in range(4):
        for rp in range(4):
            hb, rho = rp >> 1, rp & 1
            A(f"ds_read_b64_tr_b16 {vr(W+8*cb+2*rp,2)}, v18 offset:{32*cb + (32*hb+2*rho)*128}")
    A("s_branch L_ochk")
    A("L_opoll:")
    for s in opoll: A(s)
    A("L_ochk:")
    A("s_waitcnt vmcnt(0)")
    A(f"v_max3_u32 v15, v{vA}, v{vA+1}, v{vA+2}")
    A(f"v_max3_u32 v15, v15, v{vA+3}, v14")
    A("v_cmp_eq_u32 vcc, -1, v15")
    retry("L_opoll", sl_o)
    stamp(13)
    lgk(0)
    cbo = [0, 2, 1, 3]
    for i, cb in enumerate(cbo):
        A(f"{SMF} {vr(D0+4*cb,4)}, {vr(vA,4)}, {vr(W+8*cb,8)}, {vIdx}")
        if i == 0: A(f"v_max_f32_dpp v24, v14, v14 {steps[0]}")
        elif i < 3: A(f"v_max_f32_dpp v24, v24, v24 {steps[i]}")
    A("v_sub_f32 v14, v14, v24")
    A("v_exp_f32 v14, v14")
    for i, cb in enumerate(cbo):
        d = D0 + 4*cb
        A(f"v_add_f32 v{d}, v{d}, v{d+1}")
        A(f"v_add_f32 v{d+2}, v{d+2}, v{d+3}")
        if i == 0: A(f"v_add_f32_dpp v25, v14, v14 {steps[0]}")
        elif i < 3: A(f"v_add_f32_dpp v25, v25, v25 {steps[i]}")
    A("v_rcp_f32 v25, v25")
    for cb in cbo: A(f"v_mul_f32_dpp v{D0+4*cb}, v14, v{D0+4*cb} row_newbcast:0 {DPPF}")
    for cb in cbo: A(f"v_fmac_f32_dpp v{D0+4*cb}, v14, v{D0+4*cb+2} row_newbcast:1 {DPPF}")
    A(f"v_permlane32_swap_b32 v{D0}, v{D0+8}")
    A(f"v_permlane32_swap_b32 v{D0+4}, v{D0+12}")
    A(f"v_add_f32 v{D0}, v{D0}, v{D0+8}")
    A(f"v_add_f32 v{D0+4}, v{D0+4}, v{D0+12}")
    A(f"v_permlane16_swap_b32 v{D0}, v{D0+4}")
    A(f"v_add_f32 v{D0}, v{D0}, v{D0+4}")
    A(f"v_mul_f32 v{D0}, v{D0}, v25")
    A(f"ds_write_b32 v21, v{D0}")
    lgk(0)
    A("s_barrier")
    A(f"s_cmp_eq_u32 {sW}, 0")
    A("s_cbranch_scc0 L_wo_done")
    for w in range(8): A(f"ds_read_b32 v{40+w}, v21 offset:{256*w}")
    lgk(0)
    for (a, b) in [(0,1),(2,3),(4,5),(6,7),(0,2),(4,6),(0,4)]:
        A(f"v_add_f32 v{40+a}, v{40+a}, v{40+b}")
    packpair("v42", "v40", "v41")
    A(f"buffer_store_dword v42, v22, {srd('WS')}, {sT2} offen sc1")
    stamp(14)
    A("L_wo_done:")
    A(f"s_cmp_eq_u32 {sL}, 0")
    A("s_cbranch_scc0 L_w2_have")
    A("s_barrier")
    A(f"s_mul_i32 {sT0}, {sX}, 224")
    A(f"s_lshl_b32 {sT1}, {sW}, 3")
    A(f"s_add_u32 {sT0}, {sT0}, {sT1}")
    A(f"s_mul_i32 {sT0}, {sT0}, 1280")
    A(f"s_lshl_b32 {sT1}, {sJ}, 7")
    A(f"s_add_u32 {sT0}, {sT0}, {sT1}")
    A(f"s_lshl_b32 {sT3}, {sW}, 10")
    for k in range(4):
        if k == 3:
            A(f"s_cmp_lt_u32 {sW}, 4"); A("s_cbranch_scc0 L_w2_iss")
        A(f"s_add_u32 m0, {sT3}, {L_W2 + k*8192}")
        if k: A(f"s_add_u32 {sT0}, {sT0}, {64*1280}")
        A(f"buffer_load_dwordx4 v27, {srd('W2')}, {sT0} offen {nt} lds")
    A("L_w2_iss:")
    A("s_waitcnt vmcnt(0)")
    A("s_barrier")
    A("L_w2_have:")
    A(f"s_sub_u32 {sV_}, {sW}, 5")
    A(f"s_cmp_lt_u32 {sV_}, 2")
    A("s_cbranch_scc0 L_barB")
    A1 = 16
    A(f"v_lshlrev_b32 v21, 7, {vR0}")
    A(f"v_and_b32 v20, 3, {vLane}")
    A(f"v_lshl_add_u32 v21, v20, 3, v21")
    A(f"s_lshl_b32 {sT0}, {sV_}, 6")
    A(f"s_add_u32 {sT0}, {sT0}, {L_W2}")
    A(f"v_add_u32 v21, {sT0}, v21")
    A(f"v_and_b32 v20, 32, {vLane}")
    A(f"v_lshl_add_u32 v20, v20, 7, v21")
    for cb in range(2):
        for u in range(2):
            for kp in range(2):
                for rp in range(4):
                    hb, rho = rp >> 1, rp & 1
                    A(f"ds_read_b64_tr_b16 {vr(W+32*cb+16*u+8*kp+2*rp,2)}, {'v21' if (u and hb) else 'v20'} offset:{32*cb+(128*u+64*hb+16*kp+2*rho)*128}")
    for r in range(16): A(f"v_mov_b32 v{D0+r}, 0")
    A(f"v_mov_b32 v23, {OOB}")
    A(f"v_cmp_gt_u32 vcc, {sNCH}, {vQ64}")
    A(f"s_lshl_b32 {sA1}, {sX}, 9")
    A(f"s_add_u32 {sA1}, {sA1}, {sLay}")
    A(f"v_cndmask_b32 v25, v23, {vQ64}, vcc")
    A(f"s_add_u32 {sA1}, {sA1}, {HB}")
    A(f"v_and_b32 v24, 0x21, {vLane}")
    A("v_cmp_eq_u32 vcc, 0, v24")
    A(f"v_lshlrev_b32 v22, 1, {vLane}")
    A(f"s_lshl_b32 {sT2}, {sX}, 7")
    A("v_cndmask_b32 v22, v23, v22, vcc")
    A(f"s_lshl_b32 {sT0}, {sJ}, 1"); A(f"s_add_u32 {sT0}, {sT0}, {sV_}"); A(f"s_lshl_b32 {sT0}, {sT0}, 10")
    A(f"s_add_u32 {sT2}, {sT2}, {sT0}")
    A(f"s_add_u32 {sT2}, {sT2}, {sLay}")
    A(f"s_add_u32 {sT2}, {sT2}, {ZB}")
    lgk(0)
    stamp(15)
    A("L_hpoll:")
    A(f"buffer_load_dwordx4 {vr(vA,4)}, {vQ64}, {srd('WS')}, {sA1} offen sc1")
    A(f"buffer_load_dwordx4 {vr(A1,4)}, v25, {srd('WS')}, {sA1} offen offset:256 sc1")
    A("s_waitcnt vmcnt(0)")
    A(f"v_max3_u32 v14, v{vA}, v{vA+1}, v{vA+2}")
    A(f"v_max3_u32 v15, v{A1}, v{A1+1}, v{A1+2}")
    A(f"v_max3_u32 v14, v14, v{vA+3}, v{A1+3}")
    A("v_max_u32 v14, v14, v15")
    A("v_cmp_eq_u32 vcc, -1, v14")
    retry("L_hpoll", sl_h)
    stamp(16)
    for cb in range(2):
        for u in range(2):
            for kp in range(2):
                A(f"{SMF} {vr(D0+8*cb+4*kp,4)}, {vr(A1 if u else vA,4)}, {vr(W+32*cb+16*u+8*kp,8)}, {vIdx}")
    for cb in range(2):
        b_ = D0 + 8*cb
        A(f"v_add_f32 v{b_}, v{b_}, v{b_+1}")
        A(f"v_add_f32 v{b_+6}, v{b_+6}, v{b_+7}")
    A(f"v_add_f32 v14, v{D0}, v{D0+6}")
    A(f"v_add_f32_dpp v14, v{D0+8}, v{D0+14} quad_perm:[0,1,2,3] row_mask:0x2 bank_mask:0xf")
    packpair("v24", "v14", "v15")
    A(f"buffer_store_dword v24, v22, {srd('WS')}, {sT2} offen sc1")
    stamp(17)
    A("s_branch L_barB")

    A("L_up:")
    UW = L0; UA = L0 + 40; UD = 56; UC = 60
    A(f"s_cmp_eq_u32 {sL}, 0")
    A("s_cbranch_scc0 L_w13_have")
    A(f"s_mul_i32 {sT0}, {sX}, {14*32}")
    A(f"s_lshl_b32 {sT1}, {sJ}, 5")
    A(f"s_add_u32 {sT0}, {sT0}, {sT1}")
    A(f"s_sub_u32 {sT0}, {sT0}, 320")
    A(f"s_mul_i32 {sT1}, {sW}, {16*3456}")
    A(f"s_add_u32 {sT0}, {sT0}, {sT1}")
    A(f"v_lshrrev_b32 v21, 2, {vLane}")
    A("v_mul_u32_u24 v21, 3456, v21")
    A(f"v_and_b32 v20, 16, {vL16}")
    A(f"v_add3_u32 v21, {sT0}, v21, v20")
    A(f"v_and_b32 v20, 2, {vLane}")
    A("v_cmp_eq_u32 vcc, 0, v20")
    A(f"v_mov_b32 v22, s{P(7)[0]}"); A(f"v_mov_b32 v23, s{P(7)[1]}")
    A(f"v_mov_b32 v24, s{P(6)[0]}"); A(f"v_mov_b32 v25, s{P(6)[1]}")
    A("v_cndmask_b32 v22, v22, v24, vcc"); A("v_cndmask_b32 v23, v23, v25, vcc")
    A("v_add_co_u32 v22, vcc, v22, v21"); A("v_addc_co_u32 v23, vcc, 0, v23, vcc")
    A(f"s_lshl_b32 {sT2}, {sW}, 10")
    if upbar: A("s_barrier")
    for k in range(5):
        if k:
            A(f"v_add_co_u32 v22, vcc, {8*16*3456}, v22"); A("v_addc_co_u32 v23, vcc, 0, v23, vcc")
        A(f"s_add_u32 m0, {sT2}, {L_R1 + k*8192}")
        A(f"global_load_lds_dwordx4 v[22:23], off {dfl}")
    A("s_waitcnt vmcnt(0)")
    A("s_barrier")
    A("L_w13_have:")
    stamp(12)
    A(f"s_mov_b32 {sMode}, 1")
    A(f"s_cmp_ge_u32 {sW}, 4")
    A("s_cbranch_scc0 L_up_g")
    A(f"s_sub_u32 {sV_}, {sW}, 4")
    A(f"v_and_b32 v14, 32, {vLane}")
    A(f"v_and_b32 v15, 2, {vLane}")
    A(f"v_lshl_add_u32 v14, v15, 3, v14")
    A(f"v_add_u32 v14, v14, {vR0}")
    A(f"v_lshlrev_b32 v14, 6, v14")
    A(f"v_and_b32 v15, 1, {vLane}")
    A(f"v_lshl_add_u32 v14, v15, 5, v14")
    A(f"s_lshl_b32 {sT0}, {sV_}, 3")
    A(f"s_add_u32 {sT1}, {sT0}, {L_R1}")
    A(f"v_add_u32 v14, {sT1}, v14")
    for u in range(5):
        for rp in range(4):
            hb, rho = rp >> 1, rp & 1
            A(f"ds_read_b64_tr_b16 {vr(UW+8*u+2*rp,2)}, v14 offset:{(128*u+64*hb+2*rho)*64}")
    for r in range(4):
        A(f"v_mov_b32 v{UD+r}, 0"); A(f"v_mov_b32 v{UC+r}, 0"); A(f"v_mov_b32 v{UA+r}, 0x3f803f80")
    A(f"v_add_u32 v16, {L_XI+1280}, {vQ64}")
    A(f"v_lshlrev_b32 v18, 3, {vLane}")
    A(f"v_add_u32 v18, {L_ST+2560}, v18")
    A(f"v_and_b32 v15, 0x3d, {vLane}")
    A("v_cmp_eq_u32 vcc, 0, v15")
    A(f"v_lshlrev_b32 v19, 1, {vLane}")
    A(f"v_mov_b32 v15, {OOB}")
    A(f"s_lshl_b32 {sA2}, {sX}, 9")
    A("v_cndmask_b32 v19, v15, v19, vcc")
    A(f"s_add_u32 {sA2}, {sA2}, {sT0}")
    A(f"s_lshl_b32 {sT0}, {sJ}, 5"); A(f"s_add_u32 {sA2}, {sA2}, {sT0}")
    A(f"s_add_u32 {sA2}, {sA2}, {HB - 320}")
    A(f"s_add_u32 {sA2}, {sA2}, {sLay}")
    lgk(0)
    for u in range(5): A(f"{SMF} {vr(UC,4)}, {vr(UA,4)}, {vr(UW+8*u,8)}, {vIdx}")
    A(f"v_add_f32 v{UC}, v{UC}, v{UC+1}")
    A(f"v_add_f32 v{UC+2}, v{UC+2}, v{UC+3}")
    A(f"v_add_f32_dpp v{UC}, v{UC+2}, v{UC} row_shl:8 {DPPF}")
    A(f"s_cmp_eq_u32 {sW}, 4")
    A("s_cbranch_scc0 L_g_bar")
    A("L_up_g:")
    if d_y:
        A(f"s_cmp_eq_u32 {sL}, 0"); A("s_cbranch_scc1 L_g"); A(f"s_sleep {d_y}")
    A("s_branch L_g")
    A("L_up_m:")
    A(f"s_cmp_ge_u32 {sW}, 4")
    A("s_cbranch_scc0 L_timer")
    stamp(13)
    for k in range(5): A(f"ds_read_b64 {vr(32+2*k,2)}, v18 offset:{512*k}")
    for u in range(5): A(f"ds_read_b128 {vr(UA+4*u,4)}, v16 offset:{256*u}")
    stats_and_mfma(lambda i: A(f"{SMF} {vr(UD,4)}, {vr(UA+4*i,4)}, {vr(UW+8*i,8)}, {vIdx}"), 5)
    A(f"v_add_f32 v{UD}, v{UD}, v{UD+1}")
    A(f"v_add_f32 v{UD+2}, v{UD+2}, v{UD+3}")
    A(f"v_readlane_b32 {sT1}, v33, 63")
    A(f"v_add_f32_dpp v{UD}, v{UD+2}, v{UD} row_shl:8 {DPPF}")
    A(f"v_fma_f32 v{UD}, -{sT0}, v{UC}, v{UD}")
    A(f"v_mul_f32 v{UD}, {sT1}, v{UD}")
    A(f"v_mul_f32 v34, {-math.log2(math.e)!r}, v{UD}")
    A("v_exp_f32 v34, v34")
    A(f"v_mul_f32_dpp v{UD}, v{UD}, v{UD} row_shl:4 {DPPF}")
    A("v_add_f32 v34, 1.0, v34")
    A("v_rcp_f32 v34, v34")
    A(f"v_mul_f32 v{UD}, v{UD}, v34")
    packpair("v35", f"v{UD}", "v34")
    store_intra("L_h_st", [f"buffer_store_dword v35, v19, {srd('WS')}, {sA2} offen"])
    stamp(14)
    A("s_branch L_barB")

    A("L_helper:")
    A(f"s_cmp_eq_u32 {sL}, 0")
    A("s_cbranch_scc1 L_timer")
    A(f"s_add_u32 {sT0}, {sW}, 24")
    A(f"s_lshl_b32 {sT0}, {sT0}, 3")
    A(f"s_cmp_eq_u32 {sT0}, s2")
    A("s_cbranch_scc0 L_end")
    A(f"s_cmp_lt_u32 {sW}, 5")
    A("s_cbranch_scc0 L_end")
    A("s_branch L_timer_go")
    A("L_timer:")
    A(f"s_cmp_eq_u32 {sW}, 0")
    A("s_cbranch_scc0 L_barB")
    A(f"s_cmp_eq_u32 {sL}, 0")
    A("s_cbranch_scc0 L_end")
    A("L_timer_go:")
    A(f"v_lshlrev_b32 v20, 3, {vLane}")
    A(f"s_add_u32 {sT0}, {sNCH}, 256")
    A(f"v_cmp_gt_u32 vcc, {sT0}, v20")
    A(f"v_mov_b32 v23, {OOB}")
    A(f"s_lshl_b32 {sA1}, {sX}, 9")
    A(f"s_add_u32 {sA1}, {sA1}, {sLay}")
    A("v_cndmask_b32 v20, v23, v20, vcc")
    A(f"s_add_u32 {sA1}, {sA1}, {HB}")
    A("L_tpoll:")
    A(f"buffer_load_dwordx2 v[14:15], v20, {srd('WS')}, {sA1} offen sc1")
    A("s_waitcnt vmcnt(0)")
    A("v_max_u32 v14, v14, v15")
    A("v_cmp_eq_u32 vcc, -1, v14")
    retry("L_tpoll", sl_t)
    A("L_barB:")
    A(f"s_cmp_eq_u32 {sL}, 0")
    A("s_cbranch_scc1 L_barB_go")
    A(f"s_cmp_eq_u32 {sRole}, 2")
    A("s_cbranch_scc0 L_end")
    A("L_barB_go:")
    A("s_barrier")
    stamp(18)
    mark("h1", 0)
    A(f"s_cmp_eq_u32 {sRole}, 1")
    A("s_cbranch_scc1 L_next_up")
    A(f"s_mov_b32 {sMode}, 2")
    A(f"s_cmp_lt_u32 {sW}, 5")
    A("s_cbranch_scc1 L_g")
    A("s_branch L_nextlayer")
    A("L_next_up:")
    if d_z: A(f"s_sleep {d_z}")
    A("L_nextlayer:")
    A(f"s_add_u32 {sL}, {sL}, 1")
    A(f"s_add_u32 {sLay}, {sLay}, {LSTRIDE}")
    if stamps: A(f"s_add_u32 {sSI}, {sSI}, 20")
    A(f"s_mov_b32 {sMode}, 0")
    A(f"s_cmp_ge_u32 {sW}, 4")
    A("s_cbranch_scc0 L_g")
    A(f"s_cmp_eq_u32 {sL}, 2")
    A("s_cbranch_scc1 L_g")
    q_prep()
    A(f"s_add_u32 {sA2}, {sA2}, {QB1}")
    A(f"s_cmp_eq_u32 {sW}, 4")
    A("s_cbranch_scc1 L_g")
    A("s_branch L_g_bar")

    A("L_final:")
    mark("end")
    A(f"buffer_store_dword v47, v44, {srd('OUT')}, 0 offen")
    if amp:
        A("s_cmp_eq_u32 s2, 192"); A("s_cbranch_scc0 L_end")
        if amp == "slow":
            A(f"s_cmp_eq_u32 {sFast}, 0"); A("s_cselect_b32 s30, 1000, 0")
        else:
            A("s_sub_u32 s30, s30, s28")
        A("s_mul_i32 s30, s30, 10")
        A("s_memrealtime s[28:29]"); A("s_waitcnt lgkmcnt(0)")
        A("L_amp:")
        A("s_memrealtime s[32:33]"); A("s_waitcnt lgkmcnt(0)")
        A("s_sub_u32 s32, s32, s28")
        A("s_cmp_lt_u32 s32, s30")
        A("s_cbranch_scc1 L_amp")
    A("L_end:")
    if stamps:
        A(f"s_mov_b32 {sSI}, 0"); stamp(63)
        A(f"s_lshl_b32 {sT0}, s2, 3"); A(f"s_add_u32 {sT0}, {sT0}, {sW}"); A(f"s_lshl_b32 {sT0}, {sT0}, 8")
        A(f"s_add_u32 {sT0}, {sT0}, {WS_STAMP}")
        A(f"v_lshl_add_u32 v14, {vLane}, 2, {sT0}")
        A(f"global_store_dword v14, {vST}, s[{P(11)[0]}:{P(11)[1]}]")
    A("L_exit:")
    A("s_endpgm")

    ref = open("cdna_kernels/" + NAME + ".s.ref").read().split("\n")
    head = [l for l in ref if l.startswith(";") and "@launch" not in l and "Override launch" not in l and "grid=ceil" not in l]
    out = "\n".join(head) + f"\n; @launch grid=(256,1,1) block=(512,1,1) lds={LDS_BYTES}\n"
    out += f""".amdgcn_target "amdgcn-amd-amdhsa--gfx950"
.text
.globl {NAME}_kernel
.p2align 8
.type {NAME}_kernel,@function
{NAME}_kernel:
"""
    out += A.text()
    out += f""".section .rodata,"a"
.p2align 6
.amdhsa_kernel {NAME}_kernel
  .amdhsa_next_free_vgpr 256
  .amdhsa_next_free_sgpr 102
  .amdhsa_accum_offset 256
  .amdhsa_group_segment_fixed_size 0
  .amdhsa_kernarg_size 96
  .amdhsa_user_sgpr_count 2
  .amdhsa_user_sgpr_kernarg_segment_ptr 1
  .amdhsa_system_sgpr_workgroup_id_x 1
  .amdhsa_float_denorm_mode_32 3
.end_amdhsa_kernel
"""
    return out

if __name__ == "__main__":
    kw = {}
    dst = "cdna_kernels/" + NAME + ".s"
    for a in sys.argv[1:]:
        k, v = a.split("=", 1)
        if k == "out": dst = v
        else:
            try: kw[k] = int(v)
            except ValueError: kw[k] = v
    open(dst, "w").write(gen(**kw))
    print("wrote", dst)
```

```python
import sys, math
from asmlib import Asm

NAME = "interleave_layers__mha_block_cached__glu_gated_swiglu__decode"

LSTRIDE = 0x1b400
OB, YB, ZB, XB, HB, AB = 0x0, 0x10000, 0x12800, 0x17800, 0x1a000, 0x1b000
QB1, QB0 = 0x38000, 0x40000
WS_COMM = 0x48000
WS_STAMP = 0x100000
OOB = 0x7f000000
L_RED = 0
L_XI = 2048
L_ST = L_XI + 2560
L_ML = L_ST + 5120
L_OP = L_ML + 640
L_ZERO = L_OP + 4096
L_Q = L_ZERO + 64
L_FLAG = L_Q + 1024
L_ONE = L_FLAG + 64
L_WQ = 17408
assert L_ONE + 1280 <= L_WQ
L_R1 = L_WQ + 20480
L_W2 = L_R1 + 65536
LDS_BYTES = L_W2 + 28672
sX, sJ, sW, sHead, sC, sKV, sL, sLay, sFast, sTO, sT0, sT1, sT2, sT3, sPL, sPH, sSI = \
    ["s%d" % i for i in range(3, 20)]
sV_ = "s20"; sM = "s21"; sA1 = "s22"; sA2 = "s23"; sHI = "s24"; sRole = "s25"; sMode = "s46"; sNCH = "s47"
sO1, sO2, sP1, sP2, sY = "s36", "s37", "s38", "s39", "s40"
P = lambda i: (36 + 2*i, 37 + 2*i)
SRD = dict(K=60, V=64, WS=68, WQ=72, WO=76, W2=80, X=84, OUT=88, WP=92)
def srd(n): return f"s[{SRD[n]}:{SRD[n]+3}]"
vLane, vR0, vQ64, vIdx, vXp, vD4, vML, vST = ["v%d" % i for i in range(8)]
vA = 8
vKoff, vVoff = "v12", "v13"
v8L = "v12"
vOPw, vMLr, vOpub, vAoff, vYoff = "v18", "v19", "v24", "v27", "v13"
vL16 = "v30"; vDum = "v31"
S0 = 32; K0 = 64; V0 = 128; L0 = 192
def vr(a, n): return f"v[{a}:{a+n-1}]" if n > 1 else f"v{a}"
DPPF = "row_mask:0xf bank_mask:0xf"
steps = [f"quad_perm:[1,0,3,2] {DPPF}", f"quad_perm:[2,3,0,1] {DPPF}", f"row_half_mirror {DPPF}", f"row_mirror {DPPF}",
         "row_bcast:15 row_mask:0xa bank_mask:0xf", "row_bcast:31 row_mask:0xc bank_mask:0xf"]
SMF = "v_smfmac_f32_16x16x64_bf16"
LOG2E = math.log2(math.e)

def gen(stamps=0, cyc=(), amp="", dbg="", force_slow=False, nt="nt", pfl="", dfl="",
        sl_q=0, sl_o=0, sl_y=0, sl_h=0, sl_x=2, d_y=22, d_z=10, d_f=0, pd=2, gap=1, npf13=2, gopos=12, rot=1, warm=1,
        prio=1, xlate=1, qbar=1, d_q=0, pdq=2, gapq=2, lateprio=0, pdo=1):
    A = Asm()
    def mark(name, lay=None):
        if not amp or name not in amp.split(","): return
        r = (100, 0)[amp.split(",").index(name)]
        if lay is not None:
            A(f"s_cmp_eq_u32 {sL}, {lay}"); A(f"s_cbranch_scc0 L_mark_{name}")
        A(f"s_memrealtime s[{r}:{r+1}]"); A("s_waitcnt lgkmcnt(0)")
        if lay is not None: A(f"L_mark_{name}:")
    def stamp(code, fine=False):
        if not stamps: return
        if stamps == 2 and code not in (0, 10, 14, 63): return
        if stamps == 3 and code not in cyc: return
        if fine and stamps != 3: return
        A("s_memtime s[100:101]" if stamps == 3 else "s_memrealtime s[100:101]")
        A("s_waitcnt lgkmcnt(0)")
        A(f"s_add_u32 m0, {sSI}, {code}")
        A(f"v_writelane_b32 {vST}, s100, m0")
    def lgk(n): A(f"s_waitcnt lgkmcnt({n})")
    def vmc(n): A(f"s_waitcnt vmcnt({n})")
    def setprio(n):
        if prio: A(f"s_setprio {n}")
    def mksrd(n, ptr, size):
        b = SRD[n]; lo, hi = P(ptr)
        A(f"s_mov_b32 s{b}, s{lo}")
        A(f"s_and_b32 s{b+1}, s{hi}, 0xffff")
        A(f"s_mov_b32 s{b+2}, {size}")
        A(f"s_mov_b32 s{b+3}, 0x20000")
    def retry(label, sleep):
        A(f"s_cbranch_vccz {label}_ok")
        A(f"s_sub_u32 {sTO}, {sTO}, 1")
        if sleep: A(f"s_sleep {sleep}")
        A(f"s_cbranch_scc0 {label}")
        A("s_branch L_end")
        A(f"{label}_ok:")
    def missing(regs):
        regs = list(regs)
        if len(regs) == 1:
            A(f"v_cmp_eq_u32 vcc, -1, {regs[0]}"); return
        t = ["v28", "v29"]; k = 0; cur = []
        while len(regs) >= 3 and k < 2:
            A(f"v_max3_u32 {t[k]}, {regs[0]}, {regs[1]}, {regs[2]}"); regs = regs[3:]; cur.append(t[k]); k += 1
        regs = cur + regs
        while len(regs) > 1:
            if len(regs) >= 3:
                A(f"v_max3_u32 v28, {regs[0]}, {regs[-1]}, {regs[-2]}"); regs = ["v28"] + regs[1:-2]
            else:
                A(f"v_max_u32 v28, {regs[0]}, {regs[1]}"); regs = ["v28"]
        A("v_cmp_eq_u32 vcc, -1, v28")
    def poll(label, loads, regs, sleep, first_issued=False, depth=None):
        depth = pd if depth is None else depth
        n = len(loads)
        for k in range(1 if first_issued else 0, depth - 1):
            for l in loads: A(l)
            if gap: A(f"s_sleep {gap}")
        if first_issued and depth == 1: A(f"s_branch {label}_chk")
        A(f"{label}:")
        for l in loads: A(l)
        A(f"{label}_chk:")
        vmc(n*(depth-1))
        missing(regs)
        retry(label, sleep)
    tails = []
    def store_intra(label, stores, scc_ready=False):
        if not scc_ready: A(f"s_cmp_eq_u32 {sFast}, 0")
        A(f"s_cbranch_scc1 {label}_slow")
        for s in stores: A(s)
        A(f"{label}_done:")
        tails.append([f"{label}_slow:"] + [s + " sc1" if s.startswith("buffer") else s for s in stores] + [f"s_branch {label}_done"])
    def packpair(dst, val, tmp, fill=""):
        A(fill)
        A(f"v_mov_b32_dpp {tmp}, {val} quad_perm:[1,1,3,3] {DPPF}")
        A(f"v_cvt_pk_bf16_f32 {dst}, {val}, {tmp}")
        A(f"v_min_u32 {dst}, -2, {dst}")
    def kload(T):
        if T: A(f"s_add_u32 {sT0}, {sKV}, {T*4096}")
        so = sT0 if T else sKV
        for t in range(4):
            A(f"buffer_load_dwordx4 {vr(K0+16*T+4*t,4)}, {vKoff}, {srd('K')}, {so} offen offset:{64*t} {nt}")
    def vload(j0, j1):
        if j0 == 8: A(f"s_add_u32 {sT0}, {sKV}, 8192")
        for j in range(j0, j1):
            A(f"buffer_load_dwordx4 {vr(L0+4*j,4)}, {vVoff}, {srd('V')}, {sKV if j < 8 else sT0} offen offset:{(j&7)*256} {nt}")
    def vperm(u):
        for q in range(4):
            a, b = L0 + 8*u + q, L0 + 8*u + 4 + q
            A(f"v_perm_b32 v{V0+8*(2*q)+u}, v{b}, v{a}, {sPL}")
            A(f"v_perm_b32 v{V0+8*(2*q+1)+u}, v{b}, v{a}, {sPH}")
    def dma128(dst, rowbytes, par):
        A(f"v_lshrrev_b32 {dst}, 3, {vLane}")
        A(f"v_mul_u32_u24 {dst}, {rowbytes}, {dst}")
        A(f"v_and_b32 v28, 0x70, {vL16}")
        A(f"v_and_b32 v29, 32, {vLane}")
        A(f"v_xor_b32 v28, v28, v29")
        if par is not None:
            A(f"s_and_b32 {sT0}, {par}, 1"); A(f"s_lshl_b32 {sT0}, {sT0}, 6")
            A(f"v_xor_b32 v28, {sT0}, v28")
        A(f"v_add_u32 {dst}, {dst}, v28")
    def tr128(dst, b5rows):
        A(f"v_lshlrev_b32 {dst}, 7, {vR0}")
        A(f"v_and_b32 v28, 12, {vR0}")
        A(f"v_lshl_add_u32 {dst}, v28, 3, {dst}")
        A(f"v_and_b32 v28, 3, {vLane}")
        A(f"v_lshl_add_u32 {dst}, v28, 3, {dst}")
        if b5rows:
            A(f"v_and_b32 v28, 32, {vLane}")
            A(f"v_lshl_add_u32 {dst}, v28, {int(math.log2(b5rows*128//32))}, {dst}")
    def qpub_off(dst, tmp, v_is_lane):
        A(f"v_and_b32 {dst}, 2, {vLane}"); A(f"v_lshlrev_b32 {dst}, 3, {dst}")
        A(f"v_and_b32 {tmp}, 12, {vLane}"); A(f"v_add_u32 {dst}, {dst}, {tmp}")
        if v_is_lane:
            A(f"v_and_b32 {tmp}, 48, {vLane}"); A(f"v_lshl_add_u32 {dst}, {tmp}, 4, {dst}")
    def qpub_cu(dst, tmp):
        A(f"s_lshl_b32 {dst}, {sHead}, 10")
        A(f"s_lshl_b32 {tmp}, {sC}, 5"); A(f"s_add_u32 {dst}, {dst}, {tmp}")
    def warm_o(w):
        A(f"s_lshl_b32 {sT0}, {sX}, 13")
        A(f"s_add_u32 {sT0}, {sT0}, {sLay}")
        A(f"s_lshl_b32 {sT2}, {sX}, 7")
        A(f"s_add_u32 {sT2}, {sT2}, {sLay}")
        A(f"s_add_u32 {sT2}, {sT2}, {AB}")
        A(f"s_cmp_lt_u32 {sJ}, 2")
        A(f"s_cselect_b32 {sT3}, {sW}, 99")
        A(f"s_cmp_eq_u32 {sT3}, {w}")
        A(f"s_cselect_b32 {sT0}, {sT0}, {OOB}")
        A(f"s_cselect_b32 {sT2}, {sT2}, {OOB}")
        A(f"v_lshlrev_b32 v28, 7, {vLane}")
        A(f"buffer_load_dword {vDum}, v28, {srd('WS')}, {sT0} offen sc1")
        A(f"buffer_load_dword {vDum}, off, {srd('WS')}, {sT2} sc1")
    def stats_and_mfma(mf, nA, fill):
        A("v_mov_b32 v42, 1e-05")
        A(f"s_cmp_eq_u32 {sFast}, 0")
        lgk(nA+1)
        A("v_pk_add_f32 v[32:33], v[32:33], v[34:35]")
        A("v_pk_add_f32 v[36:37], v[36:37], v[38:39]")
        lgk(nA)
        A("v_pk_add_f32 v[32:33], v[32:33], v[40:41]")
        A("v_pk_add_f32 v[32:33], v[32:33], v[36:37]")
        for i, st in enumerate(steps):
            if i < nA:
                lgk(nA-1-i); mf(i)
            A(f"v_add_f32_dpp v32, v32, v32 {st}")
            A(f"v_add_f32_dpp v33, v33, v33 {st}")
        tail = [f"v_mul_f32 v32, {1/640!r}, v32", f"v_fmamk_f32 v33, v33, {1/640!r}, v42", "v_fma_f32 v33, -v32, v32, v33",
                "v_max_f32 v33, v42, v33", "v_rsq_f32 v33, v33", f"v_readlane_b32 {sT0}, v32, 63"]
        fill = list(fill)
        for t in tail:
            A(t)
            if fill: A(fill.pop(0))
        for f in fill: A(f)

    A("s_cmp_ge_u32 s2, 256")
    A("s_cbranch_scc1 L_exit")
    mark("start")
    A("s_load_dwordx16 s[36:51], s[0:1], 0")
    A("s_load_dwordx8 s[52:59], s[0:1], 64")
    if stamps:
        A(f"s_mov_b32 {sSI}, 0"); A(f"v_mov_b32 {vST}, 0")
        stamp(0)
    A("v_lshrrev_b32 v14, 6, v0")
    A(f"v_lshlrev_b32 {vD4}, 2, v0")
    A(f"v_and_b32 {vLane}, 63, v0")
    A(f"v_readfirstlane_b32 {sW}, v14")
    A(f"s_and_b32 {sX}, s2, 7")
    A(f"s_lshr_b32 {sJ}, s2, 3")
    A(f"s_lshr_b32 {sT0}, {sJ}, 3")
    A(f"s_lshl_b32 {sHead}, {sX}, 2")
    A(f"s_add_u32 {sHead}, {sHead}, {sT0}")
    A(f"s_and_b32 {sC}, {sJ}, 7")
    A(f"s_lshl_b32 {sKV}, {sHead}, 20")
    A(f"s_lshl_b32 {sT0}, {sC}, 17")
    A(f"s_add_u32 {sKV}, {sKV}, {sT0}")
    A(f"s_lshl_b32 {sT0}, {sW}, 14")
    A(f"s_add_u32 {sKV}, {sKV}, {sT0}")
    A(f"v_and_b32 v14, 15, {vLane}")
    A(f"v_lshrrev_b32 v15, 4, {vLane}")
    A(f"v_lshlrev_b32 {vKoff}, 8, v14")
    A(f"v_lshl_add_u32 {vKoff}, v15, 4, {vKoff}")
    A(f"v_lshlrev_b32 {vVoff}, 11, v15")
    A(f"v_lshl_add_u32 {vVoff}, v14, 4, {vVoff}")
    A(f"v_lshlrev_b32 {vL16}, 4, {vLane}")
    dma128("v18", 8192, sW)
    A(f"s_lshr_b32 {sT1}, {sC}, 1")
    A(f"s_mul_i32 {sT1}, {sT1}, {160*8192}")
    A(f"s_lshl_b32 {sT2}, {sW}, 16")
    A(f"s_add_u32 {sT1}, {sT1}, {sT2}")
    A(f"s_lshl_b32 {sT2}, {sHead}, 8")
    A(f"s_add_u32 {sT1}, {sT1}, {sT2}")
    A(f"s_and_b32 {sT2}, {sC}, 1")
    A(f"s_lshl_b32 {sT2}, {sT2}, 7")
    A(f"s_add_u32 {sT1}, {sT1}, {sT2}")
    A(f"s_lshl_b32 {sT2}, {sW}, 10")
    setprio(3)
    lgk(0)
    mark("karg")
    mksrd("WS", 11, WS_COMM); mksrd("X", 0, 1280); mksrd("WQ", 3, 640*4096*2)
    mksrd("K", 1, 1 << 25); mksrd("V", 2, 1 << 25)
    A(f"s_cmp_eq_u32 {sW}, {99 if 'noclear' in dbg else 0}")
    A("s_cbranch_scc0 L_noclear")
    for r in range(24, 28): A(f"v_mov_b32 v{r}, -1")
    A(f"s_lshl_b32 {sT0}, s2, 10")
    A(f"buffer_store_dwordx4 v[24:27], {vL16}, {srd('WS')}, {sT0} offen sc1")
    qpub_off("v21", "v22", True)
    qpub_cu(sT0, sT3)
    A(f"s_add_u32 {sT0}, {sT0}, {QB0}")
    A(f"buffer_store_dword v24, v21, {srd('WS')}, {sT0} offen sc1")
    A("L_noclear:")
    A(f"buffer_load_dword {vXp}, {vD4}, {srd('X')}, 0 offen")
    for k in range(3):
        if k == 2:
            A(f"s_cmp_lt_u32 {sW}, 4"); A("s_cbranch_scc0 L_wq_done")
        A(f"s_add_u32 m0, {sT2}, {L_WQ + k*8192}")
        if k: A(f"s_add_u32 {sT1}, {sT1}, {8*65536}")
        A(f"buffer_load_dwordx4 v18, {srd('WQ')}, {sT1} offen {nt} lds")
    A("L_wq_done:")
    def batch1():
        setprio(0)
        kload(0); vload(0, 4)
    A(f"s_cmp_eq_u32 {sW}, 0")
    A("s_cbranch_scc1 L_nob1")
    batch1()
    A("L_nob1:")
    mksrd("WO", 4, 4096*640*2); mksrd("W2", 8, 1728*640*2); mksrd("OUT", 9, 1280)
    A(f"s_cmp_ge_u32 {sJ}, 20")
    A(f"s_cselect_b32 s{SRD['WP']}, s{P(7)[0]}, s{P(6)[0]}")
    A(f"s_cselect_b32 s{SRD['WP']+1}, s{P(7)[1]}, s{P(6)[1]}")
    A(f"s_and_b32 s{SRD['WP']+1}, s{SRD['WP']+1}, 0xffff")
    A(f"s_mov_b32 s{SRD['WP']+2}, {640*1728*2}")
    A(f"s_mov_b32 s{SRD['WP']+3}, 0x20000")
    A(f"s_mov_b32 {sTO}, 0x80000")
    A(f"s_mov_b32 {sL}, 0")
    A(f"s_mov_b32 {sLay}, 0")
    A(f"s_mov_b32 {sFast}, 0")
    A(f"s_mov_b32 {sMode}, 0")
    A(f"s_mov_b32 {sPL}, 0x05040100")
    A(f"s_mov_b32 {sPH}, 0x07060302")
    A(f"s_mov_b32 {sHI}, 0xffff0000")
    A(f"s_cmp_eq_u32 {sX}, 7")
    A(f"s_cselect_b32 {sT0}, 20, 24")
    A(f"s_cselect_b32 {sNCH}, {4*16}, {12*16}")
    A(f"s_cmp_lt_u32 {sJ}, {sT0}")
    A(f"s_cselect_b32 {sRole}, 1, 2")
    A(f"s_cmp_lt_u32 {sJ}, 10")
    A(f"s_cselect_b32 {sRole}, 0, {sRole}")
    A(f"v_and_b32 v20, 3, {vLane}")
    A(f"v_lshlrev_b32 {vQ64}, 6, v15")
    A(f"v_lshl_add_u32 {vQ64}, v20, 4, {vQ64}")
    A(f"v_and_b32 {vR0}, 8, {vLane}")
    A(f"v_bfe_u32 v23, {vLane}, 4, 1")
    A(f"v_lshl_add_u32 {vR0}, v23, 2, {vR0}")
    A(f"v_bfe_u32 v23, {vLane}, 2, 1")
    A(f"v_add_u32 {vR0}, {vR0}, v23")
    A(f"v_and_b32 v17, 1, {vLane}")
    A(f"v_mul_u32_u24 {vIdx}, 0xaaaa, v17")
    A(f"v_bfe_u32 v23, {vLane}, 1, 1")
    A(f"v_mul_u32_u24 v23, 0xaaaa, v23")
    A(f"v_lshl_add_u32 {vIdx}, v23, 16, {vIdx}")
    A(f"v_add_u32 {vIdx}, 0x44444444, {vIdx}")
    A(f"v_lshl_add_u32 {vML}, {vLane}, 3, 64")
    A(f"s_lshl_b32 {sT0}, {sW}, 3")
    A(f"v_writelane_b32 {vML}, {sT0}, 63")
    A(f"v_mov_b32 v45, {vD4}")
    A(f"v_lshlrev_b32 v46, 1, {vD4}")
    A(f"v_mov_b32 v16, 0")
    A(f"v_lshlrev_b32 v17, 2, v14")
    A(f"ds_write_b32 v17, v16 offset:{L_ZERO}")
    A(f"v_mov_b32 v19, 0x3f803f80")
    A(f"v_min_u32 v20, 1276, {vD4}")
    A(f"ds_write_b32 v20, v19 offset:{L_ONE}")
    A(f"v_mov_b32 v25, {OOB}")
    A(f"v_mov_b32 v26, {OOB}")
    A(f"v_mov_b32 v24, {OOB}")
    A(f"v_mov_b32 v27, {OOB}")
    A(f"v_mov_b32 v{L0+62}, {OOB}")
    A(f"s_cmp_eq_u32 {sW}, 0")
    A("s_cbranch_scc0 L_noarr")
    A("v_mov_b32 v29, -1")
    A(f"ds_write_b32 {vL16}, v29 offset:{L_Q}")
    vmc(3)
    A("L_noarr:")
    vmc(8)
    T = 32; GD = 40; GA = 48
    def xwrite():
        A(f"ds_write_b32 v45, {vXp} offset:{L_XI}")
        A(f"v_lshlrev_b32 v{GD}, 16, {vXp}")
        A(f"v_and_b32 v{GD+1}, {sHI}, {vXp}")
        A(f"v_mul_f32 v{GD+3}, v{GD}, v{GD}")
        A(f"v_add_f32 v{GD+2}, v{GD}, v{GD+1}")
        A(f"v_fmac_f32 v{GD+3}, v{GD+1}, v{GD+1}")
        A(f"ds_write_b64 v46, {vr(GD+2,2)} offset:{L_ST}")
    stamp(1)
    A(f"s_cmp_lt_u32 {sW}, 5")
    A("s_cbranch_scc0 L_g_bar")
    A(f"s_cmp_eq_u32 {sW}, 0")
    A("s_cbranch_scc0 L_g_have")
    xwrite()
    A(f"s_getreg_b32 {sT0}, hwreg(HW_REG_XCC_ID, 0, 3)")
    A(f"s_lshl_b32 {sT0}, {sT0}, 3")
    A(f"s_lshl_b64 s[26:27], 1, {sT0}")
    A(f"s_and_b32 {sT0}, {sX}, 4")
    A(f"s_mul_i32 {sT0}, {sT0}, 24")
    A(f"s_lshl_b32 {sT3}, {sX}, 3")
    A(f"s_add_u32 {sT0}, {sT0}, {sT3}")
    lgk(0)
    A(f"s_atomic_add_x2 s[26:27], s[{P(10)[0]}:{P(10)[1]}], {sT0}")
    batch1()
    vmc(8)
    A("s_branch L_g_bar2")

    A("L_g:")
    A(f"s_mul_i32 {sM}, {sX}, 1280")
    A(f"s_add_u32 {sM}, {sM}, {sLay}")
    A(f"s_add_u32 {sM}, {sM}, {XB}")
    A(f"s_cmp_eq_u32 {sMode}, 0")
    A(f"s_cselect_b32 {sT0}, 6, 7")
    A(f"s_cselect_b32 {sT1}, 63, 127")
    A(f"s_cselect_b32 {sT2}, {(ZB - YB - LSTRIDE) & 0xffffffff}, 0")
    A(f"s_cselect_b32 {sT3}, 0, 1280")
    A(f"v_lshrrev_b32 v53, {sT0}, {vD4}")
    A(f"v_and_b32 v52, {sT1}, {vD4}")
    A(f"v_lshl_add_u32 v53, v53, 7, v52")
    A(f"s_add_u32 {sA1}, {sT2}, {sLay}")
    A(f"s_add_u32 {sA1}, {sA1}, {YB}")
    A(f"s_sub_u32 {sT2}, 2560, {sT3}")
    for p in range(8):
        A(f"s_add_u32 {sT0}, {sJ if rot else 0}, {p}")
        A(f"s_and_b32 {sT0}, {sT0}, 7")
        A(f"s_mul_i32 {sT0}, {sT0}, {sT2}")
        A(f"s_add_u32 s{28+p}, {sT0}, {sA1}")
    A(f"v_add_u32 v45, {sT3}, {vD4}")
    A(f"v_lshlrev_b32 v46, 1, v45")
    A(f"v_lshrrev_b32 v52, 1, {vLane}")
    A(f"v_xor_b32 v52, v52, {vLane}")
    A(f"v_and_b32 v52, 8, v52")
    A(f"v_and_b32 v54, 6, {vLane}")
    A(f"v_or_b32 v52, v52, v54")
    A("v_mov_b32 v55, 0x3f803f80")
    A("v_cmp_eq_u32 vcc, 0, v52")
    A(f"v_and_b32 v54, 1, {vLane}")
    A(f"v_mul_u32_u24 v54, 0x5555, v54")
    A(f"v_cndmask_b32 v{GA}, 0, v55, vcc")
    A(f"v_cndmask_b32 v{GA+1}, 0, v55, vcc")
    A("v_cmp_eq_u32 vcc, 4, v52")
    A(f"v_add_u32 v54, 0x8888, v54")
    A(f"v_cndmask_b32 v{GA+2}, 0, v55, vcc")
    A(f"v_cndmask_b32 v{GA+3}, 0, v55, vcc")
    A(f"s_cmp_eq_u32 {sMode}, 0")
    A("s_cbranch_scc0 L_g_x")
    A(f"s_sub_u32 {sM}, {sM}, {LSTRIDE}")
    poll("L_xpoll", [f"buffer_load_dword {vXp}, {vD4}, {srd('WS')}, {sM} offen sc1"], [vXp], sl_x, depth=1)
    stamp(4)
    if d_f: A(f"s_sleep {d_f}")
    if d_z > d_f:
        A(f"s_cmp_eq_u32 {sL}, 2"); A("s_cbranch_scc1 L_g_x"); A(f"s_sleep {d_z - d_f}")
    A("L_g_x:")
    yl = [f"buffer_load_dword v{T+p}, v53, {srd('WS')}, s{28+p} offen sc1" for p in range(8)]
    for l in yl: A(l)
    A(f"v_lshlrev_b32 v{GD}, 16, {vXp}")
    A(f"v_and_b32 v{GD+1}, {sHI}, {vXp}")
    A("L_ychk:")
    vmc(0)
    missing([f"v{T+p}" for p in range(8)])
    A("s_cbranch_vccnz L_yretry")
    t = ["L_yretry:", f"s_sub_u32 {sTO}, {sTO}, 1", "s_cbranch_scc1 L_end"]
    if sl_y: t.append(f"s_sleep {sl_y}")
    mk_ = [f"s[{r}:{r+1}]" for r in (26, 42, 44, 52, 54, 96, 98)] + ["vcc"]
    for p in range(8): t.append(f"v_cmp_eq_u32 {mk_[p]}, -1, v{T+p}")
    for p in range(8):
        t += [f"s_mov_b64 exec, {mk_[p]}", yl[p]]
    t.append("s_mov_b64 exec, -1")
    t.append("s_branch L_ychk")
    tails.append(t)
    if stamps:
        A(f"s_add_u32 {sSI}, {sSI}, {sMode}"); stamp(2); A(f"s_sub_u32 {sSI}, {sSI}, {sMode}")
    A(f"{SMF} {vr(GD,4)}, {vr(GA,4)}, {vr(T,8)}, v54")
    A(f"s_cmp_eq_u32 {sL}, 2")
    A(f"v_cvt_pk_bf16_f32 {vXp}, v{GD}, v{GD+1}")
    A("s_cbranch_scc1 L_final")
    A("L_g_have:")
    xwrite()
    A("L_g_bar:")
    lgk(0)
    A("L_g_bar2:")
    A("s_barrier")
    A(f"s_cmp_eq_u32 {sMode}, 1")
    A("s_cbranch_scc1 L_up_m")

    QW = L0 + 32; QD = L0 + 56; QC = L0 + 60; XA = 44; vQs = f"v{L0+61}"; vQp = f"v{L0+62}"
    def q_prep():
        A(f"s_sub_u32 {sV_}, {sW}, 4")
        tr128("v14", 16)
        A(f"s_lshl_b32 {sT0}, {sV_}, 5")
        A(f"v_xor_b32 v14, {sT0}, v14")
        for t in range(3):
            for rp in range(4):
                hb, rho = rp >> 1, rp & 1
                if t == 2 and hb: continue
                A(f"ds_read_b64_tr_b16 {vr(QW+8*t+2*rp,2)}, v14 offset:{L_WQ + (64*t+32*hb+2*rho)*128}")
        for r in range(4):
            A(f"v_mov_b32 v{QW+20+r}, 0"); A(f"v_mov_b32 v{QD+r}, 0")
        A(f"v_and_b32 v16, 48, {vLane}")
        A(f"v_and_b32 v15, 1, {vLane}")
        A(f"v_lshlrev_b32 v16, 1, v16")
        A(f"v_lshl_add_u32 v16, v15, 4, v16")
        A(f"s_lshr_b32 {sT0}, {sC}, 1")
        A(f"s_mul_i32 {sT0}, {sT0}, 320")
        A(f"v_add_u32 v16, {sT0}, v16")
        A(f"v_add_u32 v17, 256, v16")
        A(f"v_mov_b32 v15, {L_ZERO - L_XI}")
        A(f"v_cmp_gt_u32 vcc, 32, {vLane}")
        A(f"v_lshlrev_b32 {vQs}, 3, {vLane}")
        A("v_cndmask_b32 v17, v15, v17, vcc")
        A(f"v_and_b32 v15, 12, {vLane}")
        A("v_cmp_eq_u32 vcc, 4, v15")
        A(f"v_mov_b32 v15, {L_ONE - L_XI}")
        A("v_cndmask_b32 v16, v16, v15, vcc")
        A("v_cndmask_b32 v17, v17, v15, vcc")
        qpub_off(vQp, "v15", False)
        A(f"v_and_b32 v15, 0x31, {vLane}")
        A("v_cmp_eq_u32 vcc, 0, v15")
        A(f"v_mov_b32 v15, {OOB}")
        qpub_cu(sA2, sT0)
        A(f"v_cndmask_b32 {vQp}, v15, {vQp}, vcc")
        A(f"s_lshl_b32 {sT0}, {sV_}, 8"); A(f"s_add_u32 {sA2}, {sA2}, {sT0}")
        setprio(3)
    A(f"s_cmp_ge_u32 {sW}, 4")
    A("s_cbranch_scc0 L_att")
    A(f"s_cmp_eq_u32 {sL}, 0")
    A("s_cbranch_scc1 L_q_prep0")
    A("L_q_go:")
    stamp(5)
    for k in range(5): A(f"ds_read_b64 {vr(32+2*k,2)}, {vQs} offset:{L_ST + 512*k}")
    A(f"ds_read_b128 {vr(XA,4)}, v16 offset:{L_XI}")
    A(f"ds_read_b128 {vr(XA+4,4)}, v16 offset:{L_XI + 128}")
    A(f"ds_read_b128 {vr(XA+8,4)}, v17 offset:{L_XI}")
    stats_and_mfma(lambda i: A(f"{SMF} {vr(QD,4)}, {vr(XA+4*i,4)}, {vr(QW+8*i,8)}, {vIdx}"), 3,
                   [f"v_add_f32 v{QC}, v{QD}, v{QD+1}", f"v_add_f32 v{QD}, v{QD}, v{QD+1}", "", f"v_permlane16_swap_b32 v{QD}, v{QC}"])
    A(f"v_mul_f32 v33, {LOG2E/math.sqrt(128)!r}, v33")
    A(f"v_fma_f32 v{QD}, -{sT0}, v{QC}, v{QD}")
    A(f"v_readlane_b32 {sT1}, v33, 63")
    A(f"v_mov_b32_dpp v34, v{QD} quad_perm:[1,1,3,3] {DPPF}")
    A(f"v_mul_f32 v{QD}, {sT1}, v{QD}")
    A(f"v_mul_f32 v34, {sT1}, v34")
    A(f"v_cvt_pk_bf16_f32 v35, v{QD}, v34")
    A("v_min_u32 v35, -2, v35")
    store_intra("L_q_st", [f"buffer_store_dword v35, {vQp}, {srd('WS')}, {sA2} offen"], scc_ready=True)
    stamp(6)
    setprio(0)

    WW = L0 + 32; D0 = L0
    def wo_tr():
        tr128("v14", 16)
        A(f"s_lshl_b32 {sT0}, {sW}, 13")
        A(f"s_add_u32 {sT0}, {sT0}, {L_R1}")
        A(f"v_add_u32 v14, {sT0}, v14")
        for cb in range(1, 4): A(f"v_xor_b32 v{14+cb}, {32*cb}, v14")
        return [f"ds_read_b64_tr_b16 {vr(WW+8*cb+2*rp,2)}, v{14+cb} offset:{(32*(rp>>1)+2*(rp&1))*128}"
                for cb in (0, 2, 1, 3) for rp in range(4)]
    def zeroO():
        for e in range(8):
            A(f"v_mov_b32 v{L0+4*e}, 0"); A(f"v_mov_b32 v{L0+4*e+2}, 0")
    def zeroS():
        for Tt in range(4):
            for r in (0, 1, 6, 7): A(f"v_mov_b32 v{S0+8*Tt+r}, 0")
    A("L_att:")
    A(f"s_lshl_b32 {sA1}, {sHead}, 10")
    qload = f"buffer_load_dwordx4 {vr(vA,4)}, {vL16}, {srd('WS')}, {sA1} offen sc1"
    A(f"s_cmp_eq_u32 {sL}, 0")
    A("s_cbranch_scc1 L_stream")
    A(f"s_add_u32 {sA1}, {sA1}, {QB1}")
    def att_prep(tag):
        zeroS()
        A(f"s_cmp_eq_u32 {sRole}, 0")
        A(f"s_cbranch_scc0 L_notr{tag}")
        for l in wo_tr(): A(l)
        A(f"L_notr{tag}:")
    if qbar:
        A(f"s_cmp_ge_u32 {sW}, 4")
        A("s_cbranch_scc1 L_qlate")
        att_prep("a")
        if lateprio: setprio(1)
        A("s_barrier")
        if d_q: A(f"s_sleep {d_q}")
        A(qload)
        if pdq > 1: A(f"s_sleep {gapq}")
        A("s_branch L_qjoin")
        A("L_qlate:")
        A("s_barrier")
        if qbar == 1: A(qload)
        att_prep("b")
        if qbar == 2: A(qload)
        A("L_qjoin:")
    else:
        A(qload)
        att_prep("a")
    stamp(7)
    poll("L_qpoll", [qload], [f"v{vA+i}" for i in range(4)], sl_q, first_issued=True, depth=pdq)
    stamp(8)
    def tsum(Tt):
        b = S0 + 8*Tt
        return [f"v_add_f32 v{b}, v{b}, v{b+1}", f"v_add_f32 v{b+6}, v{b+6}, v{b+7}", f"v_add_f32 v{b}, v{b}, v{b+6}"]
    shadow = [[]]*8
    for idx, Tt in enumerate([0, 2, 1, 3]):
        for kp in range(2):
            A(f"{SMF} {vr(S0+8*Tt+4*kp,4)}, {vr(vA,4)}, {vr(K0+16*Tt+8*kp,8)}, {vIdx}")
            for l in shadow[2*idx+kp]: A(l)
    if prio and lateprio:
        A(f"s_cmp_ge_u32 {sW}, 4")
        A("s_cbranch_scc0 L_noprio")
        A("s_setprio 2")
        A("L_noprio:")
    for l in tsum(0) + tsum(2) + tsum(1): A(l)
    A(f"v_permlane32_swap_b32 v{S0}, v{S0+16}")
    for l in tsum(3): A(l)
    A(f"v_add_f32 v{S0}, v{S0}, v{S0+16}")
    A(f"v_permlane32_swap_b32 v{S0+8}, v{S0+24}")
    A(f"v_add_f32 v{S0+8}, v{S0+8}, v{S0+24}")
    A(f"v_permlane16_swap_b32 v{S0}, v{S0+8}")
    A(f"v_add_f32 v14, v{S0}, v{S0+8}")
    stamp(31, True)
    A(f"v_max_f32_dpp v16, v14, v14 {steps[0]}")
    for st in steps[1:]: A(f"v_max_f32_dpp v16, v16, v16 {st}")
    A(f"v_readlane_b32 {sM}, v16, 63")
    A(f"s_cmp_eq_u32 {sL}, 0")
    A(f"v_subrev_f32 v14, {sM}, v14")
    A("v_exp_f32 v14, v14")
    A(f"v_mov_b32_dpp v15, v14 quad_perm:[1,1,3,3] {DPPF}")
    vP = 20
    A(f"v_cvt_pk_bf16_f32 v{vP}, v14, v15")
    A(f"v_add_f32_dpp v17, v14, v14 {steps[0]}")
    for q in range(1, 4): A(f"v_mov_b32_dpp v{vP+q}, v{vP} row_ror:{16-4*q} {DPPF}")
    A("s_cbranch_scc1 L_vland")
    A("L_pv:")
    if lateprio == 2: setprio(1)
    stamp(32, True)
    for e in range(8):
        A(f"{SMF} {vr(L0+4*e,4)}, {vr(vP,4)}, {vr(V0+8*e,8)}, {vIdx} abid:1")
        if e < 5: A(f"v_add_f32_dpp v17, v17, v17 {steps[e+1]}")
        if e == 4: A(f"ds_write_b64 {vML}, v[16:17] offset:{L_ML}")
        if e >= 5: A(f"v_add_f32 v{S0+e-5}, v{L0+4*(e-5)}, v{L0+4*(e-5)+2}")
    def owrite():
        for e in range(3, 8): A(f"v_add_f32 v{S0+e}, v{L0+4*e}, v{L0+4*e+2}")
        A("s_mov_b64 exec, 0xffff")
        A(f"ds_write_b128 {vOPw}, {vr(S0,4)} offset:{L_OP}")
        A(f"ds_write_b128 {vOPw}, {vr(S0+4,4)} offset:{L_OP+16}")
        A("s_mov_b64 exec, -1")
    A(f"s_cmp_lt_u32 {sW}, 4")
    A("s_cbranch_scc1 L_early")
    lgk(0)
    stamp(33, True)
    A("s_barrier")
    stamp(34, True)
    owrite()
    A("L_noread:")
    lgk(0)
    stamp(10)
    A("s_barrier")
    if 'stop' in dbg: A("s_branch L_end")
    setprio(0)
    A("s_branch L_roles")
    A("L_early:")
    A("s_nop 3")
    owrite()
    A(f"s_cmp_eq_u32 {sL}, 0")
    A("s_cbranch_scc1 L_pfw")
    A("L_pfw_done:")
    A(f"s_cmp_eq_u32 {sW}, 0")
    lgk(0)
    A("s_barrier")
    A("s_cbranch_scc0 L_noread")
    A(f"ds_read_b64 v[16:17], {vMLr} offset:{L_ML}")
    lgk(0)
    A(f"v_max_f32_dpp v14, v16, v16 {steps[0]}")
    for st in steps[1:3]: A(f"v_max_f32_dpp v14, v14, v14 {st}")
    A("v_sub_f32 v16, v16, v14")
    A("v_exp_f32 v16, v16")
    stamp(10)
    A("s_barrier")
    mark("att1", 0)
    stamp(18, True)
    if 'stop' in dbg: A("s_branch L_end")
    for w in range(8): A(f"ds_read_b64 {vr(40+2*w,2)}, {v8L} offset:{L_OP + 512*w}")
    A("v_mul_f32 v17, v16, v17")
    A(f"s_cmp_eq_u32 {sFast}, 0")
    for st in steps[:3]: A(f"v_add_f32_dpp v17, v17, v17 {st}")
    A("v_rcp_f32 v15, v17")
    A("v_log_f32 v17, v17")
    A("v_mul_f32 v16, v16, v15")
    A("v_add_f32 v17, v17, v14")
    A("v_min_u32 v17, -2, v17")
    store_intra("L_a_st", ["s_mov_b64 exec, 1", f"buffer_store_dword v17, off, {srd('WS')}, {sO2}", "s_mov_b64 exec, -1"], scc_ready=True)
    lgk(6)
    A(f"v_mul_f32_dpp v20, v16, v40 row_newbcast:0 {DPPF}")
    A(f"v_mul_f32_dpp v21, v16, v41 row_newbcast:0 {DPPF}")
    A(f"v_mul_f32_dpp v22, v16, v42 row_newbcast:1 {DPPF}")
    A(f"v_mul_f32_dpp v23, v16, v43 row_newbcast:1 {DPPF}")
    for w in range(2, 8):
        if w in (2, 4, 6): lgk(6 - w)
        A(f"v_fmac_f32_dpp v{20+2*(w&1)}, v16, v{40+2*w} row_newbcast:{w} {DPPF}")
        A(f"v_fmac_f32_dpp v{21+2*(w&1)}, v16, v{41+2*w} row_newbcast:{w} {DPPF}")
    A("v_pk_add_f32 v[20:21], v[20:21], v[22:23]")
    A("v_cvt_pk_bf16_f32 v20, v20, v21")
    A("v_min_u32 v20, -2, v20")
    store_intra("L_o_st", [f"buffer_store_dword v20, {vOpub}, {srd('WS')}, {sO1} offen"], scc_ready=True)
    stamp(11)
    if npf13 < 4:
        A(f"s_cmp_eq_u32 {sL}, 0")
        A("s_cbranch_scc0 L_roles")
        for k in range(npf13, 4):
            A(f"s_mov_b32 {sT0}, {k*16*3456}")
            A(f"buffer_load_dword {vDum}, v26, {srd('WP')}, {sT0} offen {pfl}")
    A("L_roles:")
    A(f"s_cmp_eq_u32 {sRole}, 0")
    A("s_cbranch_scc0 L_notwo")

    aload = f"buffer_load_dword v14, {vAoff}, {srd('WS')}, {sP2} offen sc1"
    oload = f"buffer_load_dwordx4 {vr(vA,4)}, {vL16}, {srd('WS')}, {sP1} offen sc1"
    A(f"s_cmp_eq_u32 {sL}, 0")
    A("s_cbranch_scc1 L_wo_dma")
    A("L_wo_have:")
    A(aload); A(oload)
    for r in range(16): A(f"v_mov_b32 v{D0+r}, 0")
    stamp(12)
    poll("L_apoll", [aload, oload], ["v14"], sl_o, first_issued=True, depth=pdo)
    stamp(35, True)
    if pdo == 1: A(oload)
    A(f"v_max_f32_dpp v16, v14, v14 {steps[0]}")
    for st in steps[1:3]: A(f"v_max_f32_dpp v16, v16, v16 {st}")
    A("v_sub_f32 v15, v14, v16")
    A("v_exp_f32 v15, v15")
    A(f"v_add_f32_dpp v16, v15, v15 {steps[0]}")
    for st in steps[1:3]: A(f"v_add_f32_dpp v16, v16, v16 {st}")
    A("v_rcp_f32 v16, v16")
    lgk(0)
    missing([f"v{vA+i}" for i in range(4)])
    A("v_mul_f32 v15, v15, v16")
    A("s_cbranch_vccz L_opoll_ok")
    poll("L_opoll", [oload], [f"v{vA+i}" for i in range(4)], sl_o, first_issued=True, depth=pdo)
    stamp(13)
    cbo = [0, 2, 1, 3]
    for cb in cbo: A(f"{SMF} {vr(D0+4*cb,4)}, {vr(vA,4)}, {vr(WW+8*cb,8)}, {vIdx}")
    A(f"v_mov_b32_dpp v16, v15 row_newbcast:0 {DPPF}")
    A(f"v_mov_b32_dpp v17, v15 row_newbcast:1 {DPPF}")
    def wsum(cb):
        d = D0 + 4*cb
        A(f"v_add_f32 v{d}, v{d}, v{d+1}")
        A(f"v_add_f32 v{d+2}, v{d+2}, v{d+3}")
        A(f"v_mul_f32 v{d}, v16, v{d}")
        A(f"v_fmac_f32 v{d}, v17, v{d+2}")
    wsum(0); wsum(2); wsum(1)
    A(f"v_permlane32_swap_b32 v{D0}, v{D0+8}")
    wsum(3)
    A(f"v_add_f32 v{D0}, v{D0}, v{D0+8}")
    A(f"v_permlane32_swap_b32 v{D0+4}, v{D0+12}")
    A(f"v_add_f32 v{D0+4}, v{D0+4}, v{D0+12}")
    A(f"v_permlane16_swap_b32 v{D0}, v{D0+4}")
    A(f"v_add_f32 v{D0}, v{D0}, v{D0+4}")
    A(f"ds_write_b32 {vD4}, v{D0} offset:{L_RED}")
    A(f"s_cmp_eq_u32 {sW}, 0")
    lgk(0)
    stamp(19, True)
    if stamps == 3: A(f"s_cmp_eq_u32 {sW}, 0")
    A("s_barrier")
    A("s_cbranch_scc0 L_wo_done")
    stamp(1, True)
    for w in range(4): A(f"ds_read2st64_b32 {vr(40+2*w,2)}, {vD4} offset0:{L_RED//256 + 2*w} offset1:{L_RED//256 + 2*w + 1}") if L_RED % 256 == 0 else None
    if L_RED % 256:
        for w in range(8): A(f"ds_read_b32 v{40+w}, {vD4} offset:{L_RED + 256*w}")
        lgk(4)
    else:
        lgk(2)
    A("v_pk_add_f32 v[40:41], v[40:41], v[42:43]")
    lgk(0)
    A("v_pk_add_f32 v[44:45], v[44:45], v[46:47]")
    A("v_pk_add_f32 v[40:41], v[40:41], v[44:45]")
    A("v_add_f32 v40, v40, v41")
    packpair("v42", "v40", "v41")
    A(f"buffer_store_dword v42, {vYoff}, {srd('WS')}, {sY} offen sc1")
    stamp(14)
    A("L_wo_done:")
    A(f"s_cmp_eq_u32 {sL}, 0")
    A("s_cbranch_scc0 L_w2_have")
    dma128("v20", 1280, sW)
    A(f"s_mul_i32 {sT0}, {sX}, 224")
    A(f"s_lshl_b32 {sT1}, {sW}, 3")
    A(f"s_add_u32 {sT0}, {sT0}, {sT1}")
    A(f"s_mul_i32 {sT0}, {sT0}, 1280")
    A(f"s_lshl_b32 {sT1}, {sJ}, 7")
    A(f"s_add_u32 {sT0}, {sT0}, {sT1}")
    A(f"s_lshl_b32 {sT3}, {sW}, 10")
    A("s_barrier")
    for k in range(4):
        if k == 3:
            A(f"s_cmp_lt_u32 {sW}, 4"); A("s_cbranch_scc0 L_w2_iss")
        A(f"s_add_u32 m0, {sT3}, {L_W2 + k*8192}")
        if k: A(f"s_add_u32 {sT0}, {sT0}, {64*1280}")
        A(f"buffer_load_dwordx4 v20, {srd('W2')}, {sT0} offen {nt} lds")
    A("L_w2_iss:")
    vmc(0)
    A("s_barrier")
    A("L_w2_have:")
    A(f"s_sub_u32 {sV_}, {sW}, 5")
    A(f"s_cmp_lt_u32 {sV_}, 2")
    A("s_cbranch_scc0 L_nextlayer")
    A1 = 48; W = L0; DD = 32
    tr128("v21", 0)
    A(f"s_lshl_b32 {sT0}, {sV_}, 6")
    A(f"v_xor_b32 v21, {sT0}, v21")
    A(f"v_add_u32 v21, {L_W2}, v21")
    A(f"v_and_b32 v20, 32, {vLane}")
    A(f"v_lshl_add_u32 v20, v20, 7, v21")
    A("v_xor_b32 v22, 32, v20")
    A("v_xor_b32 v23, 32, v21")
    A("s_sleep 4")
    for cb in range(2):
        for u in range(2):
            for kp in range(2):
                for rp in range(4):
                    hb, rho = rp >> 1, rp & 1
                    A(f"ds_read_b64_tr_b16 {vr(W+32*cb+16*u+8*kp+2*rp,2)}, v{20 + 2*cb + (1 if (u and hb) else 0)} offset:{(128*u+64*hb+16*kp+2*rho)*128}")
    for r in range(16): A(f"v_mov_b32 v{DD+r}, 0")
    A(f"v_mov_b32 v26, {OOB}")
    A(f"v_cmp_gt_u32 vcc, {sNCH}, {vQ64}")
    A(f"s_lshl_b32 {sA1}, {sX}, 9")
    A(f"s_add_u32 {sA1}, {sA1}, {sLay}")
    A(f"v_cndmask_b32 v25, v26, {vQ64}, vcc")
    A(f"s_add_u32 {sA1}, {sA1}, {HB}")
    A(f"v_cmp_gt_u32 vcc, 32, {vLane}")
    A(f"s_mul_i32 {sT2}, {sX}, 2560")
    A(f"s_lshl_b32 {sT0}, {sJ}, 1")
    A(f"v_cndmask_b32 v26, v26, {vYoff}, vcc")
    A(f"s_add_u32 {sT0}, {sT0}, {sV_}"); A(f"s_lshl_b32 {sT0}, {sT0}, 7")
    A(f"s_add_u32 {sT2}, {sT2}, {sT0}")
    A(f"s_add_u32 {sT2}, {sT2}, {sLay}")
    A(f"s_add_u32 {sT2}, {sT2}, {ZB}")
    setprio(3)
    lgk(0)
    stamp(15)
    poll("L_hpoll", [f"buffer_load_dwordx4 {vr(vA,4)}, {vQ64}, {srd('WS')}, {sA1} offen sc1",
                     f"buffer_load_dwordx4 {vr(A1,4)}, v25, {srd('WS')}, {sA1} offen offset:256 sc1"],
         [f"v{vA+i}" for i in range(4)] + [f"v{A1+i}" for i in range(4)], sl_h)
    stamp(16)
    for cb in range(2):
        for kp in range(2):
            for u in range(2):
                A(f"{SMF} {vr(DD+8*cb+4*kp,4)}, {vr(A1 if u else vA,4)}, {vr(W+32*cb+16*u+8*kp,8)}, {vIdx}")
    A(f"v_add_f32 v{DD}, v{DD}, v{DD+1}")
    A(f"v_add_f32 v{DD+6}, v{DD+6}, v{DD+7}")
    A(f"v_add_f32 v14, v{DD}, v{DD+6}")
    A(f"v_add_f32 v{DD+8}, v{DD+8}, v{DD+9}")
    A(f"v_add_f32 v{DD+14}, v{DD+14}, v{DD+15}")
    A(f"v_add_f32_dpp v14, v{DD+8}, v{DD+14} quad_perm:[0,1,2,3] row_mask:0x2 bank_mask:0xf")
    packpair("v22", "v14", "v15")
    A(f"buffer_store_dword v22, v26, {srd('WS')}, {sT2} offen sc1")
    stamp(17)
    vmc(1)
    A("s_branch L_nextlayer")

    A("L_notwo:")
    A(f"s_cmp_eq_u32 {sRole}, 2")
    A("s_cbranch_scc1 L_nextlayer")
    UW = L0; UA = L0 + 40; UD = 56; UC = 60
    A(f"s_cmp_eq_u32 {sL}, 0")
    A("s_cbranch_scc0 L_w13_have")
    A(f"s_mul_i32 {sT0}, {sX}, {14*32}")
    A(f"s_lshl_b32 {sT1}, {sJ}, 5")
    A(f"s_add_u32 {sT0}, {sT0}, {sT1}")
    A(f"s_sub_u32 {sT0}, {sT0}, 320")
    A(f"s_mul_i32 {sT1}, {sW}, {16*3456}")
    A(f"s_add_u32 {sT0}, {sT0}, {sT1}")
    A(f"v_lshrrev_b32 v21, 2, {vLane}")
    A(f"v_lshrrev_b32 v20, 4, {vLane}")
    A(f"v_and_b32 v20, 2, v20")
    A(f"v_xor_b32 v21, v21, v20")
    A("v_mul_u32_u24 v21, 3456, v21")
    A(f"v_xor_b32 v20, {vL16}, {vLane}")
    A(f"v_and_b32 v20, 16, v20")
    A(f"v_add3_u32 v21, {sT0}, v21, v20")
    A(f"v_and_b32 v20, 2, {vLane}")
    A("v_cmp_eq_u32 vcc, 0, v20")
    A(f"v_mov_b32 v22, s{P(7)[0]}"); A(f"v_mov_b32 v23, s{P(7)[1]}")
    A(f"v_mov_b32 v14, s{P(6)[0]}"); A(f"v_mov_b32 v15, s{P(6)[1]}")
    A("v_cndmask_b32 v22, v22, v14, vcc"); A("v_cndmask_b32 v23, v23, v15, vcc")
    A("v_add_co_u32 v22, vcc, v22, v21"); A("v_addc_co_u32 v23, vcc, 0, v23, vcc")
    A(f"s_lshl_b32 {sT2}, {sW}, 10")
    A("s_barrier")
    for k in range(5):
        if k:
            A(f"v_add_co_u32 v22, vcc, {8*16*3456}, v22"); A("v_addc_co_u32 v23, vcc, 0, v23, vcc")
        A(f"s_add_u32 m0, {sT2}, {L_R1 + k*8192}")
        A(f"global_load_lds_dwordx4 v[22:23], off {dfl}")
    vmc(0)
    A("L_w13_have:")
    A("s_barrier")
    stamp(12)
    A(f"s_mov_b32 {sMode}, 1")
    A(f"s_cmp_ge_u32 {sW}, 4")
    A("s_cbranch_scc0 L_up_g")
    A(f"s_sub_u32 {sV_}, {sW}, 4")
    A(f"v_and_b32 v14, 32, {vLane}")
    A(f"v_and_b32 v15, 2, {vLane}")
    A(f"v_lshl_add_u32 v14, v15, 3, v14")
    A(f"v_add_u32 v14, v14, {vR0}")
    A(f"v_lshlrev_b32 v14, 6, v14")
    A(f"v_and_b32 v15, 1, {vLane}")
    A(f"v_lshl_add_u32 v14, v15, 5, v14")
    A(f"v_and_b32 v15, 8, {vLane}")
    A(f"v_lshl_add_u32 v14, v15, 4, v14")
    A(f"v_and_b32 v15, 16, {vLane}")
    A(f"v_add_u32 v14, v14, v15")
    A(f"s_lshl_b32 {sT0}, {sV_}, 3")
    A(f"v_xor_b32 v14, {sT0}, v14")
    A(f"v_add_u32 v14, {L_R1}, v14")
    A(f"v_xor_b32 v17, 128, v14")
    for u in range(5):
        for rp in range(4):
            hb, rho = rp >> 1, rp & 1
            A(f"ds_read_b64_tr_b16 {vr(UW+8*u+2*rp,2)}, {'v17' if rho else 'v14'} offset:{(128*u+64*hb)*64}")
    for r in range(4):
        A(f"v_mov_b32 v{UD+r}, 0")
    A(f"v_and_b32 v15, 12, {vLane}")
    A("v_cmp_eq_u32 vcc, 4, v15")
    A(f"v_mov_b32 v15, {L_ONE - L_XI - 1280}")
    A(f"s_lshl_b32 {sA2}, {sX}, 9")
    A(f"v_cndmask_b32 v16, {vQ64}, v15, vcc")
    A(f"v_cmp_gt_u32 vcc, 4, {vLane}")
    A(f"v_mov_b32 v15, {OOB}")
    A(f"s_add_u32 {sA2}, {sA2}, {sT0}")
    A(f"v_cndmask_b32 v25, v15, {vYoff}, vcc")
    A(f"s_lshl_b32 {sT0}, {sJ}, 5"); A(f"s_add_u32 {sA2}, {sA2}, {sT0}")
    A(f"s_add_u32 {sA2}, {sA2}, {HB - 320}")
    A(f"s_add_u32 {sA2}, {sA2}, {sLay}")
    setprio(3)
    A(f"s_cmp_eq_u32 {sW}, 4")
    A("s_cbranch_scc0 L_g_bar")
    if d_y > 4:
        A(f"s_cmp_eq_u32 {sL}, 0"); A("s_cbranch_scc1 L_g"); A(f"s_sleep {d_y - 4}")
    A("s_branch L_g")
    A("L_up_g:")
    if d_y:
        A(f"s_cmp_eq_u32 {sL}, 0"); A("s_cbranch_scc1 L_g"); A(f"s_sleep {d_y}")
    A("s_branch L_g")
    A("L_up_m:")
    A(f"s_cmp_ge_u32 {sW}, 4")
    A("s_cbranch_scc0 L_xpub")
    stamp(13)
    for k in range(5): A(f"ds_read_b64 {vr(32+2*k,2)}, {v8L} offset:{L_ST + 2560 + 512*k}")
    for u in range(5): A(f"ds_read_b128 {vr(UA+4*u,4)}, v16 offset:{L_XI + 1280 + 256*u}")
    stats_and_mfma(lambda i: A(f"{SMF} {vr(UD,4)}, {vr(UA+4*i,4)}, {vr(UW+8*i,8)}, {vIdx}"), 5,
                   ["", "", "", f"v_add_f32 v{UD+2}, v{UD+2}, v{UD+3}", f"v_add_f32 v{UD}, v{UD}, v{UD+1}", "",
                    f"v_add_f32_dpp v{UC}, v{UD+2}, v{UD} row_shl:8 {DPPF}", f"v_add_f32_dpp v{UD}, v{UD+2}, v{UD} row_shl:8 {DPPF}",
                    f"v_readlane_b32 {sT1}, v33, 63", f"v_permlane16_swap_b32 v{UD}, v{UC}"])
    A(f"v_fma_f32 v{UD}, -{sT0}, v{UC}, v{UD}")
    A(f"v_mul_f32 v{UD}, {sT1}, v{UD}")
    A(f"v_mul_f32 v34, {-LOG2E!r}, v{UD}")
    A("v_exp_f32 v34, v34")
    A(f"v_mul_f32_dpp v{UD}, v{UD}, v{UD} row_shl:4 {DPPF}")
    A("v_add_f32 v34, 1.0, v34")
    A("v_rcp_f32 v34, v34")
    A(f"v_mul_f32 v{UD}, v{UD}, v34")
    packpair("v35", f"v{UD}", "v34")
    store_intra("L_h_st", [f"buffer_store_dword v35, v25, {srd('WS')}, {sA2} offen"], scc_ready=True)
    stamp(14)
    A("L_xpub:")
    A(f"s_cmp_eq_u32 {sJ}, 10")
    A(f"s_cselect_b32 {sT0}, {sW}, 7")
    A(f"s_cmp_lt_u32 {sT0}, 5")
    A("s_cbranch_scc0 L_nextlayer")
    if xlate:
        A(f"s_add_u32 {sT0}, {sNCH}, 256")
        A(f"v_cmp_gt_u32 vcc, {sT0}, {v8L}")
        A(f"v_mov_b32 v23, {OOB}")
        A(f"s_lshl_b32 {sA1}, {sX}, 9")
        A(f"s_add_u32 {sA1}, {sA1}, {sLay}")
        A(f"v_cndmask_b32 v20, v23, {v8L}, vcc")
        A(f"s_add_u32 {sA1}, {sA1}, {HB}")
        poll("L_tpoll", [f"buffer_load_dwordx2 v[14:15], v20, {srd('WS')}, {sA1} offen sc1"], ["v14", "v15"], 0, depth=1)
    A(f"v_min_u32 v45, -2, {vXp}")
    store_intra("L_x_st", [f"buffer_store_dword v45, {vD4}, {srd('WS')}, {sM} offen"])

    A("L_nextlayer:")
    mark("h1", 0)
    setprio(0)
    A(f"s_add_u32 {sL}, {sL}, 1")
    A(f"s_add_u32 {sLay}, {sLay}, {LSTRIDE}")
    if stamps: A(f"s_add_u32 {sSI}, {sSI}, 20")
    A(f"s_mov_b32 {sMode}, 0")
    A(f"s_cmp_eq_u32 {sL}, 2")
    A("s_cbranch_scc1 L_last")
    for r in (sO1, sO2, sP1, sP2, sY): A(f"s_add_u32 {r}, {r}, {LSTRIDE}")
    zeroO()
    if warm:
        A(f"s_cmp_eq_u32 {sW}, 7")
        A("s_cbranch_scc0 L_nowarm")
        warm_o(7)
        A(f"s_lshl_b32 {sT0}, {sHead}, 10")
        A(f"s_add_u32 {sT0}, {sT0}, {QB1}")
        A(f"buffer_load_dword {vDum}, {vL16}, {srd('WS')}, {sT0} offen sc1")
        A("L_nowarm:")
    A(f"s_cmp_ge_u32 {sW}, 4")
    A("s_cbranch_scc0 L_g")
    A("s_sleep 4")
    q_prep()
    A(f"s_add_u32 {sA2}, {sA2}, {QB1}")
    A(f"s_cmp_eq_u32 {sW}, 4")
    A("s_cbranch_scc1 L_g")
    A("s_branch L_g_bar")
    A("L_last:")
    A(f"s_add_u32 {sT0}, {sW}, 24")
    A(f"s_lshl_b32 {sT0}, {sT0}, 3")
    A(f"s_cmp_eq_u32 {sT0}, s2")
    A("s_cbranch_scc0 L_end")
    A(f"s_cmp_lt_u32 {sW}, 5")
    A("s_cbranch_scc1 L_g")
    A("s_branch L_end")

    A("L_final:")
    mark("end")
    A(f"buffer_store_dword {vXp}, {vD4}, {srd('OUT')}, 0 offen")
    if amp:
        A("s_cmp_eq_u32 s2, 192"); A("s_cbranch_scc0 L_end")
        A("s_sub_u32 s30, s0, s100")
        A("s_mul_i32 s30, s30, 10")
        A("s_memrealtime s[28:29]"); A("s_waitcnt lgkmcnt(0)")
        A("L_amp:")
        A("s_memrealtime s[32:33]"); A("s_waitcnt lgkmcnt(0)")
        A("s_sub_u32 s32, s32, s28")
        A("s_cmp_lt_u32 s32, s30")
        A("s_cbranch_scc1 L_amp")
    A("L_end:")
    if stamps:
        A("s_mov_b64 exec, -1")
        A(f"s_mov_b32 {sSI}, 0"); stamp(63)
        A(f"s_lshl_b32 {sT0}, s2, 11")
        A(f"s_add_u32 {sT0}, {sT0}, {WS_STAMP}")
        A(f"v_add_u32 v14, {sT0}, {vD4}")
        A(f"global_store_dword v14, {vST}, s[{P(11)[0]}:{P(11)[1]}]")
    A("L_exit:")
    A("s_endpgm")

    A("L_q_prep0:")
    q_prep()
    A(f"s_add_u32 {sA2}, {sA2}, {QB0}")
    A("s_branch L_q_go")
    A("L_stream:")
    A(f"s_add_u32 {sA1}, {sA1}, {QB0}")
    kload(1); kload(2); kload(3)
    def goload(fl):
        A(f"s_load_dwordx8 s[28:35], s[{P(10)[0]}:{P(10)[1]}], 0 {fl}")
        A(f"s_load_dwordx8 s[36:43], s[{P(10)[0]}:{P(10)[1]}], 128 {fl}")
    vload(4, 8); vload(8, gopos)
    A(f"s_cmp_eq_u32 {sW}, 0")
    A("s_cbranch_scc0 L_nogo")
    goload("")
    A("L_nogo:")
    vload(gopos, 16)
    A(f"v_lshlrev_b32 {v8L}, 3, {vLane}")
    A(f"v_lshlrev_b32 v25, 7, {vLane}")
    A(f"v_lshrrev_b32 v26, 2, {vLane}")
    A(f"v_mul_u32_u24 v26, 3456, v26")
    A(f"v_and_b32 v28, 3, {vLane}")
    A(f"v_lshl_add_u32 v26, v28, 7, v26")
    A(f"s_lshl_b32 {sT1}, {sW}, 5")
    A(f"s_sub_u32 {sT2}, 31, {sJ}")
    A(f"s_add_u32 {sT1}, {sT1}, {sT2}")
    A(f"s_lshl_b32 {sT2}, {sT1}, 13")
    A(f"s_mul_i32 {sT3}, {sX}, {512*1280}")
    A(f"s_add_u32 {sT2}, {sT2}, {sT3}")
    A(f"s_cmp_lt_u32 {sT1}, {0 if 'nopf' in dbg else 80}")
    A(f"s_cselect_b32 {sT1}, {sT2}, {OOB}")
    A(f"s_sub_u32 {sA2}, {sJ}, 10")
    A(f"s_cmp_ge_u32 {sJ}, 20")
    A(f"s_cselect_b32 {sM}, 10, 0")
    A(f"s_sub_u32 {sM}, {sA2}, {sM}")
    A(f"s_cmp_lt_u32 {sM}, 10")
    A(f"s_mul_i32 {sM}, {sM}, {64*3456}")
    A(f"s_cselect_b32 {sA2}, {sM}, {OOB}")
    A(f"s_mul_i32 {sM}, {sX}, 7")
    A(f"s_lshr_b32 {sM}, {sM}, 1")
    A(f"s_lshl_b32 {sM}, {sM}, 7")
    A(f"s_add_u32 {sA2}, {sA2}, {sM}")
    A(f"v_add_u32 v26, {sA2}, v26")
    A(f"s_mul_i32 {sA2}, {sW}, {16*3456}")
    A(f"s_cmp_lt_u32 {sW}, {npf13}")
    A(f"s_cselect_b32 {sA2}, {sA2}, {OOB}")
    stamp(7)
    A(f"v_mov_b32 v29, 0")
    A(f"s_cmp_lt_u32 {sW}, 4")
    A("s_cbranch_scc0 L_barW")
    A(f"s_cmp_eq_u32 {sW}, {99 if 'noq' in dbg else 0}")
    A("s_cbranch_scc0 L_nostage")
    A("s_branch L_go_chk")
    A("L_go:")
    goload("glc")
    A("L_go_chk:")
    lgk(0)
    A(f"s_lshl_b32 {sT0}, {sX}, 1")
    A(f"s_mov_b32 m0, {sT0}")
    A("s_add_u32 s26, s28, s29")
    A("s_movrels_b64 s[44:45], s[28:29]")
    for i in range(2, 8): A(f"s_add_u32 s26, s26, s{28+i}")
    A("s_add_u32 s27, s36, s37")
    for i in range(2, 8): A(f"s_add_u32 s27, s27, s{36+i}")
    A("s_mul_i32 s26, s26, 0x01010101")
    A("s_mul_i32 s27, s27, 0x01010101")
    A("s_and_b32 s26, s26, s27")
    A("s_bitcmp1_b32 s26, 31")
    A("s_cbranch_scc1 L_go_ok")
    A(f"s_sub_u32 {sTO}, {sTO}, 1")
    A("s_sleep 32")
    A("s_cbranch_scc0 L_go")
    A("s_branch L_end")
    A("L_go_ok:")
    stamp(19)
    A(f"s_or_b32 {sT0}, s44, s45")
    A(f"s_and_b32 {sT0}, {sT0}, {0 if force_slow else 0x20202020}")
    A(f"v_mov_b32 v15, {sT0}")
    A(f"ds_write_b32 v29, v15 offset:{L_FLAG}")
    A("L_q0:")
    A(qload)
    vmc(0)
    A(f"v_max3_u32 v14, v{vA}, v{vA+1}, v{vA+2}")
    A(f"v_max_u32 v14, v14, v{vA+3}")
    A("v_cmp_eq_u32 vcc, -1, v14")
    retry("L_q0", 16)
    A(f"ds_write_b128 {vL16}, {vr(vA,4)} offset:{L_Q}")
    A("s_branch L_nostage")
    A("L_barW:")
    A("s_barrier")
    A("L_nostage:")
    for l in [f"s_lshl_b32 {sT0}, {sW}, 9", f"v_lshl_add_u32 {vOPw}, {vLane}, 5, {sT0}", f"v_and_b32 {vMLr}, 56, {v8L}",
              f"s_lshl_b32 {sO1}, {sHead}, 11", f"s_lshl_b32 {sT0}, {sC}, 5", f"s_add_u32 {sO1}, {sO1}, {sT0}",
              f"v_lshrrev_b32 v28, 3, {vLane}", f"v_lshrrev_b32 {vOpub}, 1, {vMLr}",
              f"v_lshl_add_u32 {vOpub}, v28, 8, {vOpub}", f"v_and_b32 v28, 6, v28",
              f"s_lshl_b32 {sO2}, {sHead}, 5", f"s_lshl_b32 {sT0}, {sC}, 2", f"s_add_u32 {sO2}, {sO2}, {sT0}", f"s_add_u32 {sO2}, {sO2}, {AB}",
              f"v_add_lshl_u32 {vAoff}, v28, {vLane}, 2", f"v_lshlrev_b32 v28, 30, {vLane}",
              f"v_and_b32 {vAoff}, 28, {vAoff}", f"v_and_b32 v28, 0x40000000, v28", f"v_lshl_add_u32 {vYoff}, {vLane}, 1, v28",
              f"s_lshl_b32 {sP1}, {sX}, 13", f"s_lshl_b32 {sT0}, {sW}, 10", f"s_add_u32 {sP1}, {sP1}, {sT0}",
              f"s_lshl_b32 {sP2}, {sX}, 7", f"s_lshr_b32 {sT0}, {sW}, 1", f"s_lshl_b32 {sT0}, {sT0}, 5",
              f"s_add_u32 {sP2}, {sP2}, {sT0}", f"s_add_u32 {sP2}, {sP2}, {AB}",
              f"s_mul_i32 {sY}, {sX}, 1280", f"s_lshl_b32 {sT0}, {sJ}, 7", f"s_add_u32 {sY}, {sY}, {sT0}", f"s_add_u32 {sY}, {sY}, {YB}"]:
        A(l)
    zeroS()
    vmc(12)
    A("L_ql:")
    A(f"ds_read_b128 {vr(vA,4)}, {vL16} offset:{L_Q}")
    A(f"ds_read_b32 v15, v29 offset:{L_FLAG}")
    lgk(0)
    A(f"v_cmp_eq_u32 vcc, -1, v{vA}")
    if 'noq' not in dbg: retry("L_ql", 4)
    A(f"v_readfirstlane_b32 {sFast}, v15")
    A("s_branch L_qpoll_ok")
    A("L_vland:")
    for u in range(8):
        vmc(14-2*u)
        vperm(u)
        if u == 3: zeroO()
    stamp(9)
    A("s_nop 0")
    A("s_branch L_pv")
    A("L_pfw:")
    A("s_barrier")
    A(f"buffer_load_dword {vDum}, v25, {srd('WO')}, {sT1} offen {pfl}")
    A(f"buffer_load_dword {vDum}, v26, {srd('WP')}, {sA2} offen {pfl}")
    if warm: warm_o(3)
    A("s_branch L_pfw_done")
    A("L_wo_dma:")
    dma128("v20", 1280, None)
    A("v_xor_b32 v21, 64, v20")
    A(f"s_lshl_b32 {sT0}, {sX}, 9")
    A(f"s_lshl_b32 {sT1}, {sW}, 6")
    A(f"s_add_u32 {sT0}, {sT0}, {sT1}")
    A(f"s_mul_i32 {sT0}, {sT0}, 1280")
    A(f"s_lshl_b32 {sT1}, {sJ}, 7")
    A(f"s_add_u32 {sT1}, {sT0}, {sT1}")
    A(f"s_lshl_b32 {sT3}, {sW}, 13")
    for k in range(8):
        A(f"s_add_u32 m0, {sT3}, {L_R1 + k*1024}")
        if k: A(f"s_add_u32 {sT1}, {sT1}, {8*1280}")
        A(f"buffer_load_dwordx4 v{20 + (k&1)}, {srd('WO')}, {sT1} offen {dfl} lds")
    rd = wo_tr()
    vmc(0)
    for l in rd: A(l)
    lgk(12)
    A("s_branch L_wo_have")
    for t in tails:
        for l in t: A(l)

    ref = open("cdna_kernels/" + NAME + ".s.ref").read().split("\n")
    head = [l for l in ref if l.startswith(";") and "@launch" not in l and "Override launch" not in l and "grid=ceil" not in l]
    out = "\n".join(head) + f"\n; @launch grid=(256,1,1) block=(512,1,1) lds={LDS_BYTES}\n"
    out += f""".amdgcn_target "amdgcn-amd-amdhsa--gfx950"
.text
.globl {NAME}_kernel
.p2align 8
.type {NAME}_kernel,@function
{NAME}_kernel:
"""
    out += A.text()
    out += f""".section .rodata,"a"
.p2align 6
.amdhsa_kernel {NAME}_kernel
  .amdhsa_next_free_vgpr 256
  .amdhsa_next_free_sgpr 102
  .amdhsa_accum_offset 256
  .amdhsa_group_segment_fixed_size 0
  .amdhsa_kernarg_size 96
  .amdhsa_user_sgpr_count 2
  .amdhsa_user_sgpr_kernarg_segment_ptr 1
  .amdhsa_system_sgpr_workgroup_id_x 1
  .amdhsa_float_denorm_mode_32 3
.end_amdhsa_kernel
"""
    return out

if __name__ == "__main__":
    kw = {}
    dst = "cdna_kernels/" + NAME + ".s"
    for a in sys.argv[1:]:
        k, v = a.split("=", 1)
        if k == "out": dst = v
        else:
            try: kw[k] = int(v)
            except ValueError: kw[k] = v
    open(dst, "w").write(gen(**kw))
    print("wrote", dst)
```

```python
import sys, math
from asmlib import Asm

NAME = "interleave_layers__mha_block_cached__glu_gated_swiglu__decode"

LSTRIDE = 0x24000
OB, YB, XB, HB, AB, TK = 0x0, 0x10000, 0x20000, 0x22800, 0x23800, 0x23c00
QB0, QB1 = 0x48000, 0x50000
WS_COMM = 0x58000
PRB = 0x60000
WS_STAMP = 0x100000
OOB = 0x7f000000
L_RED = 0
L_XI = 2048
L_ST = L_XI + 2560
L_ML = L_ST + 5120
L_OP = L_ML + 640
L_ZERO = L_OP + 4096
L_Q = L_ZERO + 64
L_FLAG = L_Q + 1024
L_ONE = L_FLAG + 64
L_WQ = 17408
assert L_ONE + 1280 <= L_WQ
L_R1 = L_WQ + 20480
L_W2 = L_R1 + 65536
LDS_BYTES = L_W2 + 28672
sX, sJ, sW, sHead, sC, sKV, sL, sLay, sFast, sTO, sT0, sT1, sT2, sT3, sPL, sPH, sSI = \
    ["s%d" % i for i in range(3, 20)]
sV_ = "s20"; sM = "s21"; sA1 = "s22"; sA2 = "s23"; sHI = "s24"; sRole = "s25"; sMode = "s46"; sNCH = "s47"; sNear = "s84"
sO1, sO2, sP1, sP2, sY, sR = "s36", "s37", "s38", "s39", "s40", "s41"
P = lambda i: (36 + 2*i, 37 + 2*i)
SRD = dict(K=60, V=64, WS=68, WQ=72, WO=76, W2=80, X=84, OUT=88, WP=92)
def srd(n): return f"s[{SRD[n]}:{SRD[n]+3}]"
vLane, vR0, vQ64, vIdx, vXp, vD4, vML, vST = ["v%d" % i for i in range(8)]
vA = 8
vKoff, vVoff = "v12", "v13"
v8L = "v12"
vOPw, vMLr, vOpub, vAoff, vYoff = "v18", "v19", "v24", "v27", "v13"
vL16 = "v30"; vDum = "v31"
S0 = 32; K0 = 64; V0 = 128; L0 = 192
def vr(a, n): return f"v[{a}:{a+n-1}]" if n > 1 else f"v{a}"
DPPF = "row_mask:0xf bank_mask:0xf"
steps = [f"quad_perm:[1,0,3,2] {DPPF}", f"quad_perm:[2,3,0,1] {DPPF}", f"row_half_mirror {DPPF}", f"row_mirror {DPPF}",
         "row_bcast:15 row_mask:0xa bank_mask:0xf", "row_bcast:31 row_mask:0xc bank_mask:0xf"]
SMF = "v_smfmac_f32_16x16x64_bf16"
LOG2E = math.log2(math.e)

def gen(stamps=0, cyc=(), amp="", dbg="", force_slow=False, nt="nt", pfl="", dfl="",
        sl_q=0, sl_o=0, sl_y=0, sl_h=0, sl_x=2, d_y=22, d_z=4, d_f=3, pd=2, gap=1, npf13=0, gopos=12, rot=1, warm=1,
        prio=1, xlate=1, qbar=1, d_q=0, pdq=2, gapq=2, lateprio=0, pdo=1, b1='kv', dyn=1, woearly=1, pfw2=1, npfo=4, pf20=1, cpf=4, freerun=0, dual=1, pol=-1, racepos=1, rfl='', ampx=10):
    A = Asm()
    def mark(name, lay=None):
        if not amp or name not in amp.split(","): return
        r = (100, 0)[amp.split(",").index(name)]
        if lay is not None:
            A(f"s_cmp_eq_u32 {sL}, {lay}"); A(f"s_cbranch_scc0 L_mark_{name}")
        A(f"s_memrealtime s[{r}:{r+1}]"); A("s_waitcnt lgkmcnt(0)")
        if lay is not None: A(f"L_mark_{name}:")
    def stamp(code, fine=False):
        if not stamps: return
        if stamps == 2 and code not in (0, 10, 14, 63): return
        if stamps == 3 and code not in cyc: return
        if fine and stamps != 3: return
        A("s_memtime s[100:101]" if stamps == 3 else "s_memrealtime s[100:101]")
        A("s_waitcnt lgkmcnt(0)")
        A(f"s_add_u32 m0, {sSI}, {code}")
        A(f"v_writelane_b32 {vST}, s100, m0")
    def lgk(n): A(f"s_waitcnt lgkmcnt({n})")
    def vmc(n): A(f"s_waitcnt vmcnt({n})")
    def setprio(n):
        if prio: A(f"s_setprio {n}")
    def mksrd(n, ptr, size):
        b = SRD[n]; lo, hi = P(ptr)
        A(f"s_mov_b32 s{b}, s{lo}")
        A(f"s_and_b32 s{b+1}, s{hi}, 0xffff")
        A(f"s_mov_b32 s{b+2}, {size}")
        A(f"s_mov_b32 s{b+3}, 0x20000")
    def retry(label, sleep):
        A(f"s_cbranch_vccz {label}_ok")
        A(f"s_sub_u32 {sTO}, {sTO}, 1")
        if sleep: A(f"s_sleep {sleep}")
        A(f"s_cbranch_scc0 {label}")
        A("s_branch L_end")
        A(f"{label}_ok:")
    def missing(regs):
        regs = list(regs)
        if len(regs) == 1:
            A(f"v_cmp_eq_u32 vcc, -1, {regs[0]}"); return
        t = ["v28", "v29"]; k = 0; cur = []
        while len(regs) >= 3 and k < 2:
            A(f"v_max3_u32 {t[k]}, {regs[0]}, {regs[1]}, {regs[2]}"); regs = regs[3:]; cur.append(t[k]); k += 1
        regs = cur + regs
        while len(regs) > 1:
            if len(regs) >= 3:
                A(f"v_max3_u32 v28, {regs[0]}, {regs[-1]}, {regs[-2]}"); regs = ["v28"] + regs[1:-2]
            else:
                A(f"v_max_u32 v28, {regs[0]}, {regs[1]}"); regs = ["v28"]
        A("v_cmp_eq_u32 vcc, -1, v28")
    def poll(label, loads, regs, sleep, first_issued=False, depth=None):
        depth = pd if depth is None else depth
        n = len(loads)
        for k in range(1 if first_issued else 0, depth - 1):
            for l in loads: A(l)
            if gap: A(f"s_sleep {gap}")
        if first_issued and depth == 1: A(f"s_branch {label}_chk")
        A(f"{label}:")
        for l in loads: A(l)
        A(f"{label}_chk:")
        vmc(n*(depth-1))
        missing(regs)
        retry(label, sleep)
    tails = []
    def store_intra(label, stores, scc_ready=False):
        if not scc_ready: A(f"s_cmp_eq_u32 {sFast}, 0")
        A(f"s_cbranch_scc1 {label}_slow")
        for s in stores: A(s)
        A(f"{label}_done:")
        tails.append([f"{label}_slow:"] + [s + " sc1" if s.startswith("buffer") else s for s in stores] + [f"s_branch {label}_done"])
    def packpair(dst, val, tmp, fill=""):
        A(fill)
        A(f"v_mov_b32_dpp {tmp}, {val} quad_perm:[1,1,3,3] {DPPF}")
        A(f"v_cvt_pk_bf16_f32 {dst}, {val}, {tmp}")
        A(f"v_min_u32 {dst}, -2, {dst}")
    def kload(T):
        if T: A(f"s_add_u32 {sT0}, {sKV}, {T*4096}")
        so = sT0 if T else sKV
        for t in range(4):
            A(f"buffer_load_dwordx4 {vr(K0+16*T+4*t,4)}, {vKoff}, {srd('K')}, {so} offen offset:{64*t} {nt}")
    def vload(j0, j1):
        if j0 == 8: A(f"s_add_u32 {sT0}, {sKV}, 8192")
        for j in range(j0, j1):
            A(f"buffer_load_dwordx4 {vr(L0+4*j,4)}, {vVoff}, {srd('V')}, {sKV if j < 8 else sT0} offen offset:{(j&7)*256} {nt}")
    def vperm(u):
        for q in range(4):
            a, b = L0 + 8*u + q, L0 + 8*u + 4 + q
            A(f"v_perm_b32 v{V0+8*(2*q)+u}, v{b}, v{a}, {sPL}")
            A(f"v_perm_b32 v{V0+8*(2*q+1)+u}, v{b}, v{a}, {sPH}")
    def dma128(dst, rowbytes, par):
        A(f"v_lshrrev_b32 {dst}, 3, {vLane}")
        A(f"v_mul_u32_u24 {dst}, {rowbytes}, {dst}")
        A(f"v_and_b32 v28, 0x70, {vL16}")
        A(f"v_and_b32 v29, 32, {vLane}")
        A(f"v_xor_b32 v28, v28, v29")
        if par is not None:
            A(f"s_and_b32 {sT0}, {par}, 1"); A(f"s_lshl_b32 {sT0}, {sT0}, 6")
            A(f"v_xor_b32 v28, {sT0}, v28")
        A(f"v_add_u32 {dst}, {dst}, v28")
    def tr128(dst, b5rows):
        A(f"v_lshlrev_b32 {dst}, 7, {vR0}")
        A(f"v_and_b32 v28, 12, {vR0}")
        A(f"v_lshl_add_u32 {dst}, v28, 3, {dst}")
        A(f"v_and_b32 v28, 3, {vLane}")
        A(f"v_lshl_add_u32 {dst}, v28, 3, {dst}")
        if b5rows:
            A(f"v_and_b32 v28, 32, {vLane}")
            A(f"v_lshl_add_u32 {dst}, v28, {int(math.log2(b5rows*128//32))}, {dst}")
    def qpub_off(dst, tmp, v_is_lane):
        A(f"v_and_b32 {dst}, 2, {vLane}"); A(f"v_lshlrev_b32 {dst}, 3, {dst}")
        A(f"v_and_b32 {tmp}, 12, {vLane}"); A(f"v_add_u32 {dst}, {dst}, {tmp}")
        if v_is_lane:
            A(f"v_and_b32 {tmp}, 48, {vLane}"); A(f"v_lshl_add_u32 {dst}, {tmp}, 4, {dst}")
    def qpub_cu(dst, tmp):
        A(f"s_lshl_b32 {dst}, {sHead}, 10")
        A(f"s_lshl_b32 {tmp}, {sC}, 5"); A(f"s_add_u32 {dst}, {dst}, {tmp}")
    def warm_o(w):
        A(f"s_lshl_b32 {sT0}, {sX}, 13")
        A(f"s_add_u32 {sT0}, {sT0}, {sLay}")
        A(f"s_lshl_b32 {sT2}, {sX}, 7")
        A(f"s_add_u32 {sT2}, {sT2}, {sLay}")
        A(f"s_add_u32 {sT2}, {sT2}, {AB}")
        A(f"s_cmp_lt_u32 {sR}, 2")
        A(f"s_cselect_b32 {sT3}, {sW}, 99")
        A(f"s_cmp_eq_u32 {sT3}, {w}")
        A(f"s_cselect_b32 {sT0}, {sT0}, {OOB}")
        A(f"s_cselect_b32 {sT2}, {sT2}, {OOB}")
        A(f"v_lshlrev_b32 v28, 7, {vLane}")
        A(f"buffer_load_dword {vDum}, v28, {srd('WS')}, {sT0} offen sc1")
        A(f"buffer_load_dword {vDum}, off, {srd('WS')}, {sT2} sc1")
    def stats_and_mfma(mf, nA, fill):
        A("v_mov_b32 v42, 1e-05")
        A(f"s_cmp_eq_u32 {sFast}, 0")
        lgk(nA+1)
        A("v_pk_add_f32 v[32:33], v[32:33], v[34:35]")
        A("v_pk_add_f32 v[36:37], v[36:37], v[38:39]")
        lgk(nA)
        A("v_pk_add_f32 v[32:33], v[32:33], v[40:41]")
        A("v_pk_add_f32 v[32:33], v[32:33], v[36:37]")
        for i, st in enumerate(steps):
            if i < nA:
                lgk(nA-1-i); mf(i)
            A(f"v_add_f32_dpp v32, v32, v32 {st}")
            A(f"v_add_f32_dpp v33, v33, v33 {st}")
        tail = [f"v_mul_f32 v32, {1/640!r}, v32", f"v_fmamk_f32 v33, v33, {1/640!r}, v42", "v_fma_f32 v33, -v32, v32, v33",
                "v_max_f32 v33, v42, v33", "v_rsq_f32 v33, v33", f"v_readlane_b32 {sT0}, v32, 63"]
        fill = list(fill)
        for t in tail:
            A(t)
            if fill: A(fill.pop(0))
        for f in fill: A(f)

    A("s_cmp_ge_u32 s2, 256")
    A("s_cbranch_scc1 L_exit")
    mark("start")
    A("s_load_dwordx16 s[36:51], s[0:1], 0")
    A("s_load_dwordx8 s[52:59], s[0:1], 64")
    if stamps:
        A(f"s_mov_b32 {sSI}, 0"); A(f"v_mov_b32 {vST}, 0")
        stamp(0)
    if cpf:
        A("s_getpc_b64 s[26:27]")
        A("s_and_b32 s26, s26, 0xffffff00")
        A("s_lshr_b32 s28, s2, 3")
        A(f"v_and_b32 v15, {cpf-1}, v0")
        A("v_lshlrev_b32 v15, 12, v15")
        A("s_lshl_b32 s28, s28, 7")
        A("v_add_u32 v15, s28, v15")
        A(f"v_min_u32 v15, L_code_end-{NAME}_kernel-4, v15")
        A("v_cmp_gt_u32 vcc, 64, v0")
        A("s_cbranch_vccz L_nocpf")
        A(f"global_load_dword {vDum}, v15, s[26:27]")
        A("L_nocpf:")
    A("v_lshrrev_b32 v14, 6, v0")
    A(f"v_lshlrev_b32 {vD4}, 2, v0")
    A(f"v_and_b32 {vLane}, 63, v0")
    A(f"v_readfirstlane_b32 {sW}, v14")
    A(f"s_and_b32 {sX}, s2, 7")
    A(f"s_lshr_b32 {sJ}, s2, 3")
    A(f"s_lshr_b32 {sT0}, {sJ}, 3")
    A(f"s_lshl_b32 {sHead}, {sX}, 2")
    A(f"s_add_u32 {sHead}, {sHead}, {sT0}")
    A(f"s_and_b32 {sC}, {sJ}, 7")
    A(f"s_lshl_b32 {sKV}, {sHead}, 20")
    A(f"s_lshl_b32 {sT0}, {sC}, 17")
    A(f"s_add_u32 {sKV}, {sKV}, {sT0}")
    A(f"s_lshl_b32 {sT0}, {sW}, 14")
    A(f"s_add_u32 {sKV}, {sKV}, {sT0}")
    A(f"v_and_b32 v14, 15, {vLane}")
    A(f"v_lshrrev_b32 v15, 4, {vLane}")
    A(f"v_lshlrev_b32 {vKoff}, 8, v14")
    A(f"v_lshl_add_u32 {vKoff}, v15, 4, {vKoff}")
    A(f"v_lshlrev_b32 {vVoff}, 11, v15")
    A(f"v_lshl_add_u32 {vVoff}, v14, 4, {vVoff}")
    A(f"v_lshlrev_b32 {vL16}, 4, {vLane}")
    dma128("v18", 8192, sW)
    A(f"s_lshr_b32 {sT1}, {sC}, 1")
    A(f"s_mul_i32 {sT1}, {sT1}, {160*8192}")
    A(f"s_lshl_b32 {sT2}, {sW}, 16")
    A(f"s_add_u32 {sT1}, {sT1}, {sT2}")
    A(f"s_lshl_b32 {sT2}, {sHead}, 8")
    A(f"s_add_u32 {sT1}, {sT1}, {sT2}")
    A(f"s_and_b32 {sT2}, {sC}, 1")
    A(f"s_lshl_b32 {sT2}, {sT2}, 7")
    A(f"s_add_u32 {sT1}, {sT1}, {sT2}")
    A(f"s_lshl_b32 {sT2}, {sW}, 10")
    setprio(3)
    lgk(0)
    mark("karg")
    if amp.startswith("start,stag"):
        A(f"s_cmp_eq_u32 {sW}, 3"); A("s_cbranch_scc0 L_nostag")
        A(f"s_and_b32 s28, {sJ}, 15"); A("s_cbranch_scc1 L_nostag")
        A("s_mov_b32 s28, s100"); A("s_not_b32 s29, s100")
        A(f"s_atomic_umax s28, s[{P(10)[0]}:{P(10)[1]}], 64")
        A(f"s_atomic_umax s29, s[{P(10)[0]}:{P(10)[1]}], 68")
        A("L_nostag:")
    mksrd("WS", 11, WS_COMM); mksrd("X", 0, 1280); mksrd("WQ", 3, 640*4096*2)
    mksrd("K", 1, 1 << 25); mksrd("V", 2, 1 << 25)
    A(f"s_cmp_eq_u32 {sW}, {99 if 'noclear' in dbg else 0}")
    A("s_cbranch_scc0 L_noclear")
    if pol < 0:
        A(f"s_and_b32 {sT0}, s2, 63")
        A(f"s_lshl_b32 {sT0}, {sT0}, 7")
        A(f"s_lshr_b32 {sT3}, s2, 6")
        A(f"s_lshl_b32 {sT3}, {sT3}, 14")
        A(f"s_add_u32 {sT0}, {sT0}, {sT3}")
        A(f"s_and_b32 s31, {sJ}, 1")
        A(f"s_lshl_b32 {sT3}, s31, 13")
        A(f"s_add_u32 {sT0}, {sT0}, {sT3}")
        A(f"s_add_u32 {sT0}, {sT0}, {PRB}")
        A(f"s_xor_b32 {sT3}, {sT0}, 8192")
        A(f"s_load_dword s30, s[{P(11)[0]}:{P(11)[1]}], {sT0} {rfl}")
        A(f"s_load_dwordx2 s[28:29], s[{P(11)[0]}:{P(11)[1]}], {sT3} {rfl}")
        if racepos == 0:
            lgk(2)
            A("s_getreg_b32 s32, hwreg(HW_REG_IB_STS, 8, 4)")
    for r in range(24, 28): A(f"v_mov_b32 v{r}, -1")
    A(f"s_lshr_b32 {sT3}, s2, 7")
    A(f"s_mul_i32 {sT3}, {sT3}, {LSTRIDE}")
    A(f"s_and_b32 {sM}, s2, 127")
    A(f"s_lshl_b32 {sT0}, {sM}, 10")
    A(f"s_add_u32 {sT0}, {sT0}, {sT3}")
    A(f"buffer_store_dwordx4 v[24:27], {vL16}, {srd('WS')}, {sT0} offen sc1")
    A(f"s_lshl_b32 {sT0}, {sM}, 7")
    A(f"s_add_u32 {sT0}, {sT0}, {sT3}")
    A(f"s_add_u32 {sT0}, {sT0}, {XB}")
    A(f"v_and_b32 v21, 0x7c, {vD4}")
    A(f"buffer_store_dword v24, v21, {srd('WS')}, {sT0} offen sc1")
    qpub_off("v21", "v22", True)
    qpub_cu(sT0, sT3)
    A(f"s_add_u32 {sT0}, {sT0}, {QB0}")
    A(f"buffer_store_dword v24, v21, {srd('WS')}, {sT0} offen sc1")
    A(f"s_add_u32 {sT0}, {sT0}, {QB1 - QB0}")
    A(f"buffer_store_dword v24, v21, {srd('WS')}, {sT0} offen sc1")
    if pol < 0 and racepos == 1:
        lgk(2)
        A("s_getreg_b32 s32, hwreg(HW_REG_IB_STS, 8, 4)")
    A("L_noclear:")
    A(f"buffer_load_dword {vXp}, {vD4}, {srd('X')}, 0 offen")
    for k in range(3):
        if k == 2:
            A(f"s_cmp_lt_u32 {sW}, 4"); A("s_cbranch_scc0 L_wq_done")
        A(f"s_add_u32 m0, {sT2}, {L_WQ + k*8192}")
        if k: A(f"s_add_u32 {sT1}, {sT1}, {8*65536}")
        A(f"buffer_load_dwordx4 v18, {srd('WQ')}, {sT1} offen {nt} lds")
    A("L_wq_done:")
    def batch1():
        setprio(0)
        kload(0)
        if b1 == 'kv': vload(0, 4)
        else: kload(1)
    A(f"s_cmp_eq_u32 {sW}, 0")
    A("s_cbranch_scc1 L_nob1")
    batch1()
    A("L_nob1:")
    mksrd("WO", 4, 4096*640*2); mksrd("W2", 8, 1728*640*2); mksrd("OUT", 9, 1280)
    mksrd("WP", 6, 640*1728*2)
    A(f"s_mov_b32 {sTO}, 0x80000")
    A(f"s_mov_b32 {sL}, 0")
    A(f"s_mov_b32 {sLay}, 0")
    A(f"s_mov_b32 {sFast}, 0")
    A(f"s_mov_b32 {sMode}, 0")
    A(f"s_mov_b32 {sPL}, 0x05040100")
    A(f"s_mov_b32 {sPH}, 0x07060302")
    A(f"s_mov_b32 {sHI}, 0xffff0000")
    A(f"s_cmp_eq_u32 {sX}, 7")
    A(f"s_cselect_b32 {sNCH}, {4*16}, {12*16}")
    A(f"s_mov_b32 {sRole}, 2")
    A(f"s_mov_b32 {sR}, 31")
    A(f"v_and_b32 v20, 3, {vLane}")
    A(f"v_lshlrev_b32 {vQ64}, 6, v15")
    A(f"v_lshl_add_u32 {vQ64}, v20, 4, {vQ64}")
    A(f"v_and_b32 {vR0}, 8, {vLane}")
    A(f"v_bfe_u32 v23, {vLane}, 4, 1")
    A(f"v_lshl_add_u32 {vR0}, v23, 2, {vR0}")
    A(f"v_bfe_u32 v23, {vLane}, 2, 1")
    A(f"v_add_u32 {vR0}, {vR0}, v23")
    A(f"v_and_b32 v17, 1, {vLane}")
    A(f"v_mul_u32_u24 {vIdx}, 0xaaaa, v17")
    A(f"v_bfe_u32 v23, {vLane}, 1, 1")
    A(f"v_mul_u32_u24 v23, 0xaaaa, v23")
    A(f"v_lshl_add_u32 {vIdx}, v23, 16, {vIdx}")
    A(f"v_add_u32 {vIdx}, 0x44444444, {vIdx}")
    A(f"v_lshl_add_u32 {vML}, {vLane}, 3, 64")
    A(f"s_lshl_b32 {sT0}, {sW}, 3")
    A(f"v_writelane_b32 {vML}, {sT0}, 63")
    A(f"v_mov_b32 v45, {vD4}")
    A(f"v_lshlrev_b32 v46, 1, {vD4}")
    A(f"v_mov_b32 v16, 0")
    A(f"v_lshlrev_b32 v17, 2, v14")
    A(f"ds_write_b32 v17, v16 offset:{L_ZERO}")
    A(f"v_mov_b32 v19, 0x3f803f80")
    A(f"v_min_u32 v20, 1276, {vD4}")
    A(f"ds_write_b32 v20, v19 offset:{L_ONE}")
    A(f"v_mov_b32 v25, {OOB}")
    A(f"v_mov_b32 v26, {OOB}")
    A(f"v_mov_b32 v24, {OOB}")
    A(f"v_mov_b32 v27, {OOB}")
    A(f"v_mov_b32 v{L0+62}, {OOB}")
    A(f"s_cmp_eq_u32 {sW}, 0")
    A("s_cbranch_scc0 L_noarr")
    A("v_mov_b32 v29, -1")
    A(f"ds_write_b32 {vL16}, v29 offset:{L_Q}")
    A(f"ds_write_b32 v16, v29 offset:{L_FLAG+4}")
    vmc(3)
    A("L_noarr:")
    if 'nowaitA' not in dbg: vmc(8)
    T = 56; GD = 40; GA = 48
    def xwrite():
        A(f"ds_write_b32 v45, {vXp} offset:{L_XI}")
        A(f"v_lshlrev_b32 v{GD}, 16, {vXp}")
        A(f"v_and_b32 v{GD+1}, {sHI}, {vXp}")
        A(f"v_mul_f32 v{GD+3}, v{GD}, v{GD}")
        A(f"v_add_f32 v{GD+2}, v{GD}, v{GD+1}")
        A(f"v_fmac_f32 v{GD+3}, v{GD+1}, v{GD+1}")
        A(f"ds_write_b64 v46, {vr(GD+2,2)} offset:{L_ST}")
    stamp(1)
    A(f"s_cmp_lt_u32 {sW}, 5")
    A("s_cbranch_scc0 L_barA")
    xwrite()
    A(f"s_cmp_eq_u32 {sW}, 0")
    A("s_cbranch_scc0 L_barA")
    A(f"s_getreg_b32 {sT0}, hwreg(HW_REG_XCC_ID, 0, 4)")
    A(f"s_mul_i32 s27, {sT0}, {sT0}")
    A(f"s_lshl_b32 s27, s27, 16")
    A(f"s_or_b32 s27, s27, {sT0}")
    A(f"s_lshl_b32 s85, s27, 5")
    if pol < 0:
        A(f"s_lshr_b32 {sT0}, {sT0}, 2")
        A(f"s_lshr_b32 s26, s32, 1")
        A(f"s_xnor_b32 s26, s26, s31")
        A(f"s_xor_b32 s26, s26, {sT0}")
        A(f"s_and_b32 s26, s26, 1")
        if stamps: A(f"v_writelane_b32 {vST}, s26, 61"); A(f"v_writelane_b32 {vST}, s32, 60")
        A(f"s_lshl_b32 s26, s26, 16")
        A(f"s_or_b32 s26, s26, 1")
    else:
        A(f"s_mov_b32 s26, {1 + (pol << 16)}")
    A(f"s_and_b32 {sT0}, {sX}, 4")
    A(f"s_mul_i32 {sT0}, {sT0}, 24")
    A(f"s_lshl_b32 {sT3}, {sX}, 3")
    A(f"s_add_u32 {sT0}, {sT0}, {sT3}")
    lgk(0)
    A(f"s_atomic_add_x2 s[26:27], s[{P(10)[0]}:{P(10)[1]}], {sT0}")
    batch1()
    vmc(8)
    A("s_branch L_barA2")
    A("L_barA:")
    lgk(0)
    A("L_barA2:")
    A(f"s_cmp_ge_u32 {sW}, 4")
    A("s_barrier")
    A("s_cbranch_scc1 L_q_prep0")
    def zeroO():
        for e in range(8):
            A(f"v_mov_b32 v{L0+4*e}, 0"); A(f"v_mov_b32 v{L0+4*e+2}, 0")
    def zeroS():
        for Tt in range(4):
            for r in (0, 1, 6, 7): A(f"v_mov_b32 v{S0+8*Tt+r}, 0")
    qload = f"buffer_load_dwordx4 {vr(vA,4)}, {vL16}, {srd('WS')}, {sA1} offen sc1"
    A("L_stream:")
    A(f"s_lshl_b32 {sA1}, {sHead}, 10")
    A(f"s_add_u32 {sA1}, {sA1}, {QB0}")
    if b1 == 'kv': kload(1)
    kload(2); kload(3)
    def goload(fl):
        A(f"s_load_dwordx8 s[28:35], s[{P(10)[0]}:{P(10)[1]}], 0 {fl}")
        A(f"s_load_dwordx8 s[36:43], s[{P(10)[0]}:{P(10)[1]}], 128 {fl}")
    vload(4 if b1 == 'kv' else 0, 8); vload(8, gopos)
    A(f"s_cmp_eq_u32 {sW}, 0")
    A("s_cbranch_scc0 L_nogo")
    goload("")
    A("L_nogo:")
    vload(gopos, 16)
    A(f"v_lshlrev_b32 {v8L}, 3, {vLane}")
    stamp(7)
    A(f"v_mov_b32 v29, 0")
    A(f"s_cmp_lt_u32 {sW}, 4")
    A("s_cbranch_scc0 L_barW")
    A(f"s_cmp_eq_u32 {sW}, {99 if 'noq' in dbg else 0}")
    A("s_cbranch_scc0 L_nostage")
    A("s_branch L_go_chk")
    A("L_go:")
    goload("glc")
    A("L_go_chk:")
    lgk(0)
    A(f"s_lshl_b32 {sT0}, {sX}, 1")
    A(f"s_mov_b32 m0, {sT0}")
    A("s_add_u32 s26, s28, s30")
    A("s_movrels_b32 s44, s29")
    for i in range(2, 8): A(f"s_add_u32 s26, s26, s{28+2*i}")
    A("s_bitcmp1_b32 s26, 8")
    A("s_cbranch_scc1 L_go_ok")
    A(f"s_sub_u32 {sTO}, {sTO}, 1")
    A("s_sleep 32")
    A("s_cbranch_scc0 L_go")
    A("s_branch L_end")
    A("L_go_ok:")
    stamp(19)
    A("s_cmp_eq_u32 s44, s85")
    A(f"s_cselect_b32 {sT0}, {0 if force_slow else 1}, 0")
    A(f"s_cmp_gt_u32 s26, {128 << 16}")
    A("s_cselect_b32 s26, 2, 0")
    A(f"s_or_b32 {sT0}, {sT0}, s26")
    A(f"v_mov_b32 v15, {sT0}")
    A(f"ds_write_b32 v29, v15 offset:{L_FLAG}")
    A("L_q0:")
    A(qload)
    vmc(0)
    A(f"v_max3_u32 v14, v{vA}, v{vA+1}, v{vA+2}")
    A(f"v_max_u32 v14, v14, v{vA+3}")
    A("v_cmp_eq_u32 vcc, -1, v14")
    retry("L_q0", 16)
    A(f"ds_write_b128 {vL16}, {vr(vA,4)} offset:{L_Q}")
    A("s_branch L_nostage")
    A("L_barW:")
    A("s_barrier")
    A("L_nostage:")
    for l in [f"s_lshl_b32 {sT0}, {sW}, 9", f"v_lshl_add_u32 {vOPw}, {vLane}, 5, {sT0}", f"v_and_b32 {vMLr}, 56, {v8L}",
              f"s_lshl_b32 {sO1}, {sHead}, 11", f"s_lshl_b32 {sT0}, {sC}, 5", f"s_add_u32 {sO1}, {sO1}, {sT0}",
              f"v_lshrrev_b32 v28, 3, {vLane}", f"v_lshrrev_b32 {vOpub}, 1, {vMLr}",
              f"v_lshl_add_u32 {vOpub}, v28, 8, {vOpub}", f"v_and_b32 v28, 6, v28",
              f"s_lshl_b32 {sO2}, {sHead}, 5", f"s_lshl_b32 {sT0}, {sC}, 2", f"s_add_u32 {sO2}, {sO2}, {sT0}", f"s_add_u32 {sO2}, {sO2}, {AB}",
              f"v_add_lshl_u32 {vAoff}, v28, {vLane}, 2", f"v_lshlrev_b32 v28, 30, {vLane}",
              f"v_and_b32 {vAoff}, 28, {vAoff}", f"v_and_b32 v28, 0x40000000, v28", f"v_lshl_add_u32 {vYoff}, {vLane}, 1, v28",
              f"s_lshl_b32 {sP1}, {sX}, 13", f"s_lshl_b32 {sT0}, {sW}, 10", f"s_add_u32 {sP1}, {sP1}, {sT0}",
              f"s_lshl_b32 {sP2}, {sX}, 7", f"s_lshr_b32 {sT0}, {sW}, 1", f"s_lshl_b32 {sT0}, {sT0}, 5",
              f"s_add_u32 {sP2}, {sP2}, {sT0}", f"s_add_u32 {sP2}, {sP2}, {AB}",
              ]:
        A(l)
    zeroS()
    vmc(12 if b1 == 'kv' else 16)
    A("L_ql:")
    A(f"ds_read_b128 {vr(vA,4)}, {vL16} offset:{L_Q}")
    A(f"ds_read_b32 v15, v29 offset:{L_FLAG}")
    lgk(0)
    A(f"v_cmp_eq_u32 vcc, -1, v{vA}")
    if 'noq' not in dbg: retry("L_ql", 4)
    A(f"v_readfirstlane_b32 {sFast}, v15")
    A(f"s_getreg_b32 {sNear}, hwreg(HW_REG_XCC_ID, 2, 1)")
    A(f"s_lshr_b32 {sT0}, {sFast}, 1")
    A(f"s_xor_b32 {sNear}, {sNear}, {sT0}")
    A(f"s_lshl_b32 {sNear}, {sNear}, 13")
    A(f"s_and_b32 {sFast}, {sFast}, 1")
    A("s_branch L_qpoll_ok")

    A("L_g:")
    A(f"s_mul_i32 {sM}, {sX}, 1280")
    A(f"s_add_u32 {sM}, {sM}, {sLay}")
    A(f"s_add_u32 {sM}, {sM}, {XB}")
    A(f"s_cmp_eq_u32 {sMode}, 0")
    A(f"s_cselect_b32 {sT0}, 6, 7")
    A(f"s_cselect_b32 {sT1}, 63, 127")
    A(f"s_cselect_b32 {sT2}, {(2560 - LSTRIDE) & 0xffffffff}, 0")
    A(f"s_cselect_b32 {sT3}, 0, 1280")
    A(f"v_lshrrev_b32 v53, {sT0}, {vD4}")
    A(f"v_and_b32 v52, {sT1}, {vD4}")
    A(f"v_lshl_add_u32 v53, v53, 7, v52")
    A(f"s_add_u32 s28, {sT2}, {sLay}")
    A(f"s_add_u32 s28, s28, {YB}")
    A(f"s_add_u32 s28, s28, {sNear}")
    A(f"s_sub_u32 {sT2}, 2560, {sT3}")
    A(f"s_add_u32 s29, s28, {sT2}")
    for p in range(2, 8): A(f"s_add_u32 s{28+p}, s{26+p}, 16384")
    A(f"v_add_u32 v45, {sT3}, {vD4}")
    A(f"v_lshlrev_b32 v46, 1, v45")
    A(f"v_lshrrev_b32 v52, 1, {vLane}")
    A(f"v_xor_b32 v52, v52, {vLane}")
    A(f"v_and_b32 v52, 8, v52")
    A(f"v_and_b32 v54, 6, {vLane}")
    A(f"v_or_b32 v52, v52, v54")
    A("v_mov_b32 v55, 0x3f803f80")
    A("v_cmp_eq_u32 vcc, 0, v52")
    A(f"v_and_b32 v54, 1, {vLane}")
    A(f"v_mul_u32_u24 v54, 0x5555, v54")
    A(f"v_cndmask_b32 v{GA}, 0, v55, vcc")
    A(f"v_cndmask_b32 v{GA+1}, 0, v55, vcc")
    A("v_cmp_eq_u32 vcc, 4, v52")
    A(f"v_add_u32 v54, 0x8888, v54")
    A(f"v_cndmask_b32 v{GA+2}, 0, v55, vcc")
    A(f"v_cndmask_b32 v{GA+3}, 0, v55, vcc")
    A(f"s_cmp_eq_u32 {sMode}, 0")
    A("s_cbranch_scc0 L_g_x")
    A(f"s_sub_u32 {sM}, {sM}, {LSTRIDE}")
    poll("L_xpoll", [f"buffer_load_dword {vXp}, {vD4}, {srd('WS')}, {sM} offen sc1"], [vXp], sl_x, depth=1)
    stamp(4)
    if d_f: A(f"s_sleep {d_f}")
    if d_z > d_f:
        A(f"s_cmp_eq_u32 {sL}, 2"); A("s_cbranch_scc1 L_g_x"); A(f"s_sleep {d_z - d_f}")
    A("L_g_x:")
    yl = [f"buffer_load_dword v{T+p}, v53, {srd('WS')}, s{28+p} offen sc1" for p in range(8)]
    for l in yl: A(l)
    A(f"v_lshlrev_b32 v{GD}, 16, {vXp}")
    A(f"v_and_b32 v{GD+1}, {sHI}, {vXp}")
    A(f"s_cmp_eq_u32 {sL}, 0")
    A("s_cbranch_scc1 L_hook")
    A("L_ychk:")
    vmc(0)
    A("L_ychk2:")
    missing([f"v{T+p}" for p in range(8)])
    A("s_cbranch_vccnz L_yretry")
    t = ["L_yretry:", f"s_sub_u32 {sTO}, {sTO}, 1", "s_cbranch_scc1 L_end"]
    if sl_y: t.append(f"s_sleep {sl_y}")
    mk_ = [f"s[{r}:{r+1}]" for r in (26, 42, 44, 52, 54, 96, 98)] + ["vcc"]
    for p in range(8): t.append(f"v_cmp_eq_u32 {mk_[p]}, -1, v{T+p}")
    for p in range(8):
        t += [f"s_mov_b64 exec, {mk_[p]}", yl[p]]
    t.append("s_mov_b64 exec, -1")
    if freerun:
        if freerun > 1: t.append(f"s_waitcnt vmcnt({8*(freerun-1)})")
        t.append("s_branch L_ychk2")
    else:
        t.append("s_branch L_ychk")
    tails.append(t)
    if stamps:
        A(f"s_add_u32 {sSI}, {sSI}, {sMode}"); stamp(2); A(f"s_sub_u32 {sSI}, {sSI}, {sMode}")
    A(f"{SMF} {vr(GD,4)}, {vr(GA,4)}, {vr(T,8)}, v54")
    A(f"s_cmp_eq_u32 {sL}, 2")
    A(f"v_cvt_pk_bf16_f32 {vXp}, v{GD}, v{GD+1}")
    A("s_cbranch_scc1 L_final")
    xwrite()
    A("L_g_bar:")
    lgk(0)
    A("s_barrier")
    A(f"s_cmp_eq_u32 {sMode}, 1")
    A("s_cbranch_scc1 L_up_m")

    QW = L0 + 32; QD = L0 + 56; QC = L0 + 60; XA = 44; vQs = f"v{L0+61}"; vQp = f"v{L0+62}"
    def q_prep():
        A(f"s_sub_u32 {sV_}, {sW}, 4")
        tr128("v14", 16)
        A(f"s_lshl_b32 {sT0}, {sV_}, 5")
        A(f"v_xor_b32 v14, {sT0}, v14")
        for t in range(3):
            for rp in range(4):
                hb, rho = rp >> 1, rp & 1
                if t == 2 and hb: continue
                A(f"ds_read_b64_tr_b16 {vr(QW+8*t+2*rp,2)}, v14 offset:{L_WQ + (64*t+32*hb+2*rho)*128}")
        for r in range(4):
            A(f"v_mov_b32 v{QW+20+r}, 0"); A(f"v_mov_b32 v{QD+r}, 0")
        A(f"v_and_b32 v16, 48, {vLane}")
        A(f"v_and_b32 v15, 1, {vLane}")
        A(f"v_lshlrev_b32 v16, 1, v16")
        A(f"v_lshl_add_u32 v16, v15, 4, v16")
        A(f"s_lshr_b32 {sT0}, {sC}, 1")
        A(f"s_mul_i32 {sT0}, {sT0}, 320")
        A(f"v_add_u32 v16, {sT0}, v16")
        A(f"v_add_u32 v17, 256, v16")
        A(f"v_mov_b32 v15, {L_ZERO - L_XI}")
        A(f"v_cmp_gt_u32 vcc, 32, {vLane}")
        A(f"v_lshlrev_b32 {vQs}, 3, {vLane}")
        A("v_cndmask_b32 v17, v15, v17, vcc")
        A(f"v_and_b32 v15, 12, {vLane}")
        A("v_cmp_eq_u32 vcc, 4, v15")
        A(f"v_mov_b32 v15, {L_ONE - L_XI}")
        A("v_cndmask_b32 v16, v16, v15, vcc")
        A("v_cndmask_b32 v17, v17, v15, vcc")
        qpub_off(vQp, "v15", False)
        A(f"v_and_b32 v15, 0x31, {vLane}")
        A("v_cmp_eq_u32 vcc, 0, v15")
        A(f"v_mov_b32 v15, {OOB}")
        qpub_cu(sA2, sT0)
        A(f"v_cndmask_b32 {vQp}, v15, {vQp}, vcc")
        A(f"s_lshl_b32 {sT0}, {sV_}, 8"); A(f"s_add_u32 {sA2}, {sA2}, {sT0}")
        setprio(3)
    A(f"s_cmp_ge_u32 {sW}, 4")
    A("s_cbranch_scc0 L_att1")
    A("L_q_go:")
    stamp(5)
    for k in range(5): A(f"ds_read_b64 {vr(32+2*k,2)}, {vQs} offset:{L_ST + 512*k}")
    A(f"ds_read_b128 {vr(XA,4)}, v16 offset:{L_XI}")
    A(f"ds_read_b128 {vr(XA+4,4)}, v16 offset:{L_XI + 128}")
    A(f"ds_read_b128 {vr(XA+8,4)}, v17 offset:{L_XI}")
    stats_and_mfma(lambda i: A(f"{SMF} {vr(QD,4)}, {vr(XA+4*i,4)}, {vr(QW+8*i,8)}, {vIdx}"), 3,
                   [f"v_add_f32 v{QC}, v{QD}, v{QD+1}", f"v_add_f32 v{QD}, v{QD}, v{QD+1}", "", f"v_permlane16_swap_b32 v{QD}, v{QC}"])
    A(f"v_mul_f32 v33, {LOG2E/math.sqrt(128)!r}, v33")
    A(f"v_fma_f32 v{QD}, -{sT0}, v{QC}, v{QD}")
    A(f"v_readlane_b32 {sT1}, v33, 63")
    A(f"v_mov_b32_dpp v34, v{QD} quad_perm:[1,1,3,3] {DPPF}")
    A(f"v_mul_f32 v{QD}, {sT1}, v{QD}")
    A(f"v_mul_f32 v34, {sT1}, v34")
    A(f"v_cvt_pk_bf16_f32 v35, v{QD}, v34")
    A("v_min_u32 v35, -2, v35")
    store_intra("L_q_st", [f"buffer_store_dword v35, {vQp}, {srd('WS')}, {sA2} offen"], scc_ready=True)
    stamp(6)
    setprio(0)

    WW = L0 + 32; D0 = L0
    def wo_tr():
        tr128("v14", 16)
        A(f"s_lshl_b32 {sT0}, {sW}, 13")
        A(f"s_add_u32 {sT0}, {sT0}, {L_R1}")
        A(f"v_add_u32 v14, {sT0}, v14")
        for cb in range(1, 4): A(f"v_xor_b32 v{14+cb}, {32*cb}, v14")
        return [f"ds_read_b64_tr_b16 {vr(WW+8*cb+2*rp,2)}, v{14+cb} offset:{(32*(rp>>1)+2*(rp&1))*128}"
                for cb in (0, 2, 1, 3) for rp in range(4)]
    A(f"s_cmp_eq_u32 {sL}, 0")
    A("s_cbranch_scc1 L_stream")
    A("L_att1:")
    A(f"s_lshl_b32 {sA1}, {sHead}, 10")
    A(f"s_add_u32 {sA1}, {sA1}, {QB1}")
    def att_prep(tag):
        zeroS()
        A(f"s_cmp_eq_u32 {sRole}, 0")
        A(f"s_cbranch_scc0 L_notr{tag}")
        for l in wo_tr(): A(l)
        A(f"L_notr{tag}:")
    if qbar:
        A(f"s_cmp_ge_u32 {sW}, 4")
        A("s_cbranch_scc1 L_qlate")
        vmc(0)
        att_prep("a")
        if lateprio: setprio(1)
        A("s_barrier")
        if d_q: A(f"s_sleep {d_q}")
        A(qload)
        if pdq > 1: A(f"s_sleep {gapq}")
        A("s_branch L_qjoin")
        A("L_qlate:")
        A("s_barrier")
        if qbar == 1: A(qload)
        vmc(2 if qbar == 1 else 1)
        att_prep("b")
        if qbar == 2: A(qload)
        A("L_qjoin:")
    else:
        A(qload)
        att_prep("a")
    stamp(7)
    poll("L_qpoll", [qload], [f"v{vA+i}" for i in range(4)], sl_q, first_issued=True, depth=pdq)
    stamp(8)
    def tsum(Tt):
        b = S0 + 8*Tt
        return [f"v_add_f32 v{b}, v{b}, v{b+1}", f"v_add_f32 v{b+6}, v{b+6}, v{b+7}", f"v_add_f32 v{b}, v{b}, v{b+6}"]
    shadow = [[]]*8
    for idx, Tt in enumerate([0, 2, 1, 3]):
        for kp in range(2):
            A(f"{SMF} {vr(S0+8*Tt+4*kp,4)}, {vr(vA,4)}, {vr(K0+16*Tt+8*kp,8)}, {vIdx}")
            for l in shadow[2*idx+kp]: A(l)
    if prio and lateprio:
        A(f"s_cmp_ge_u32 {sW}, 4")
        A("s_cbranch_scc0 L_noprio")
        A("s_setprio 2")
        A("L_noprio:")
    for l in tsum(0) + tsum(2) + tsum(1): A(l)
    A(f"v_permlane32_swap_b32 v{S0}, v{S0+16}")
    for l in tsum(3): A(l)
    A(f"v_add_f32 v{S0}, v{S0}, v{S0+16}")
    A(f"v_permlane32_swap_b32 v{S0+8}, v{S0+24}")
    A(f"v_add_f32 v{S0+8}, v{S0+8}, v{S0+24}")
    A(f"v_permlane16_swap_b32 v{S0}, v{S0+8}")
    A(f"v_add_f32 v14, v{S0}, v{S0+8}")
    stamp(31, True)
    A(f"v_max_f32_dpp v16, v14, v14 {steps[0]}")
    for st in steps[1:]: A(f"v_max_f32_dpp v16, v16, v16 {st}")
    A(f"v_readlane_b32 {sM}, v16, 63")
    A(f"s_cmp_eq_u32 {sL}, 0")
    A(f"v_subrev_f32 v14, {sM}, v14")
    A("v_exp_f32 v14, v14")
    A(f"v_mov_b32_dpp v15, v14 quad_perm:[1,1,3,3] {DPPF}")
    vP = 20
    A(f"v_cvt_pk_bf16_f32 v{vP}, v14, v15")
    A(f"v_add_f32_dpp v17, v14, v14 {steps[0]}")
    for q in range(1, 4): A(f"v_mov_b32_dpp v{vP+q}, v{vP} row_ror:{16-4*q} {DPPF}")
    A("s_cbranch_scc1 L_vland")
    A("L_pv:")
    if lateprio == 2: setprio(1)
    stamp(32, True)
    for e in range(8):
        A(f"{SMF} {vr(L0+4*e,4)}, {vr(vP,4)}, {vr(V0+8*e,8)}, {vIdx} abid:1")
        if e < 5: A(f"v_add_f32_dpp v17, v17, v17 {steps[e+1]}")
        if e == 4: A(f"ds_write_b64 {vML}, v[16:17] offset:{L_ML}")
        if e >= 5: A(f"v_add_f32 v{S0+e-5}, v{L0+4*(e-5)}, v{L0+4*(e-5)+2}")
    def owrite():
        for e in range(3, 8): A(f"v_add_f32 v{S0+e}, v{L0+4*e}, v{L0+4*e+2}")
        A("s_mov_b64 exec, 0xffff")
        A(f"ds_write_b128 {vOPw}, {vr(S0,4)} offset:{L_OP}")
        A(f"ds_write_b128 {vOPw}, {vr(S0+4,4)} offset:{L_OP+16}")
        A("s_mov_b64 exec, -1")
    A(f"s_cmp_lt_u32 {sW}, 4")
    A("s_cbranch_scc1 L_early")
    lgk(0)
    stamp(33, True)
    A("s_barrier")
    stamp(34, True)
    owrite()
    A("L_noread:")
    lgk(0)
    stamp(10)
    A("s_barrier")
    if 'stop' in dbg: A("s_branch L_end")
    setprio(0)
    A(f"s_cmp_eq_u32 {sL}, 0")
    A("s_cbranch_scc1 L_rank")
    A("s_branch L_roles")
    A("L_early:")
    A("s_nop 3")
    owrite()
    A(f"s_cmp_eq_u32 {sL}, 0")
    A("s_cbranch_scc1 L_pfw")
    A("L_pfw_done:")
    A(f"s_cmp_eq_u32 {sW}, 0")
    lgk(0)
    A("s_barrier")
    A("s_cbranch_scc0 L_noread")
    A(f"ds_read_b64 v[16:17], {vMLr} offset:{L_ML}")
    lgk(0)
    A(f"v_max_f32_dpp v14, v16, v16 {steps[0]}")
    for st in steps[1:3]: A(f"v_max_f32_dpp v14, v14, v14 {st}")
    A("v_sub_f32 v16, v16, v14")
    A("v_exp_f32 v16, v16")
    stamp(10)
    A("s_barrier")
    mark("att1", 0)
    stamp(18, True)
    if 'stop' in dbg: A("s_branch L_end")
    for w in range(8): A(f"ds_read_b64 {vr(40+2*w,2)}, {v8L} offset:{L_OP + 512*w}")
    A("v_mul_f32 v17, v16, v17")
    A(f"s_cmp_eq_u32 {sFast}, 0")
    for st in steps[:3]: A(f"v_add_f32_dpp v17, v17, v17 {st}")
    A("v_rcp_f32 v15, v17")
    A("v_log_f32 v17, v17")
    A("v_mul_f32 v16, v16, v15")
    A("v_add_f32 v17, v17, v14")
    A("v_min_u32 v17, -2, v17")
    store_intra("L_a_st", ["s_mov_b64 exec, 1", f"buffer_store_dword v17, off, {srd('WS')}, {sO2}", "s_mov_b64 exec, -1"], scc_ready=True)
    lgk(6)
    A(f"v_mul_f32_dpp v20, v16, v40 row_newbcast:0 {DPPF}")
    A(f"v_mul_f32_dpp v21, v16, v41 row_newbcast:0 {DPPF}")
    A(f"v_mul_f32_dpp v22, v16, v42 row_newbcast:1 {DPPF}")
    A(f"v_mul_f32_dpp v23, v16, v43 row_newbcast:1 {DPPF}")
    for w in range(2, 8):
        if w in (2, 4, 6): lgk(6 - w)
        A(f"v_fmac_f32_dpp v{20+2*(w&1)}, v16, v{40+2*w} row_newbcast:{w} {DPPF}")
        A(f"v_fmac_f32_dpp v{21+2*(w&1)}, v16, v{41+2*w} row_newbcast:{w} {DPPF}")
    A("v_pk_add_f32 v[20:21], v[20:21], v[22:23]")
    A("v_cvt_pk_bf16_f32 v20, v20, v21")
    A("v_min_u32 v20, -2, v20")
    store_intra("L_o_st", [f"buffer_store_dword v20, {vOpub}, {srd('WS')}, {sO1} offen"], scc_ready=True)
    stamp(11)
    A(f"s_cmp_eq_u32 {sL}, 0")
    A("s_cbranch_scc1 L_pf2")
    A("L_roles:")
    A(f"s_cmp_eq_u32 {sRole}, 0")
    A("s_cbranch_scc0 L_notwo")

    aload = f"buffer_load_dword v14, {vAoff}, {srd('WS')}, {sP2} offen sc1"
    oload = f"buffer_load_dwordx4 {vr(vA,4)}, {vL16}, {srd('WS')}, {sP1} offen sc1"
    A(f"s_cmp_eq_u32 {sL}, 0")
    A("s_cbranch_scc1 L_wo_dma")
    A("L_wo_have:")
    A(aload); A(oload)
    for r in range(16): A(f"v_mov_b32 v{D0+r}, 0")
    stamp(12)
    poll("L_apoll", [aload, oload], ["v14"], sl_o, first_issued=True, depth=pdo)
    stamp(35, True)
    if pdo == 1: A(oload)
    A(f"v_max_f32_dpp v16, v14, v14 {steps[0]}")
    for st in steps[1:3]: A(f"v_max_f32_dpp v16, v16, v16 {st}")
    A("v_sub_f32 v15, v14, v16")
    A("v_exp_f32 v15, v15")
    A(f"v_add_f32_dpp v16, v15, v15 {steps[0]}")
    for st in steps[1:3]: A(f"v_add_f32_dpp v16, v16, v16 {st}")
    A("v_rcp_f32 v16, v16")
    lgk(0)
    missing([f"v{vA+i}" for i in range(4)])
    A("v_mul_f32 v15, v15, v16")
    A("s_cbranch_vccz L_opoll_ok")
    poll("L_opoll", [oload], [f"v{vA+i}" for i in range(4)], sl_o, first_issued=True, depth=pdo)
    stamp(13)
    cbo = [0, 2, 1, 3]
    for cb in cbo: A(f"{SMF} {vr(D0+4*cb,4)}, {vr(vA,4)}, {vr(WW+8*cb,8)}, {vIdx}")
    A(f"v_mov_b32_dpp v16, v15 row_newbcast:0 {DPPF}")
    A(f"v_mov_b32_dpp v17, v15 row_newbcast:1 {DPPF}")
    def wsum(cb):
        d = D0 + 4*cb
        A(f"v_add_f32 v{d}, v{d}, v{d+1}")
        A(f"v_add_f32 v{d+2}, v{d+2}, v{d+3}")
        A(f"v_mul_f32 v{d}, v16, v{d}")
        A(f"v_fmac_f32 v{d}, v17, v{d+2}")
    wsum(0); wsum(2); wsum(1)
    A(f"v_permlane32_swap_b32 v{D0}, v{D0+8}")
    wsum(3)
    A(f"v_add_f32 v{D0}, v{D0}, v{D0+8}")
    A(f"v_permlane32_swap_b32 v{D0+4}, v{D0+12}")
    A(f"v_add_f32 v{D0+4}, v{D0+4}, v{D0+12}")
    A(f"v_permlane16_swap_b32 v{D0}, v{D0+4}")
    A(f"v_add_f32 v{D0}, v{D0}, v{D0+4}")
    A(f"ds_write_b32 {vD4}, v{D0} offset:{L_RED}")
    A(f"s_cmp_eq_u32 {sW}, 0")
    lgk(0)
    stamp(19, True)
    if stamps == 3: A(f"s_cmp_eq_u32 {sW}, 0")
    A("s_barrier")
    A("s_cbranch_scc0 L_wo_done")
    stamp(1, True)
    for w in range(4): A(f"ds_read2st64_b32 {vr(40+2*w,2)}, {vD4} offset0:{L_RED//256 + 2*w} offset1:{L_RED//256 + 2*w + 1}") if L_RED % 256 == 0 else None
    if L_RED % 256:
        for w in range(8): A(f"ds_read_b32 v{40+w}, {vD4} offset:{L_RED + 256*w}")
        lgk(4)
    else:
        lgk(2)
    A("v_pk_add_f32 v[40:41], v[40:41], v[42:43]")
    A(f"s_xor_b32 {sT3}, {sY}, 8192")
    lgk(0)
    A("v_pk_add_f32 v[44:45], v[44:45], v[46:47]")
    A("v_pk_add_f32 v[40:41], v[40:41], v[44:45]")
    A("v_add_f32 v40, v40, v41")
    packpair("v42", "v40", "v41")
    A(f"buffer_store_dword v42, {vYoff}, {srd('WS')}, {sY} offen sc1")
    if dual: A(f"buffer_store_dword v42, {vYoff}, {srd('WS')}, {sT3} offen sc1")
    stamp(14)
    A("L_wo_done:")
    A(f"s_cmp_eq_u32 {sL}, 0")
    A("s_cbranch_scc0 L_w2_have")
    dma128("v20", 1280, sW)
    A(f"s_mul_i32 {sT0}, {sX}, 224")
    A(f"s_lshl_b32 {sT1}, {sW}, 3")
    A(f"s_add_u32 {sT0}, {sT0}, {sT1}")
    A(f"s_mul_i32 {sT0}, {sT0}, 1280")
    A(f"s_lshl_b32 {sT1}, {sR}, 7")
    A(f"s_add_u32 {sT0}, {sT0}, {sT1}")
    A(f"s_lshl_b32 {sT3}, {sW}, 10")
    A("s_barrier")
    for k in range(4):
        if k == 3:
            A(f"s_cmp_lt_u32 {sW}, 4"); A("s_cbranch_scc0 L_w2_iss")
        A(f"s_add_u32 m0, {sT3}, {L_W2 + k*8192}")
        if k: A(f"s_add_u32 {sT0}, {sT0}, {64*1280}")
        A(f"buffer_load_dwordx4 v20, {srd('W2')}, {sT0} offen {nt} lds")
    A("L_w2_iss:")
    vmc(0)
    A("s_barrier")
    A("L_w2_have:")
    A(f"s_sub_u32 {sV_}, {sW}, 5")
    A(f"s_cmp_lt_u32 {sV_}, 2")
    A("s_cbranch_scc0 L_nextlayer")
    A1 = 48; W = L0; DD = 32
    tr128("v21", 0)
    A(f"s_lshl_b32 {sT0}, {sV_}, 6")
    A(f"v_xor_b32 v21, {sT0}, v21")
    A(f"v_add_u32 v21, {L_W2}, v21")
    A(f"v_and_b32 v20, 32, {vLane}")
    A(f"v_lshl_add_u32 v20, v20, 7, v21")
    A("v_xor_b32 v22, 32, v20")
    A("v_xor_b32 v23, 32, v21")
    A("s_sleep 4")
    for cb in range(2):
        for u in range(2):
            for kp in range(2):
                for rp in range(4):
                    hb, rho = rp >> 1, rp & 1
                    A(f"ds_read_b64_tr_b16 {vr(W+32*cb+16*u+8*kp+2*rp,2)}, v{20 + 2*cb + (1 if (u and hb) else 0)} offset:{(128*u+64*hb+16*kp+2*rho)*128}")
    for r in range(16): A(f"v_mov_b32 v{DD+r}, 0")
    A(f"v_mov_b32 v26, {OOB}")
    A(f"v_cmp_gt_u32 vcc, {sNCH}, {vQ64}")
    A(f"s_lshl_b32 {sA1}, {sX}, 9")
    A(f"s_add_u32 {sA1}, {sA1}, {sLay}")
    A(f"v_cndmask_b32 v25, v26, {vQ64}, vcc")
    A(f"s_add_u32 {sA1}, {sA1}, {HB}")
    A(f"v_cmp_gt_u32 vcc, 32, {vLane}")
    A(f"s_and_b32 {sT2}, {sX}, 1")
    A(f"s_mul_i32 {sT2}, {sT2}, 1280")
    A(f"v_cndmask_b32 v26, v26, {vYoff}, vcc")
    A(f"s_add_u32 {sT0}, {sR}, {sV_}"); A(f"s_lshl_b32 {sT0}, {sT0}, 7")
    A(f"s_add_u32 {sT2}, {sT2}, {sT0}")
    A(f"s_add_u32 {sT2}, {sT2}, {sY}")
    A(f"s_add_u32 {sT2}, {sT2}, 2560")
    A(f"s_xor_b32 {sT3}, {sT2}, 8192")
    setprio(3)
    lgk(0)
    stamp(15)
    poll("L_hpoll", [f"buffer_load_dwordx4 {vr(vA,4)}, {vQ64}, {srd('WS')}, {sA1} offen sc1",
                     f"buffer_load_dwordx4 {vr(A1,4)}, v25, {srd('WS')}, {sA1} offen offset:256 sc1"],
         [f"v{vA+i}" for i in range(4)] + [f"v{A1+i}" for i in range(4)], sl_h)
    stamp(16)
    for cb in range(2):
        for kp in range(2):
            for u in range(2):
                A(f"{SMF} {vr(DD+8*cb+4*kp,4)}, {vr(A1 if u else vA,4)}, {vr(W+32*cb+16*u+8*kp,8)}, {vIdx}")
    A(f"v_add_f32 v{DD}, v{DD}, v{DD+1}")
    A(f"v_add_f32 v{DD+6}, v{DD+6}, v{DD+7}")
    A(f"v_add_f32 v14, v{DD}, v{DD+6}")
    A(f"v_add_f32 v{DD+8}, v{DD+8}, v{DD+9}")
    A(f"v_add_f32 v{DD+14}, v{DD+14}, v{DD+15}")
    A(f"v_add_f32_dpp v14, v{DD+8}, v{DD+14} quad_perm:[0,1,2,3] row_mask:0x2 bank_mask:0xf")
    packpair("v22", "v14", "v15")
    A(f"buffer_store_dword v22, v26, {srd('WS')}, {sT2} offen sc1")
    if dual: A(f"buffer_store_dword v22, v26, {srd('WS')}, {sT3} offen sc1")
    stamp(17)
    vmc(1 + dual)
    A("s_branch L_nextlayer")

    A("L_notwo:")
    A(f"s_cmp_eq_u32 {sRole}, 2")
    A("s_cbranch_scc1 L_nextlayer")
    UW = L0; UA = L0 + 40; UD = L0 + 60; UC = 43
    A(f"s_cmp_eq_u32 {sL}, 0")
    A("s_cbranch_scc0 L_w13_have")
    A(f"s_mul_i32 {sT0}, {sX}, {14*32}")
    A(f"s_lshl_b32 {sT1}, {sR}, 5")
    A(f"s_add_u32 {sT0}, {sT0}, {sT1}")
    A(f"s_sub_u32 {sT0}, {sT0}, 320")
    A(f"s_mul_i32 {sT1}, {sW}, {16*3456}")
    A(f"s_add_u32 {sT0}, {sT0}, {sT1}")
    A(f"v_lshrrev_b32 v21, 2, {vLane}")
    A(f"v_lshrrev_b32 v20, 4, {vLane}")
    A(f"v_and_b32 v20, 2, v20")
    A(f"v_xor_b32 v21, v21, v20")
    A("v_mul_u32_u24 v21, 3456, v21")
    A(f"v_xor_b32 v20, {vL16}, {vLane}")
    A(f"v_and_b32 v20, 16, v20")
    A(f"v_add3_u32 v21, {sT0}, v21, v20")
    A(f"v_and_b32 v20, 2, {vLane}")
    A("v_cmp_eq_u32 vcc, 0, v20")
    A(f"v_mov_b32 v22, s{P(7)[0]}"); A(f"v_mov_b32 v23, s{P(7)[1]}")
    A(f"v_mov_b32 v14, s{P(6)[0]}"); A(f"v_mov_b32 v15, s{P(6)[1]}")
    A("v_cndmask_b32 v22, v22, v14, vcc"); A("v_cndmask_b32 v23, v23, v15, vcc")
    A("v_add_co_u32 v22, vcc, v22, v21"); A("v_addc_co_u32 v23, vcc, 0, v23, vcc")
    A(f"s_lshl_b32 {sT2}, {sW}, 10")
    A("s_barrier")
    for k in range(5):
        if k:
            A(f"v_add_co_u32 v22, vcc, {8*16*3456}, v22"); A("v_addc_co_u32 v23, vcc, 0, v23, vcc")
        A(f"s_add_u32 m0, {sT2}, {L_R1 + k*8192}")
        A(f"global_load_lds_dwordx4 v[22:23], off {dfl}")
    A("s_branch L_w13_iss")
    A("L_w13_have:")
    A("s_barrier")
    stamp(12)
    A("L_w13_iss:")
    A(f"s_mov_b32 {sMode}, 1")
    A(f"s_cmp_ge_u32 {sW}, 4")
    A("s_cbranch_scc0 L_up_g")
    A(f"s_sub_u32 {sV_}, {sW}, 4")
    A(f"v_and_b32 v14, 32, {vLane}")
    A(f"v_and_b32 v15, 2, {vLane}")
    A(f"v_lshl_add_u32 v14, v15, 3, v14")
    A(f"v_add_u32 v14, v14, {vR0}")
    A(f"v_lshlrev_b32 v14, 6, v14")
    A(f"v_and_b32 v15, 1, {vLane}")
    A(f"v_lshl_add_u32 v14, v15, 5, v14")
    A(f"v_and_b32 v15, 8, {vLane}")
    A(f"v_lshl_add_u32 v14, v15, 4, v14")
    A(f"v_and_b32 v15, 16, {vLane}")
    A(f"v_add_u32 v14, v14, v15")
    A(f"s_lshl_b32 {sT0}, {sV_}, 3")
    A(f"v_xor_b32 v14, {sT0}, v14")
    A(f"v_add_u32 v14, {L_R1}, v14")
    A(f"v_xor_b32 v17, 128, v14")
    up_reads = [f"ds_read_b64_tr_b16 {vr(UW+8*u+2*rp,2)}, {'v17' if rp & 1 else 'v14'} offset:{(128*u+64*(rp>>1))*64}"
                for u in range(5) for rp in range(4)]
    for r in range(4):
        A(f"v_mov_b32 v{UD+r}, 0")
    A(f"v_and_b32 v15, 12, {vLane}")
    A("v_cmp_eq_u32 vcc, 4, v15")
    A(f"v_mov_b32 v15, {L_ONE - L_XI - 1280}")
    A(f"s_lshl_b32 {sA2}, {sX}, 9")
    A(f"v_cndmask_b32 v16, {vQ64}, v15, vcc")
    A(f"v_cmp_gt_u32 vcc, 4, {vLane}")
    A(f"v_mov_b32 v15, {OOB}")
    A(f"s_add_u32 {sA2}, {sA2}, {sT0}")
    A(f"v_cndmask_b32 v25, v15, {vYoff}, vcc")
    A(f"s_lshl_b32 {sT0}, {sR}, 5"); A(f"s_add_u32 {sA2}, {sA2}, {sT0}")
    A(f"s_add_u32 {sA2}, {sA2}, {HB - 320}")
    A(f"s_add_u32 {sA2}, {sA2}, {sLay}")
    setprio(3)
    A(f"s_cmp_eq_u32 {sL}, 0")
    A("s_cbranch_scc1 L_up0")
    for l in up_reads: A(l)
    A(f"s_cmp_eq_u32 {sW}, 4")
    A("s_cbranch_scc0 L_g_bar")
    if d_y > 4: A(f"s_sleep {d_y - 4}")
    A("s_branch L_g")
    A("L_up_g:")
    if d_y:
        A(f"s_cmp_eq_u32 {sL}, 0"); A("s_cbranch_scc1 L_g"); A(f"s_sleep {d_y}")
    A("s_branch L_g")
    A("L_up_m:")
    A(f"s_cmp_ge_u32 {sW}, 4")
    A("s_cbranch_scc0 L_xpub")
    stamp(13)
    for k in range(5): A(f"ds_read_b64 {vr(32+2*k,2)}, {v8L} offset:{L_ST + 2560 + 512*k}")
    for u in range(5): A(f"ds_read_b128 {vr(UA+4*u,4)}, v16 offset:{L_XI + 1280 + 256*u}")
    stats_and_mfma(lambda i: A(f"{SMF} {vr(UD,4)}, {vr(UA+4*i,4)}, {vr(UW+8*i,8)}, {vIdx}"), 5,
                   ["", "", "", f"v_add_f32 v{UD+2}, v{UD+2}, v{UD+3}", f"v_add_f32 v{UD}, v{UD}, v{UD+1}", "",
                    f"v_add_f32_dpp v{UC}, v{UD+2}, v{UD} row_shl:8 {DPPF}", f"v_add_f32_dpp v{UD}, v{UD+2}, v{UD} row_shl:8 {DPPF}",
                    f"v_readlane_b32 {sT1}, v33, 63", f"v_permlane16_swap_b32 v{UD}, v{UC}"])
    A(f"v_fma_f32 v{UD}, -{sT0}, v{UC}, v{UD}")
    A(f"v_mul_f32 v{UD}, {sT1}, v{UD}")
    A(f"v_mul_f32 v34, {-LOG2E!r}, v{UD}")
    A("v_exp_f32 v34, v34")
    A(f"v_mul_f32_dpp v{UD}, v{UD}, v{UD} row_shl:4 {DPPF}")
    A("v_add_f32 v34, 1.0, v34")
    A("v_rcp_f32 v34, v34")
    A(f"v_mul_f32 v{UD}, v{UD}, v34")
    packpair("v35", f"v{UD}", "v34")
    store_intra("L_h_st", [f"buffer_store_dword v35, v25, {srd('WS')}, {sA2} offen"], scc_ready=True)
    stamp(14)
    A("L_xpub:")
    A(f"s_cmp_eq_u32 {sR}, 10")
    A(f"s_cselect_b32 {sT0}, {sW}, 7")
    A(f"s_cmp_lt_u32 {sT0}, 5")
    A("s_cbranch_scc0 L_nextlayer")
    if xlate:
        A(f"s_add_u32 {sT0}, {sNCH}, 256")
        A(f"v_cmp_gt_u32 vcc, {sT0}, {v8L}")
        A(f"v_mov_b32 v23, {OOB}")
        A(f"s_lshl_b32 {sA1}, {sX}, 9")
        A(f"s_add_u32 {sA1}, {sA1}, {sLay}")
        A(f"v_cndmask_b32 v20, v23, {v8L}, vcc")
        A(f"s_add_u32 {sA1}, {sA1}, {HB}")
        poll("L_tpoll", [f"buffer_load_dwordx2 v[14:15], v20, {srd('WS')}, {sA1} offen sc1"], ["v14", "v15"], 0, depth=1)
    A(f"v_min_u32 v45, -2, {vXp}")
    store_intra("L_x_st", [f"buffer_store_dword v45, {vD4}, {srd('WS')}, {sM} offen"])

    A("L_nextlayer:")
    mark("h1", 0)
    setprio(0)
    A(f"s_add_u32 {sL}, {sL}, 1")
    A(f"s_add_u32 {sLay}, {sLay}, {LSTRIDE}")
    if stamps: A(f"s_add_u32 {sSI}, {sSI}, 20")
    A(f"s_mov_b32 {sMode}, 0")
    A(f"s_cmp_eq_u32 {sL}, 2")
    A("s_cbranch_scc1 L_last")
    for r in (sO1, sO2, sP1, sP2, sY): A(f"s_add_u32 {r}, {r}, {LSTRIDE}")
    zeroO()
    if warm:
        A(f"s_cmp_eq_u32 {sW}, 7")
        A("s_cbranch_scc0 L_nowarm")
        warm_o(7)
        A(f"s_lshl_b32 {sT0}, {sHead}, 10")
        A(f"s_add_u32 {sT0}, {sT0}, {QB1}")
        A(f"buffer_load_dword {vDum}, {vL16}, {srd('WS')}, {sT0} offen sc1")
        A("L_nowarm:")
    A(f"s_cmp_ge_u32 {sW}, 4")
    A("s_cbranch_scc0 L_g")
    A("s_sleep 4")
    q_prep()
    A(f"s_add_u32 {sA2}, {sA2}, {QB1}")
    A(f"s_cmp_eq_u32 {sW}, 4")
    A("s_cbranch_scc1 L_g")
    A("s_branch L_g_bar")
    A("L_last:")
    A(f"s_add_u32 {sT0}, {sW}, 24")
    A(f"s_lshl_b32 {sT1}, {sX}, 8")
    A(f"s_or_b32 {sT1}, {sT1}, {sR}")
    A(f"s_cmp_eq_u32 {sT0}, {sT1}")
    A("s_cbranch_scc0 L_end")
    A(f"s_cmp_lt_u32 {sW}, 5")
    A("s_cbranch_scc1 L_g")
    A("s_branch L_end")

    A("L_final:")
    mark("end")
    A(f"buffer_store_dword {vXp}, {vD4}, {srd('OUT')}, 0 offen")
    if amp:
        A(f"s_cmp_eq_u32 {sW}, 0"); A("s_cbranch_scc0 L_end")
        if amp.startswith("start,stag"):
            A(f"s_load_dwordx2 s[0:1], s[{P(10)[0]}:{P(10)[1]}], 64 glc"); lgk(0)
            if amp.endswith("stag"): A("s_not_b32 s100, s1")
            else: A("s_mov_b32 s0, s100"); A("s_not_b32 s100, s1")
        A("s_sub_u32 s30, s0, s100")
        A("s_min_u32 s30, s30, 5000")
        A(f"s_mul_i32 s30, s30, {ampx}")
        A("s_memrealtime s[28:29]"); A("s_waitcnt lgkmcnt(0)")
        A("L_amp:")
        A("s_memrealtime s[32:33]"); A("s_waitcnt lgkmcnt(0)")
        A("s_sub_u32 s32, s32, s28")
        A("s_cmp_lt_u32 s32, s30")
        A("s_cbranch_scc1 L_amp")
    A("L_end:")
    if stamps:
        A("s_mov_b64 exec, -1")
        A(f"s_mov_b32 {sSI}, 0"); stamp(63)
        A(f"v_writelane_b32 {vST}, {sR}, 62")
        A(f"s_lshl_b32 {sT0}, s2, 11")
        A(f"s_add_u32 {sT0}, {sT0}, {WS_STAMP}")
        A(f"v_add_u32 v14, {sT0}, {vD4}")
        A(f"global_store_dword v14, {vST}, s[{P(11)[0]}:{P(11)[1]}]")
    A("L_exit:")
    A("s_endpgm")

    A("L_q_prep0:")
    q_prep()
    A(f"s_add_u32 {sA2}, {sA2}, {QB0}")
    A("s_branch L_q_go")
    A("L_vland:")
    for u in range(8):
        vmc(14-2*u)
        vperm(u)
        if u == 3: zeroO()
    stamp(9)
    A("s_nop 0")
    A("s_branch L_pv")
    def get_rank(tag):
        A("v_mov_b32 v29, 0")
        A(f"L_rk{tag}:")
        A(f"ds_read_b32 v28, v29 offset:{L_FLAG+4}")
        lgk(0)
        A("v_cmp_eq_u32 vcc, -1, v28")
        retry(f"L_rk{tag}", 1)
        A(f"v_readfirstlane_b32 {sR}, v28")
        A(f"s_cmp_eq_u32 {sX}, 7")
        A(f"s_cselect_b32 {sT0}, 20, 24")
        A(f"s_cmp_lt_u32 {sR}, {sT0}")
        A(f"s_cselect_b32 {sRole}, 1, 2")
        A(f"s_cmp_lt_u32 {sR}, 10")
        A(f"s_cselect_b32 {sRole}, 0, {sRole}")
        A(f"s_and_b32 {sY}, {sX}, 1")
        A(f"s_mul_i32 {sY}, {sY}, 1280")
        A(f"s_lshr_b32 {sT0}, {sX}, 1")
        A(f"s_lshl_b32 {sT0}, {sT0}, 14")
        A(f"s_add_u32 {sY}, {sY}, {sT0}")
        A(f"s_xor_b32 {sT0}, {sNear}, {8192 if dual else 0}")
        A(f"s_add_u32 {sY}, {sY}, {sT0}")
        A(f"s_lshl_b32 {sT0}, {sR}, 7")
        A(f"s_add_u32 {sY}, {sY}, {sT0}")
        A(f"s_add_u32 {sY}, {sY}, {YB}")
    def wo_dma():
        dma128("v20", 1280, None)
        A("v_xor_b32 v21, 64, v20")
        A(f"s_lshl_b32 {sT0}, {sX}, 9")
        A(f"s_lshl_b32 {sT1}, {sW}, 6")
        A(f"s_add_u32 {sT0}, {sT0}, {sT1}")
        A(f"s_mul_i32 {sT0}, {sT0}, 1280")
        A(f"s_lshl_b32 {sT1}, {sR}, 7")
        A(f"s_add_u32 {sT1}, {sT0}, {sT1}")
        A(f"s_lshl_b32 {sT3}, {sW}, 13")
        for k in range(8):
            A(f"s_add_u32 m0, {sT3}, {L_R1 + k*1024}")
            if k: A(f"s_add_u32 {sT1}, {sT1}, {8*1280}")
            A(f"buffer_load_dwordx4 v{20 + (k&1)}, {srd('WO')}, {sT1} offen {nt} lds")
    A("L_pfw:")
    A(f"s_lshl_b32 {sT0}, {sX}, 7")
    A(f"s_add_u32 {sT0}, {sT0}, {TK}")
    A("s_mov_b32 s26, 1")
    A(f"s_cmp_eq_u32 {sW}, 1")
    lgk(0)
    A("s_barrier")
    A("s_cbranch_scc0 L_notk")
    if dyn:
        A(f"s_atomic_add s26, s[{P(11)[0]}:{P(11)[1]}], {sT0} glc")
        lgk(0)
        A("s_add_u32 s26, s26, 1")
        A("s_min_u32 s26, s26, 31")
    else:
        A(f"s_mov_b32 s26, {sJ}")
    A("v_mov_b32 v28, s26")
    A("v_mov_b32 v29, 0")
    A(f"ds_write_b32 v29, v28 offset:{L_FLAG+4}")
    A("L_notk:")
    get_rank("a")
    if stamps == 1: stamp(18)
    if warm: warm_o(3)
    A(f"s_cmp_eq_u32 {sRole}, 0")
    A("s_cbranch_scc0 L_pf1")
    if woearly: wo_dma()
    A("s_branch L_pfw_done")
    A("L_pf1:")
    if npfo:
        A(f"v_mul_u32_u24 v28, 1280, {vLane}")
        A(f"s_lshl_b32 {sT0}, {sX}, 3")
        A(f"s_add_u32 {sT0}, {sT0}, 7")
        A(f"s_sub_u32 {sT0}, {sT0}, {sW}")
        A(f"s_mul_i32 {sT0}, {sT0}, {64*1280}")
        A(f"s_lshl_b32 {sT1}, {sR}, 7")
        A(f"s_add_u32 {sT0}, {sT0}, {sT1}")
        A(f"s_sub_u32 {sT0}, {sT0}, 1280")
        A(f"s_cmp_lt_u32 {sR}, 20")
        A(f"s_cselect_b32 {sT1}, {sW}, 7")
        A(f"s_cmp_lt_u32 {sT1}, {npfo}")
        A(f"s_cselect_b32 {sT0}, {sT0}, {OOB}")
        A(f"buffer_load_dword {vDum}, v28, {srd('WO')}, {sT0} offen {pfl}")
    A(f"v_lshrrev_b32 v26, 2, {vLane}")
    A(f"v_mul_u32_u24 v26, 3456, v26")
    A(f"v_and_b32 v28, 3, {vLane}")
    A(f"v_lshl_add_u32 v26, v28, 7, v26")
    A(f"s_bitcmp1_b32 {sR}, 0")
    A(f"s_cselect_b32 s{SRD['WP']}, s{P(7)[0]}, s{P(6)[0]}")
    A(f"s_cselect_b32 s{SRD['WP']+1}, s{P(7)[1]}, s{P(6)[1]}")
    A(f"s_and_b32 s{SRD['WP']+1}, s{SRD['WP']+1}, 0xffff")
    A(f"s_sub_u32 {sM}, {sR}, 10")
    A(f"s_lshr_b32 {sM}, {sM}, 1")
    A(f"s_cmp_lt_u32 {sM}, 10")
    A(f"s_mul_i32 {sM}, {sM}, {64*3456}")
    A(f"s_cselect_b32 {sA2}, {sM}, {OOB}")
    A(f"s_mul_i32 {sM}, {sX}, 7")
    A(f"s_lshr_b32 {sM}, {sM}, 1")
    A(f"s_lshl_b32 {sM}, {sM}, 7")
    A(f"s_add_u32 {sA2}, {sA2}, {sM}")
    A(f"v_add_u32 v26, {sA2}, v26")
    if npf13:
        A(f"s_mul_i32 {sA2}, {sW}, {16*3456}")
        A(f"s_cmp_lt_u32 {sW}, {npf13}")
        A(f"s_cselect_b32 {sA2}, {sA2}, {OOB}")
        if pf20:
            A(f"s_cmp_ge_u32 {sR}, 20")
            A(f"s_cselect_b32 {sA2}, {sA2}, {OOB}")
        A(f"buffer_load_dword {vDum}, v26, {srd('WP')}, {sA2} offen {pfl}")
    A("s_branch L_pfw_done")
    A("L_pf2:")
    if pf20 and npf13:
        A(f"s_cmp_ge_u32 {sR}, 20")
        A("s_cbranch_scc1 L_pf2b")
        for k in range(npf13):
            A(f"s_mov_b32 {sT0}, {k*16*3456}")
            A(f"buffer_load_dword {vDum}, v26, {srd('WP')}, {sT0} offen {pfl}")
        A("L_pf2b:")
    for k in range(npf13, 4):
        A(f"s_mov_b32 {sT0}, {k*16*3456}")
        A(f"buffer_load_dword {vDum}, v26, {srd('WP')}, {sT0} offen {pfl}")
    if pfw2:
        A(f"s_cmp_ge_u32 {sR}, 24")
        A("s_cbranch_scc0 L_roles")
        A(f"v_lshlrev_b32 v28, 7, {vLane}")
        A(f"s_mul_i32 {sT0}, {sX}, {224*1280}")
        A(f"s_sub_u32 {sT1}, 31, {sR}")
        A(f"s_lshl_b32 {sT1}, {sT1}, 13")
        A(f"s_add_u32 {sT0}, {sT0}, {sT1}")
        for k in range(5):
            if k == 4:
                A(f"s_cmp_ge_u32 {sR}, 29"); A("s_cbranch_scc0 L_roles")
            if k: A(f"s_add_u32 {sT0}, {sT0}, {8*8192}")
            A(f"buffer_load_dword {vDum}, v28, {srd('W2')}, {sT0} offen {pfl}")
    A("s_branch L_roles")
    A("L_rank:")
    get_rank("b")
    A("s_branch L_roles")
    A("L_up0:")
    A(f"s_cmp_eq_u32 {sW}, 4")
    A("s_cbranch_scc1 L_g")
    vmc(0)
    A("L_hook:")
    vmc(8)
    A("s_barrier")
    stamp(12)
    A(f"s_cmp_ge_u32 {sW}, 4")
    A("s_cbranch_scc0 L_ychk")
    for l in up_reads: A(l)
    A(f"s_cmp_eq_u32 {sW}, 4")
    A("s_cbranch_scc1 L_ychk")
    A("s_branch L_g_bar")
    A("L_wo_dma:")
    if woearly:
        A(f"s_cmp_lt_u32 {sW}, 4")
        A("s_cbranch_scc1 L_wo_iss")
    wo_dma()
    A("L_wo_iss:")
    rd = wo_tr()
    vmc(0)
    for l in rd: A(l)
    lgk(12)
    A("s_branch L_wo_have")
    for t in tails:
        for l in t: A(l)
    A("L_code_end:")

    ref = open("cdna_kernels/" + NAME + ".s.ref").read().split("\n")
    head = [l for l in ref if l.startswith(";") and "@launch" not in l and "Override launch" not in l and "grid=ceil" not in l]
    out = "\n".join(head) + f"\n; @launch grid=(256,1,1) block=(512,1,1) lds={LDS_BYTES}\n"
    out += f""".amdgcn_target "amdgcn-amd-amdhsa--gfx950"
.text
.globl {NAME}_kernel
.p2align 8
.type {NAME}_kernel,@function
{NAME}_kernel:
"""
    out += A.text()
    out += f""".section .rodata,"a"
.p2align 6
.amdhsa_kernel {NAME}_kernel
  .amdhsa_next_free_vgpr 256
  .amdhsa_next_free_sgpr 102
  .amdhsa_accum_offset 256
  .amdhsa_group_segment_fixed_size 0
  .amdhsa_kernarg_size 96
  .amdhsa_user_sgpr_count 2
  .amdhsa_user_sgpr_kernarg_segment_ptr 1
  .amdhsa_system_sgpr_workgroup_id_x 1
  .amdhsa_float_denorm_mode_32 3
.end_amdhsa_kernel
"""
    return out

if __name__ == "__main__":
    kw = {}
    dst = "cdna_kernels/" + NAME + ".s"
    for a in sys.argv[1:]:
        k, v = a.split("=", 1)
        if k == "out": dst = v
        else:
            try: kw[k] = int(v)
            except ValueError: kw[k] = v
    open(dst, "w").write(gen(**kw))
    print("wrote", dst)
```

```python
import sys, math
from asmlib import Asm

NAME = "interleave_layers__mha_block_cached__glu_gated_swiglu__decode"

LSTRIDE = 0x24000
OB, YB, XB, HB, AB, TK = 0x0, 0x10000, 0x20000, 0x22800, 0x23800, 0x23c00
QB0, QB1 = 0x48000, 0x50000
WS_COMM = 0x58000
PRB = 0x60000
WS_STAMP = 0x100000
OOB = 0x7f000000
L_RED = 0
L_XI = 2048
L_ST = L_XI + 2560
L_ML = L_ST + 5120
L_OP = L_ML + 640
L_ZERO = L_OP + 4096
L_Q = L_ZERO + 64
L_FLAG = L_Q + 1024
L_ONE = L_FLAG + 64
L_WQ = 17408
assert L_ONE + 1280 <= L_WQ
L_R1 = L_WQ + 20480
L_W2 = L_R1 + 65536
LDS_BYTES = L_W2 + 28672
sX, sJ, sW, sHead, sC, sKV, sL, sLay, sFast, sTO, sT0, sT1, sT2, sT3, sPL, sPH, sSI = \
    ["s%d" % i for i in range(3, 20)]
sV_ = "s20"; sM = "s21"; sA1 = "s22"; sA2 = "s23"; sHI = "s24"; sRole = "s25"; sMode = "s46"; sNCH = "s47"; sNear = "s84"
sO1, sO2, sP1, sP2, sY, sR = "s36", "s37", "s38", "s39", "s40", "s41"
P = lambda i: (36 + 2*i, 37 + 2*i)
SRD = dict(K=60, V=64, WS=68, WQ=72, WO=76, W2=80, X=84, OUT=88, WP=92)
def srd(n): return f"s[{SRD[n]}:{SRD[n]+3}]"
vLane, vR0, vQ64, vIdx, vXp, vD4, vML, vST = ["v%d" % i for i in range(8)]
vA = 8
vKoff, vVoff = "v12", "v13"
v8L = "v12"
vOPw, vMLr, vOpub, vAoff, vYoff = "v18", "v19", "v24", "v27", "v13"
vL16 = "v30"; vDum = "v31"
S0 = 32; K0 = 64; V0 = 128; L0 = 192
def vr(a, n): return f"v[{a}:{a+n-1}]" if n > 1 else f"v{a}"
DPPF = "row_mask:0xf bank_mask:0xf"
steps = [f"quad_perm:[1,0,3,2] {DPPF}", f"quad_perm:[2,3,0,1] {DPPF}", f"row_half_mirror {DPPF}", f"row_mirror {DPPF}",
         "row_bcast:15 row_mask:0xa bank_mask:0xf", "row_bcast:31 row_mask:0xc bank_mask:0xf"]
SMF = "v_smfmac_f32_16x16x64_bf16"
LOG2E = math.log2(math.e)

def gen(stamps=0, cyc=(), amp="", dbg="", force_slow=False, nt="nt", pfl="", dfl="",
        sl_q=0, sl_o=0, sl_y=0, sl_h=0, sl_x=2, d_y=22, d_z=4, d_f=3, pd=2, gap=1, npf13=0, gopos=12, rot=1, warm=1,
        prio=1, xlate=1, qbar=1, d_q=0, pdq=2, gapq=2, lateprio=0, pdo=1, b1='kv', dyn=1, woearly=1, pfw2=1, npfo=4, pf20=1, cpf=4, freerun=0, dual=1, pol=-1, racepos=1, rfl='', ampx=10, pre=2):
    A = Asm()
    def mark(name, lay=None):
        if not amp or name not in amp.split(","): return
        r = (100, 0)[amp.split(",").index(name)]
        if lay is not None:
            A(f"s_cmp_eq_u32 {sL}, {lay}"); A(f"s_cbranch_scc0 L_mark_{name}")
        A(f"s_memrealtime s[{r}:{r+1}]"); A("s_waitcnt lgkmcnt(0)")
        if lay is not None: A(f"L_mark_{name}:")
    def stamp(code, fine=False):
        if not stamps: return
        if stamps == 2 and code not in (0, 10, 14, 63): return
        if stamps == 3 and code not in cyc: return
        if fine and stamps != 3: return
        A("s_memtime s[100:101]" if stamps == 3 else "s_memrealtime s[100:101]")
        A("s_waitcnt lgkmcnt(0)")
        A(f"s_add_u32 m0, {sSI}, {code}")
        A(f"v_writelane_b32 {vST}, s100, m0")
    def lgk(n): A(f"s_waitcnt lgkmcnt({n})")
    def vmc(n): A(f"s_waitcnt vmcnt({n})")
    def setprio(n):
        if prio: A(f"s_setprio {n}")
    def mksrd(n, ptr, size, part=3):
        b = SRD[n]; lo, hi = P(ptr)
        if part & 1: A(f"s_mov_b64 s[{b}:{b+1}], s[{lo}:{hi}]")
        if part & 2:
            A(f"s_mov_b32 s{b+2}, {size}")
            A(f"s_mov_b32 s{b+3}, 0x20000")
    def retry(label, sleep):
        A(f"s_cbranch_vccz {label}_ok")
        A(f"s_sub_u32 {sTO}, {sTO}, 1")
        if sleep: A(f"s_sleep {sleep}")
        A(f"s_cbranch_scc0 {label}")
        A("s_branch L_end")
        A(f"{label}_ok:")
    def missing(regs):
        regs = list(regs)
        if len(regs) == 1:
            A(f"v_cmp_eq_u32 vcc, -1, {regs[0]}"); return
        t = ["v28", "v29"]; k = 0; cur = []
        while len(regs) >= 3 and k < 2:
            A(f"v_max3_u32 {t[k]}, {regs[0]}, {regs[1]}, {regs[2]}"); regs = regs[3:]; cur.append(t[k]); k += 1
        regs = cur + regs
        while len(regs) > 1:
            if len(regs) >= 3:
                A(f"v_max3_u32 v28, {regs[0]}, {regs[-1]}, {regs[-2]}"); regs = ["v28"] + regs[1:-2]
            else:
                A(f"v_max_u32 v28, {regs[0]}, {regs[1]}"); regs = ["v28"]
        A("v_cmp_eq_u32 vcc, -1, v28")
    def poll(label, loads, regs, sleep, first_issued=False, depth=None):
        depth = pd if depth is None else depth
        n = len(loads)
        for k in range(1 if first_issued else 0, depth - 1):
            for l in loads: A(l)
            if gap: A(f"s_sleep {gap}")
        if first_issued and depth == 1: A(f"s_branch {label}_chk")
        A(f"{label}:")
        for l in loads: A(l)
        A(f"{label}_chk:")
        vmc(n*(depth-1))
        missing(regs)
        retry(label, sleep)
    tails = []
    def store_intra(label, stores, scc_ready=False):
        if not scc_ready: A(f"s_cmp_eq_u32 {sFast}, 0")
        A(f"s_cbranch_scc1 {label}_slow")
        for s in stores: A(s)
        A(f"{label}_done:")
        tails.append([f"{label}_slow:"] + [s + " sc1" if s.startswith("buffer") else s for s in stores] + [f"s_branch {label}_done"])
    def packpair(dst, val, tmp, fill=""):
        A(fill)
        A(f"v_mov_b32_dpp {tmp}, {val} quad_perm:[1,1,3,3] {DPPF}")
        A(f"v_cvt_pk_bf16_f32 {dst}, {val}, {tmp}")
        A(f"v_min_u32 {dst}, -2, {dst}")
    def kload(T):
        if T: A(f"s_add_u32 {sT0}, {sKV}, {T*4096}")
        so = sT0 if T else sKV
        for t in range(4):
            A(f"buffer_load_dwordx4 {vr(K0+16*T+4*t,4)}, {vKoff}, {srd('K')}, {so} offen offset:{64*t} {nt}")
    def vload(j0, j1):
        if j0 == 8: A(f"s_add_u32 {sT0}, {sKV}, 8192")
        for j in range(j0, j1):
            A(f"buffer_load_dwordx4 {vr(L0+4*j,4)}, {vVoff}, {srd('V')}, {sKV if j < 8 else sT0} offen offset:{(j&7)*256} {nt}")
    def vperm(u):
        for q in range(4):
            a, b = L0 + 8*u + q, L0 + 8*u + 4 + q
            A(f"v_perm_b32 v{V0+8*(2*q)+u}, v{b}, v{a}, {sPL}")
            A(f"v_perm_b32 v{V0+8*(2*q+1)+u}, v{b}, v{a}, {sPH}")
    def dma128(dst, rowbytes, par):
        A(f"v_lshrrev_b32 {dst}, 3, {vLane}")
        A(f"v_mul_u32_u24 {dst}, {rowbytes}, {dst}")
        A(f"v_and_b32 v28, 0x70, {vL16}")
        A(f"v_and_b32 v29, 32, {vLane}")
        A(f"v_xor_b32 v28, v28, v29")
        if par is not None:
            A(f"s_and_b32 {sT0}, {par}, 1"); A(f"s_lshl_b32 {sT0}, {sT0}, 6")
            A(f"v_xor_b32 v28, {sT0}, v28")
        A(f"v_add_u32 {dst}, {dst}, v28")
    def tr128(dst, b5rows):
        A(f"v_lshlrev_b32 {dst}, 7, {vR0}")
        A(f"v_and_b32 v28, 12, {vR0}")
        A(f"v_lshl_add_u32 {dst}, v28, 3, {dst}")
        A(f"v_and_b32 v28, 3, {vLane}")
        A(f"v_lshl_add_u32 {dst}, v28, 3, {dst}")
        if b5rows:
            A(f"v_and_b32 v28, 32, {vLane}")
            A(f"v_lshl_add_u32 {dst}, v28, {int(math.log2(b5rows*128//32))}, {dst}")
    def qpub_off(dst, tmp, v_is_lane):
        A(f"v_and_b32 {dst}, 2, {vLane}"); A(f"v_lshlrev_b32 {dst}, 3, {dst}")
        A(f"v_and_b32 {tmp}, 12, {vLane}"); A(f"v_add_u32 {dst}, {dst}, {tmp}")
        if v_is_lane:
            A(f"v_and_b32 {tmp}, 48, {vLane}"); A(f"v_lshl_add_u32 {dst}, {tmp}, 4, {dst}")
    def qpub_cu(dst, tmp):
        A(f"s_lshl_b32 {dst}, {sHead}, 10")
        A(f"s_lshl_b32 {tmp}, {sC}, 5"); A(f"s_add_u32 {dst}, {dst}, {tmp}")
    def warm_o(w):
        A(f"s_lshl_b32 {sT0}, {sX}, 13")
        A(f"s_add_u32 {sT0}, {sT0}, {sLay}")
        A(f"s_lshl_b32 {sT2}, {sX}, 7")
        A(f"s_add_u32 {sT2}, {sT2}, {sLay}")
        A(f"s_add_u32 {sT2}, {sT2}, {AB}")
        A(f"s_cmp_lt_u32 {sR}, 2")
        A(f"s_cselect_b32 {sT3}, {sW}, 99")
        A(f"s_cmp_eq_u32 {sT3}, {w}")
        A(f"s_cselect_b32 {sT0}, {sT0}, {OOB}")
        A(f"s_cselect_b32 {sT2}, {sT2}, {OOB}")
        A(f"v_lshlrev_b32 v28, 7, {vLane}")
        A(f"buffer_load_dword {vDum}, v28, {srd('WS')}, {sT0} offen sc1")
        A(f"buffer_load_dword {vDum}, off, {srd('WS')}, {sT2} sc1")
    def stats_and_mfma(mf, nA, fill):
        A("v_mov_b32 v42, 1e-05")
        A(f"s_cmp_eq_u32 {sFast}, 0")
        lgk(nA+1)
        A("v_pk_add_f32 v[32:33], v[32:33], v[34:35]")
        A("v_pk_add_f32 v[36:37], v[36:37], v[38:39]")
        lgk(nA)
        A("v_pk_add_f32 v[32:33], v[32:33], v[40:41]")
        A("v_pk_add_f32 v[32:33], v[32:33], v[36:37]")
        for i, st in enumerate(steps):
            if i < nA:
                lgk(nA-1-i); mf(i)
            A(f"v_add_f32_dpp v32, v32, v32 {st}")
            A(f"v_add_f32_dpp v33, v33, v33 {st}")
        tail = [f"v_mul_f32 v32, {1/640!r}, v32", f"v_fmamk_f32 v33, v33, {1/640!r}, v42", "v_fma_f32 v33, -v32, v32, v33",
                "v_max_f32 v33, v42, v33", "v_rsq_f32 v33, v33", f"v_readlane_b32 {sT0}, v32, 63"]
        fill = list(fill)
        for t in tail:
            A(t)
            if fill: A(fill.pop(0))
        for f in fill: A(f)

    A("s_cmp_ge_u32 s2, 256")
    A("s_cbranch_scc1 L_exit")
    mark("start")
    if stamps:
        A(f"s_mov_b32 {sSI}, 0"); A(f"v_mov_b32 {vST}, 0")
        stamp(0)
    A(f"s_load_dwordx2 s[{SRD['V']}:{SRD['V']+1}], s[0:1], 16")
    A("s_load_dwordx8 s[52:59], s[0:1], 64")
    A("s_load_dwordx16 s[36:51], s[0:1], 0")
    A(f"s_and_b32 {sX}, s2, 7")
    A(f"s_lshr_b32 {sJ}, s2, 3")
    A(f"s_lshl_b32 {sKV}, {sX}, 5")
    A(f"s_or_b32 {sKV}, {sKV}, {sJ}")
    A(f"s_lshl_b32 {sKV}, {sKV}, 17")
    A(f"s_mov_b32 s{SRD['V']+3}, 0x20000")
    A(f"s_lshl_b32 s{SRD['V']+2}, s{SRD['V']+3}, 8")
    A(f"v_and_b32 v14, 15, v0")
    A(f"v_and_b32 v15, 48, v0")
    A(f"v_lshrrev_b32 v16, 6, v0")
    A(f"v_lshlrev_b32 v17, 14, v16")
    A(f"v_lshl_add_u32 {vVoff}, v15, 7, v17")
    A(f"v_lshl_add_u32 {vVoff}, v14, 4, {vVoff}")
    if pre:
        lgk(0)
        vload(0, pre)
    if cpf:
        A("s_getpc_b64 s[26:27]")
        A("s_and_b32 s26, s26, 0xffffff00")
        A(f"v_and_b32 v19, {cpf-1}, v0")
        A(f"s_lshl_b32 s28, {sJ}, 7")
        A("v_lshl_add_u32 v19, v19, 12, s28")
        A(f"v_min_u32 v19, L_code_end-{NAME}_kernel-4, v19")
        A("v_cmp_gt_u32 vcc, 64, v0")
        A("s_cbranch_vccz L_nocpf")
        A(f"global_load_dword {vDum}, v19, s[26:27]")
        A("L_nocpf:")
    A(f"v_readfirstlane_b32 {sW}, v16")
    A(f"v_lshlrev_b32 {vD4}, 2, v0")
    A(f"v_and_b32 {vLane}, 63, v0")
    A(f"s_lshr_b32 {sHead}, {sKV}, 20")
    A(f"s_and_b32 {sC}, {sJ}, 7")
    A(f"v_lshl_add_u32 {vKoff}, v14, 8, v17")
    A(f"v_add_u32 {vKoff}, {vKoff}, v15")
    A(f"v_lshlrev_b32 {vL16}, 4, {vLane}")
    dma128("v18", 8192, sW)
    A(f"s_lshr_b32 {sT1}, {sC}, 1")
    A(f"s_mul_i32 {sT1}, {sT1}, {160*8192}")
    A(f"s_lshl_b32 {sT2}, {sW}, 16")
    A(f"s_add_u32 {sT1}, {sT1}, {sT2}")
    A(f"s_lshl_b32 {sT2}, {sHead}, 8")
    A(f"s_add_u32 {sT1}, {sT1}, {sT2}")
    A(f"s_and_b32 {sT2}, {sC}, 1")
    A(f"s_lshl_b32 {sT2}, {sT2}, 7")
    A(f"s_add_u32 {sT1}, {sT1}, {sT2}")
    A(f"s_lshl_b32 {sT2}, {sW}, 10")
    first = [("X", 0, 1280), ("WQ", 3, 640*4096*2), ("WS", 11, WS_COMM), ("K", 1, 1 << 25)]
    for f in first: mksrd(*f, part=2)
    setprio(3)
    lgk(0)
    mark("karg")
    if amp.startswith("start,stag"):
        A(f"s_cmp_eq_u32 {sW}, 3"); A("s_cbranch_scc0 L_nostag")
        A(f"s_and_b32 s28, {sJ}, 15"); A("s_cbranch_scc1 L_nostag")
        A("s_mov_b32 s28, s100"); A("s_not_b32 s29, s100")
        A(f"s_atomic_umax s28, s[{P(10)[0]}:{P(10)[1]}], 64")
        A(f"s_atomic_umax s29, s[{P(10)[0]}:{P(10)[1]}], 68")
        A("L_nostag:")
    for f in first: mksrd(*f, part=1)
    A(f"s_cmp_eq_u32 {sW}, {99 if 'noclear' in dbg else 0}")
    A("s_cbranch_scc1 L_clear")
    A("L_noclear:")
    A(f"buffer_load_dword {vXp}, {vD4}, {srd('X')}, 0 offen")
    for k in range(3):
        if k == 2:
            A(f"s_cmp_lt_u32 {sW}, 4"); A("s_cbranch_scc0 L_wq_done")
        A(f"s_add_u32 m0, {sT2}, {L_WQ + k*8192}")
        if k: A(f"s_add_u32 {sT1}, {sT1}, {8*65536}")
        A(f"buffer_load_dwordx4 v18, {srd('WQ')}, {sT1} offen {nt} lds")
    A("L_wq_done:")
    def batch1():
        setprio(0)
        kload(0); vload(pre, pre + 4)
    A(f"s_cmp_eq_u32 {sW}, 0")
    A("s_cbranch_scc1 L_nob1")
    batch1()
    A("s_branch L_nob1")
    A("L_clear:")
    if pol < 0:
        A(f"s_and_b32 {sT0}, s2, 63")
        A(f"s_lshl_b32 {sT0}, {sT0}, 7")
        A(f"s_lshr_b32 {sT3}, s2, 6")
        A(f"s_lshl_b32 {sT3}, {sT3}, 14")
        A(f"s_add_u32 {sT0}, {sT0}, {sT3}")
        A(f"s_and_b32 s31, {sJ}, 1")
        A(f"s_lshl_b32 {sT3}, s31, 13")
        A(f"s_add_u32 {sT0}, {sT0}, {sT3}")
        A(f"s_add_u32 {sT0}, {sT0}, {PRB}")
        A(f"s_xor_b32 {sT3}, {sT0}, 8192")
        A(f"s_load_dword s30, s[{P(11)[0]}:{P(11)[1]}], {sT0} {rfl}")
        A(f"s_load_dwordx2 s[28:29], s[{P(11)[0]}:{P(11)[1]}], {sT3} {rfl}")
        if racepos == 0:
            lgk(2)
            A("s_getreg_b32 s32, hwreg(HW_REG_IB_STS, 8, 4)")
    for r in range(24, 28): A(f"v_mov_b32 v{r}, -1")
    A(f"s_lshr_b32 {sT3}, s2, 7")
    A(f"s_mul_i32 {sT3}, {sT3}, {LSTRIDE}")
    A(f"s_and_b32 {sM}, s2, 127")
    A(f"s_lshl_b32 {sT0}, {sM}, 10")
    A(f"s_add_u32 {sT0}, {sT0}, {sT3}")
    A(f"buffer_store_dwordx4 v[24:27], {vL16}, {srd('WS')}, {sT0} offen sc1")
    A(f"s_lshl_b32 {sT0}, {sM}, 7")
    A(f"s_add_u32 {sT0}, {sT0}, {sT3}")
    A(f"s_add_u32 {sT0}, {sT0}, {XB}")
    A(f"v_and_b32 v21, 0x7c, {vD4}")
    A(f"buffer_store_dword v24, v21, {srd('WS')}, {sT0} offen sc1")
    qpub_off("v21", "v22", True)
    qpub_cu(sT0, sT3)
    A(f"s_add_u32 {sT0}, {sT0}, {QB0}")
    A(f"buffer_store_dword v24, v21, {srd('WS')}, {sT0} offen sc1")
    A(f"s_add_u32 {sT0}, {sT0}, {QB1 - QB0}")
    A(f"buffer_store_dword v24, v21, {srd('WS')}, {sT0} offen sc1")
    if pol < 0 and racepos == 1:
        lgk(2)
        A("s_getreg_b32 s32, hwreg(HW_REG_IB_STS, 8, 4)")
    A("s_branch L_noclear")
    A("L_nob1:")
    mksrd("WO", 4, 4096*640*2); mksrd("W2", 8, 1728*640*2); mksrd("OUT", 9, 1280)
    mksrd("WP", 6, 640*1728*2)
    A(f"s_mov_b32 {sTO}, 0x80000")
    A(f"s_mov_b32 {sL}, 0")
    A(f"s_mov_b32 {sLay}, 0")
    A(f"s_mov_b32 {sFast}, 0")
    A(f"s_mov_b32 {sMode}, 0")
    A(f"s_mov_b32 {sPL}, 0x05040100")
    A(f"s_mov_b32 {sPH}, 0x07060302")
    A(f"s_mov_b32 {sHI}, 0xffff0000")
    A(f"s_cmp_eq_u32 {sX}, 7")
    A(f"s_cselect_b32 {sNCH}, {4*16}, {12*16}")
    A(f"s_mov_b32 {sRole}, 2")
    A(f"s_mov_b32 {sR}, 31")
    A(f"v_and_b32 v20, 3, {vLane}")
    A(f"v_lshlrev_b32 {vQ64}, 2, v15")
    A(f"v_lshl_add_u32 {vQ64}, v20, 4, {vQ64}")
    A(f"v_and_b32 {vR0}, 8, {vLane}")
    A(f"v_bfe_u32 v23, {vLane}, 4, 1")
    A(f"v_lshl_add_u32 {vR0}, v23, 2, {vR0}")
    A(f"v_bfe_u32 v23, {vLane}, 2, 1")
    A(f"v_add_u32 {vR0}, {vR0}, v23")
    A(f"v_and_b32 v17, 1, {vLane}")
    A(f"v_mul_u32_u24 {vIdx}, 0xaaaa, v17")
    A(f"v_bfe_u32 v23, {vLane}, 1, 1")
    A(f"v_mul_u32_u24 v23, 0xaaaa, v23")
    A(f"v_lshl_add_u32 {vIdx}, v23, 16, {vIdx}")
    A(f"v_add_u32 {vIdx}, 0x44444444, {vIdx}")
    A(f"v_lshl_add_u32 {vML}, {vLane}, 3, 64")
    A(f"s_lshl_b32 {sT0}, {sW}, 3")
    A(f"v_writelane_b32 {vML}, {sT0}, 63")
    A(f"v_mov_b32 v45, {vD4}")
    A(f"v_lshlrev_b32 v46, 1, {vD4}")
    A(f"v_mov_b32 v16, 0")
    A(f"v_lshlrev_b32 v17, 2, v14")
    A(f"ds_write_b32 v17, v16 offset:{L_ZERO}")
    A(f"v_mov_b32 v19, 0x3f803f80")
    A(f"v_min_u32 v20, 1276, {vD4}")
    A(f"ds_write_b32 v20, v19 offset:{L_ONE}")
    A(f"v_mov_b32 v25, {OOB}")
    A(f"v_mov_b32 v26, {OOB}")
    A(f"v_mov_b32 v24, {OOB}")
    A(f"v_mov_b32 v27, {OOB}")
    A(f"v_mov_b32 v{L0+62}, {OOB}")
    A(f"s_cmp_eq_u32 {sW}, 0")
    A("s_cbranch_scc0 L_noarr")
    A("v_mov_b32 v29, -1")
    A(f"ds_write_b32 {vL16}, v29 offset:{L_Q}")
    A(f"ds_write_b32 v16, v29 offset:{L_FLAG+4}")
    vmc(3)
    A("L_noarr:")
    if 'nowaitA' not in dbg: vmc(8)
    T = 56; GD = 40; GA = 48
    def xwrite():
        A(f"ds_write_b32 v45, {vXp} offset:{L_XI}")
        A(f"v_lshlrev_b32 v{GD}, 16, {vXp}")
        A(f"v_and_b32 v{GD+1}, {sHI}, {vXp}")
        A(f"v_mul_f32 v{GD+3}, v{GD}, v{GD}")
        A(f"v_add_f32 v{GD+2}, v{GD}, v{GD+1}")
        A(f"v_fmac_f32 v{GD+3}, v{GD+1}, v{GD+1}")
        A(f"ds_write_b64 v46, {vr(GD+2,2)} offset:{L_ST}")
    stamp(1)
    A(f"s_cmp_lt_u32 {sW}, 5")
    A("s_cbranch_scc0 L_barA")
    xwrite()
    A(f"s_cmp_eq_u32 {sW}, 0")
    A("s_cbranch_scc0 L_barA")
    A(f"s_getreg_b32 {sT0}, hwreg(HW_REG_XCC_ID, 0, 4)")
    A(f"s_mul_i32 s27, {sT0}, {sT0}")
    A(f"s_lshl_b32 s27, s27, 16")
    A(f"s_or_b32 s27, s27, {sT0}")
    A(f"s_lshl_b32 s85, s27, 5")
    if pol < 0:
        A(f"s_lshr_b32 {sT0}, {sT0}, 2")
        A(f"s_lshr_b32 s26, s32, 1")
        A(f"s_xnor_b32 s26, s26, s31")
        A(f"s_xor_b32 s26, s26, {sT0}")
        A(f"s_and_b32 s26, s26, 1")
        if stamps: A(f"v_writelane_b32 {vST}, s26, 61"); A(f"v_writelane_b32 {vST}, s32, 60")
        A(f"s_lshl_b32 s26, s26, 16")
        A(f"s_or_b32 s26, s26, 1")
    else:
        A(f"s_mov_b32 s26, {1 + (pol << 16)}")
    A(f"s_and_b32 {sT0}, {sX}, 4")
    A(f"s_mul_i32 {sT0}, {sT0}, 24")
    A(f"s_lshl_b32 {sT3}, {sX}, 3")
    A(f"s_add_u32 {sT0}, {sT0}, {sT3}")
    lgk(0)
    A(f"s_atomic_add_x2 s[26:27], s[{P(10)[0]}:{P(10)[1]}], {sT0}")
    batch1()
    vmc(8)
    A("s_branch L_barA2")
    A("L_barA:")
    lgk(0)
    A("L_barA2:")
    A(f"s_cmp_ge_u32 {sW}, 4")
    A("s_barrier")
    A("s_cbranch_scc1 L_q_prep0")
    def zeroO():
        for e in range(8):
            A(f"v_mov_b32 v{L0+4*e}, 0"); A(f"v_mov_b32 v{L0+4*e+2}, 0")
    def zeroS():
        for Tt in range(4):
            for r in (0, 1, 6, 7): A(f"v_mov_b32 v{S0+8*Tt+r}, 0")
    qload = f"buffer_load_dwordx4 {vr(vA,4)}, {vL16}, {srd('WS')}, {sA1} offen sc1"
    A("L_stream:")
    A(f"s_lshl_b32 {sA1}, {sHead}, 10")
    A(f"s_add_u32 {sA1}, {sA1}, {QB0}")
    kload(1); kload(2); kload(3)
    def goload(fl):
        A(f"s_load_dwordx8 s[28:35], s[{P(10)[0]}:{P(10)[1]}], 0 {fl}")
        A(f"s_load_dwordx8 s[36:43], s[{P(10)[0]}:{P(10)[1]}], 128 {fl}")
    vload(pre + 4, 8); vload(8, gopos)
    A(f"s_cmp_eq_u32 {sW}, 0")
    A("s_cbranch_scc0 L_nogo")
    goload("")
    A("L_nogo:")
    vload(gopos, 16)
    A(f"v_lshlrev_b32 {v8L}, 3, {vLane}")
    stamp(7)
    A(f"v_mov_b32 v29, 0")
    A(f"s_cmp_lt_u32 {sW}, 4")
    A("s_cbranch_scc0 L_barW")
    A(f"s_cmp_eq_u32 {sW}, {99 if 'noq' in dbg else 0}")
    A("s_cbranch_scc0 L_nostage")
    A("s_branch L_go_chk")
    A("L_go:")
    goload("glc")
    A("L_go_chk:")
    lgk(0)
    A(f"s_lshl_b32 {sT0}, {sX}, 1")
    A(f"s_mov_b32 m0, {sT0}")
    A("s_add_u32 s26, s28, s30")
    A("s_movrels_b32 s44, s29")
    for i in range(2, 8): A(f"s_add_u32 s26, s26, s{28+2*i}")
    A("s_bitcmp1_b32 s26, 8")
    A("s_cbranch_scc1 L_go_ok")
    A(f"s_sub_u32 {sTO}, {sTO}, 1")
    A("s_sleep 32")
    A("s_cbranch_scc0 L_go")
    A("s_branch L_end")
    A("L_go_ok:")
    stamp(19)
    A("s_cmp_eq_u32 s44, s85")
    A(f"s_cselect_b32 {sT0}, {0 if force_slow else 1}, 0")
    A(f"s_cmp_gt_u32 s26, {128 << 16}")
    A("s_cselect_b32 s26, 2, 0")
    A(f"s_or_b32 {sT0}, {sT0}, s26")
    A(f"v_mov_b32 v15, {sT0}")
    A(f"ds_write_b32 v29, v15 offset:{L_FLAG}")
    A("L_q0:")
    A(qload)
    vmc(0)
    A(f"v_max3_u32 v14, v{vA}, v{vA+1}, v{vA+2}")
    A(f"v_max_u32 v14, v14, v{vA+3}")
    A("v_cmp_eq_u32 vcc, -1, v14")
    retry("L_q0", 16)
    A(f"ds_write_b128 {vL16}, {vr(vA,4)} offset:{L_Q}")
    A("s_branch L_nostage")
    A("L_barW:")
    A("s_barrier")
    A("L_nostage:")
    for l in [f"s_lshl_b32 {sT0}, {sW}, 9", f"v_lshl_add_u32 {vOPw}, {vLane}, 5, {sT0}", f"v_and_b32 {vMLr}, 56, {v8L}",
              f"s_lshl_b32 {sO1}, {sHead}, 11", f"s_lshl_b32 {sT0}, {sC}, 5", f"s_add_u32 {sO1}, {sO1}, {sT0}",
              f"v_lshrrev_b32 v28, 3, {vLane}", f"v_lshrrev_b32 {vOpub}, 1, {vMLr}",
              f"v_lshl_add_u32 {vOpub}, v28, 8, {vOpub}", f"v_and_b32 v28, 6, v28",
              f"s_lshl_b32 {sO2}, {sHead}, 5", f"s_lshl_b32 {sT0}, {sC}, 2", f"s_add_u32 {sO2}, {sO2}, {sT0}", f"s_add_u32 {sO2}, {sO2}, {AB}",
              f"v_add_lshl_u32 {vAoff}, v28, {vLane}, 2", f"v_lshlrev_b32 v28, 30, {vLane}",
              f"v_and_b32 {vAoff}, 28, {vAoff}", f"v_and_b32 v28, 0x40000000, v28", f"v_lshl_add_u32 {vYoff}, {vLane}, 1, v28",
              f"s_lshl_b32 {sP1}, {sX}, 13", f"s_lshl_b32 {sT0}, {sW}, 10", f"s_add_u32 {sP1}, {sP1}, {sT0}",
              f"s_lshl_b32 {sP2}, {sX}, 7", f"s_lshr_b32 {sT0}, {sW}, 1", f"s_lshl_b32 {sT0}, {sT0}, 5",
              f"s_add_u32 {sP2}, {sP2}, {sT0}", f"s_add_u32 {sP2}, {sP2}, {AB}",
              ]:
        A(l)
    zeroS()
    vmc(12 - pre)
    A("L_ql:")
    A(f"ds_read_b128 {vr(vA,4)}, {vL16} offset:{L_Q}")
    A(f"ds_read_b32 v15, v29 offset:{L_FLAG}")
    lgk(0)
    A(f"v_cmp_eq_u32 vcc, -1, v{vA}")
    if 'noq' not in dbg: retry("L_ql", 4)
    A(f"v_readfirstlane_b32 {sFast}, v15")
    A(f"s_getreg_b32 {sNear}, hwreg(HW_REG_XCC_ID, 2, 1)")
    A(f"s_lshr_b32 {sT0}, {sFast}, 1")
    A(f"s_xor_b32 {sNear}, {sNear}, {sT0}")
    A(f"s_lshl_b32 {sNear}, {sNear}, 13")
    A(f"s_and_b32 {sFast}, {sFast}, 1")
    A("s_branch L_qpoll_ok")

    A("L_g:")
    A(f"s_mul_i32 {sM}, {sX}, 1280")
    A(f"s_add_u32 {sM}, {sM}, {sLay}")
    A(f"s_add_u32 {sM}, {sM}, {XB}")
    A(f"s_cmp_eq_u32 {sMode}, 0")
    A(f"s_cselect_b32 {sT0}, 6, 7")
    A(f"s_cselect_b32 {sT1}, 63, 127")
    A(f"s_cselect_b32 {sT2}, {(2560 - LSTRIDE) & 0xffffffff}, 0")
    A(f"s_cselect_b32 {sT3}, 0, 1280")
    A(f"v_lshrrev_b32 v53, {sT0}, {vD4}")
    A(f"v_and_b32 v52, {sT1}, {vD4}")
    A(f"v_lshl_add_u32 v53, v53, 7, v52")
    A(f"s_add_u32 s28, {sT2}, {sLay}")
    A(f"s_add_u32 s28, s28, {YB}")
    A(f"s_add_u32 s28, s28, {sNear}")
    A(f"s_sub_u32 {sT2}, 2560, {sT3}")
    A(f"s_add_u32 s29, s28, {sT2}")
    for p in range(2, 8): A(f"s_add_u32 s{28+p}, s{26+p}, 16384")
    A(f"v_add_u32 v45, {sT3}, {vD4}")
    A(f"v_lshlrev_b32 v46, 1, v45")
    A(f"v_lshrrev_b32 v52, 1, {vLane}")
    A(f"v_xor_b32 v52, v52, {vLane}")
    A(f"v_and_b32 v52, 8, v52")
    A(f"v_and_b32 v54, 6, {vLane}")
    A(f"v_or_b32 v52, v52, v54")
    A("v_mov_b32 v55, 0x3f803f80")
    A("v_cmp_eq_u32 vcc, 0, v52")
    A(f"v_and_b32 v54, 1, {vLane}")
    A(f"v_mul_u32_u24 v54, 0x5555, v54")
    A(f"v_cndmask_b32 v{GA}, 0, v55, vcc")
    A(f"v_cndmask_b32 v{GA+1}, 0, v55, vcc")
    A("v_cmp_eq_u32 vcc, 4, v52")
    A(f"v_add_u32 v54, 0x8888, v54")
    A(f"v_cndmask_b32 v{GA+2}, 0, v55, vcc")
    A(f"v_cndmask_b32 v{GA+3}, 0, v55, vcc")
    A(f"s_cmp_eq_u32 {sMode}, 0")
    A("s_cbranch_scc0 L_g_x")
    A(f"s_sub_u32 {sM}, {sM}, {LSTRIDE}")
    poll("L_xpoll", [f"buffer_load_dword {vXp}, {vD4}, {srd('WS')}, {sM} offen sc1"], [vXp], sl_x, depth=1)
    stamp(4)
    if d_f: A(f"s_sleep {d_f}")
    if d_z > d_f:
        A(f"s_cmp_eq_u32 {sL}, 2"); A("s_cbranch_scc1 L_g_x"); A(f"s_sleep {d_z - d_f}")
    A("L_g_x:")
    yl = [f"buffer_load_dword v{T+p}, v53, {srd('WS')}, s{28+p} offen sc1" for p in range(8)]
    for l in yl: A(l)
    A(f"v_lshlrev_b32 v{GD}, 16, {vXp}")
    A(f"v_and_b32 v{GD+1}, {sHI}, {vXp}")
    A(f"s_cmp_eq_u32 {sL}, 0")
    A("s_cbranch_scc1 L_hook")
    A("L_ychk:")
    vmc(0)
    A("L_ychk2:")
    missing([f"v{T+p}" for p in range(8)])
    A("s_cbranch_vccnz L_yretry")
    t = ["L_yretry:", f"s_sub_u32 {sTO}, {sTO}, 1", "s_cbranch_scc1 L_end"]
    if sl_y: t.append(f"s_sleep {sl_y}")
    mk_ = [f"s[{r}:{r+1}]" for r in (26, 42, 44, 52, 54, 96, 98)] + ["vcc"]
    for p in range(8): t.append(f"v_cmp_eq_u32 {mk_[p]}, -1, v{T+p}")
    for p in range(8):
        t += [f"s_mov_b64 exec, {mk_[p]}", yl[p]]
    t.append("s_mov_b64 exec, -1")
    if freerun:
        if freerun > 1: t.append(f"s_waitcnt vmcnt({8*(freerun-1)})")
        t.append("s_branch L_ychk2")
    else:
        t.append("s_branch L_ychk")
    tails.append(t)
    if stamps:
        A(f"s_add_u32 {sSI}, {sSI}, {sMode}"); stamp(2); A(f"s_sub_u32 {sSI}, {sSI}, {sMode}")
    A(f"{SMF} {vr(GD,4)}, {vr(GA,4)}, {vr(T,8)}, v54")
    A(f"s_cmp_eq_u32 {sL}, 2")
    A(f"v_cvt_pk_bf16_f32 {vXp}, v{GD}, v{GD+1}")
    A("s_cbranch_scc1 L_final")
    xwrite()
    A("L_g_bar:")
    lgk(0)
    A("s_barrier")
    A(f"s_cmp_eq_u32 {sMode}, 1")
    A("s_cbranch_scc1 L_up_m")

    QW = L0 + 32; QD = L0 + 56; QC = L0 + 60; XA = 44; vQs = f"v{L0+61}"; vQp = f"v{L0+62}"
    def q_prep():
        A(f"s_sub_u32 {sV_}, {sW}, 4")
        tr128("v14", 16)
        A(f"s_lshl_b32 {sT0}, {sV_}, 5")
        A(f"v_xor_b32 v14, {sT0}, v14")
        for t in range(3):
            for rp in range(4):
                hb, rho = rp >> 1, rp & 1
                if t == 2 and hb: continue
                A(f"ds_read_b64_tr_b16 {vr(QW+8*t+2*rp,2)}, v14 offset:{L_WQ + (64*t+32*hb+2*rho)*128}")
        for r in range(4):
            A(f"v_mov_b32 v{QW+20+r}, 0"); A(f"v_mov_b32 v{QD+r}, 0")
        A(f"v_and_b32 v16, 48, {vLane}")
        A(f"v_and_b32 v15, 1, {vLane}")
        A(f"v_lshlrev_b32 v16, 1, v16")
        A(f"v_lshl_add_u32 v16, v15, 4, v16")
        A(f"s_lshr_b32 {sT0}, {sC}, 1")
        A(f"s_mul_i32 {sT0}, {sT0}, 320")
        A(f"v_add_u32 v16, {sT0}, v16")
        A(f"v_add_u32 v17, 256, v16")
        A(f"v_mov_b32 v15, {L_ZERO - L_XI}")
        A(f"v_cmp_gt_u32 vcc, 32, {vLane}")
        A(f"v_lshlrev_b32 {vQs}, 3, {vLane}")
        A("v_cndmask_b32 v17, v15, v17, vcc")
        A(f"v_and_b32 v15, 12, {vLane}")
        A("v_cmp_eq_u32 vcc, 4, v15")
        A(f"v_mov_b32 v15, {L_ONE - L_XI}")
        A("v_cndmask_b32 v16, v16, v15, vcc")
        A("v_cndmask_b32 v17, v17, v15, vcc")
        qpub_off(vQp, "v15", False)
        A(f"v_and_b32 v15, 0x31, {vLane}")
        A("v_cmp_eq_u32 vcc, 0, v15")
        A(f"v_mov_b32 v15, {OOB}")
        qpub_cu(sA2, sT0)
        A(f"v_cndmask_b32 {vQp}, v15, {vQp}, vcc")
        A(f"s_lshl_b32 {sT0}, {sV_}, 8"); A(f"s_add_u32 {sA2}, {sA2}, {sT0}")
        setprio(3)
    A(f"s_cmp_ge_u32 {sW}, 4")
    A("s_cbranch_scc0 L_att1")
    A("L_q_go:")
    stamp(5)
    for k in range(5): A(f"ds_read_b64 {vr(32+2*k,2)}, {vQs} offset:{L_ST + 512*k}")
    A(f"ds_read_b128 {vr(XA,4)}, v16 offset:{L_XI}")
    A(f"ds_read_b128 {vr(XA+4,4)}, v16 offset:{L_XI + 128}")
    A(f"ds_read_b128 {vr(XA+8,4)}, v17 offset:{L_XI}")
    stats_and_mfma(lambda i: A(f"{SMF} {vr(QD,4)}, {vr(XA+4*i,4)}, {vr(QW+8*i,8)}, {vIdx}"), 3,
                   [f"v_add_f32 v{QC}, v{QD}, v{QD+1}", f"v_add_f32 v{QD}, v{QD}, v{QD+1}", "", f"v_permlane16_swap_b32 v{QD}, v{QC}"])
    A(f"v_mul_f32 v33, {LOG2E/math.sqrt(128)!r}, v33")
    A(f"v_fma_f32 v{QD}, -{sT0}, v{QC}, v{QD}")
    A(f"v_readlane_b32 {sT1}, v33, 63")
    A(f"v_mov_b32_dpp v34, v{QD} quad_perm:[1,1,3,3] {DPPF}")
    A(f"v_mul_f32 v{QD}, {sT1}, v{QD}")
    A(f"v_mul_f32 v34, {sT1}, v34")
    A(f"v_cvt_pk_bf16_f32 v35, v{QD}, v34")
    A("v_min_u32 v35, -2, v35")
    store_intra("L_q_st", [f"buffer_store_dword v35, {vQp}, {srd('WS')}, {sA2} offen"], scc_ready=True)
    stamp(6)
    setprio(0)

    WW = L0 + 32; D0 = L0
    def wo_tr():
        tr128("v14", 16)
        A(f"s_lshl_b32 {sT0}, {sW}, 13")
        A(f"s_add_u32 {sT0}, {sT0}, {L_R1}")
        A(f"v_add_u32 v14, {sT0}, v14")
        for cb in range(1, 4): A(f"v_xor_b32 v{14+cb}, {32*cb}, v14")
        return [f"ds_read_b64_tr_b16 {vr(WW+8*cb+2*rp,2)}, v{14+cb} offset:{(32*(rp>>1)+2*(rp&1))*128}"
                for cb in (0, 2, 1, 3) for rp in range(4)]
    A(f"s_cmp_eq_u32 {sL}, 0")
    A("s_cbranch_scc1 L_stream")
    A("L_att1:")
    A(f"s_lshl_b32 {sA1}, {sHead}, 10")
    A(f"s_add_u32 {sA1}, {sA1}, {QB1}")
    def att_prep(tag):
        zeroS()
        A(f"s_cmp_eq_u32 {sRole}, 0")
        A(f"s_cbranch_scc0 L_notr{tag}")
        for l in wo_tr(): A(l)
        A(f"L_notr{tag}:")
    if qbar:
        A(f"s_cmp_ge_u32 {sW}, 4")
        A("s_cbranch_scc1 L_qlate")
        vmc(0)
        att_prep("a")
        if lateprio: setprio(1)
        A("s_barrier")
        if d_q: A(f"s_sleep {d_q}")
        A(qload)
        if pdq > 1: A(f"s_sleep {gapq}")
        A("s_branch L_qjoin")
        A("L_qlate:")
        A("s_barrier")
        if qbar == 1: A(qload)
        vmc(2 if qbar == 1 else 1)
        att_prep("b")
        if qbar == 2: A(qload)
        A("L_qjoin:")
    else:
        A(qload)
        att_prep("a")
    stamp(7)
    poll("L_qpoll", [qload], [f"v{vA+i}" for i in range(4)], sl_q, first_issued=True, depth=pdq)
    stamp(8)
    def tsum(Tt):
        b = S0 + 8*Tt
        return [f"v_add_f32 v{b}, v{b}, v{b+1}", f"v_add_f32 v{b+6}, v{b+6}, v{b+7}", f"v_add_f32 v{b}, v{b}, v{b+6}"]
    shadow = [[]]*8
    for idx, Tt in enumerate([0, 2, 1, 3]):
        for kp in range(2):
            A(f"{SMF} {vr(S0+8*Tt+4*kp,4)}, {vr(vA,4)}, {vr(K0+16*Tt+8*kp,8)}, {vIdx}")
            for l in shadow[2*idx+kp]: A(l)
    if prio and lateprio:
        A(f"s_cmp_ge_u32 {sW}, 4")
        A("s_cbranch_scc0 L_noprio")
        A("s_setprio 2")
        A("L_noprio:")
    for l in tsum(0) + tsum(2) + tsum(1): A(l)
    A(f"v_permlane32_swap_b32 v{S0}, v{S0+16}")
    for l in tsum(3): A(l)
    A(f"v_add_f32 v{S0}, v{S0}, v{S0+16}")
    A(f"v_permlane32_swap_b32 v{S0+8}, v{S0+24}")
    A(f"v_add_f32 v{S0+8}, v{S0+8}, v{S0+24}")
    A(f"v_permlane16_swap_b32 v{S0}, v{S0+8}")
    A(f"v_add_f32 v14, v{S0}, v{S0+8}")
    stamp(31, True)
    A(f"v_max_f32_dpp v16, v14, v14 {steps[0]}")
    for st in steps[1:]: A(f"v_max_f32_dpp v16, v16, v16 {st}")
    A(f"v_readlane_b32 {sM}, v16, 63")
    A(f"s_cmp_eq_u32 {sL}, 0")
    A(f"v_subrev_f32 v14, {sM}, v14")
    A("v_exp_f32 v14, v14")
    A(f"v_mov_b32_dpp v15, v14 quad_perm:[1,1,3,3] {DPPF}")
    vP = 20
    A(f"v_cvt_pk_bf16_f32 v{vP}, v14, v15")
    A(f"v_add_f32_dpp v17, v14, v14 {steps[0]}")
    for q in range(1, 4): A(f"v_mov_b32_dpp v{vP+q}, v{vP} row_ror:{16-4*q} {DPPF}")
    A("s_cbranch_scc1 L_vland")
    A("L_pv:")
    if lateprio == 2: setprio(1)
    stamp(32, True)
    for e in range(8):
        A(f"{SMF} {vr(L0+4*e,4)}, {vr(vP,4)}, {vr(V0+8*e,8)}, {vIdx} abid:1")
        if e < 5: A(f"v_add_f32_dpp v17, v17, v17 {steps[e+1]}")
        if e == 4: A(f"ds_write_b64 {vML}, v[16:17] offset:{L_ML}")
        if e >= 5: A(f"v_add_f32 v{S0+e-5}, v{L0+4*(e-5)}, v{L0+4*(e-5)+2}")
    def owrite():
        for e in range(3, 8): A(f"v_add_f32 v{S0+e}, v{L0+4*e}, v{L0+4*e+2}")
        A("s_mov_b64 exec, 0xffff")
        A(f"ds_write_b128 {vOPw}, {vr(S0,4)} offset:{L_OP}")
        A(f"ds_write_b128 {vOPw}, {vr(S0+4,4)} offset:{L_OP+16}")
        A("s_mov_b64 exec, -1")
    A(f"s_cmp_lt_u32 {sW}, 4")
    A("s_cbranch_scc1 L_early")
    lgk(0)
    stamp(33, True)
    A("s_barrier")
    stamp(34, True)
    owrite()
    A("L_noread:")
    lgk(0)
    stamp(10)
    A("s_barrier")
    if 'stop' in dbg: A("s_branch L_end")
    setprio(0)
    A(f"s_cmp_eq_u32 {sL}, 0")
    A("s_cbranch_scc1 L_rank")
    A("s_branch L_roles")
    A("L_early:")
    A("s_nop 3")
    owrite()
    A(f"s_cmp_eq_u32 {sL}, 0")
    A("s_cbranch_scc1 L_pfw")
    A("L_pfw_done:")
    A(f"s_cmp_eq_u32 {sW}, 0")
    lgk(0)
    A("s_barrier")
    A("s_cbranch_scc0 L_noread")
    A(f"ds_read_b64 v[16:17], {vMLr} offset:{L_ML}")
    lgk(0)
    A(f"v_max_f32_dpp v14, v16, v16 {steps[0]}")
    for st in steps[1:3]: A(f"v_max_f32_dpp v14, v14, v14 {st}")
    A("v_sub_f32 v16, v16, v14")
    A("v_exp_f32 v16, v16")
    stamp(10)
    A("s_barrier")
    mark("att1", 0)
    stamp(18, True)
    if 'stop' in dbg: A("s_branch L_end")
    for w in range(8): A(f"ds_read_b64 {vr(40+2*w,2)}, {v8L} offset:{L_OP + 512*w}")
    A("v_mul_f32 v17, v16, v17")
    A(f"s_cmp_eq_u32 {sFast}, 0")
    for st in steps[:3]: A(f"v_add_f32_dpp v17, v17, v17 {st}")
    A("v_rcp_f32 v15, v17")
    A("v_log_f32 v17, v17")
    A("v_mul_f32 v16, v16, v15")
    A("v_add_f32 v17, v17, v14")
    A("v_min_u32 v17, -2, v17")
    store_intra("L_a_st", ["s_mov_b64 exec, 1", f"buffer_store_dword v17, off, {srd('WS')}, {sO2}", "s_mov_b64 exec, -1"], scc_ready=True)
    lgk(6)
    A(f"v_mul_f32_dpp v20, v16, v40 row_newbcast:0 {DPPF}")
    A(f"v_mul_f32_dpp v21, v16, v41 row_newbcast:0 {DPPF}")
    A(f"v_mul_f32_dpp v22, v16, v42 row_newbcast:1 {DPPF}")
    A(f"v_mul_f32_dpp v23, v16, v43 row_newbcast:1 {DPPF}")
    for w in range(2, 8):
        if w in (2, 4, 6): lgk(6 - w)
        A(f"v_fmac_f32_dpp v{20+2*(w&1)}, v16, v{40+2*w} row_newbcast:{w} {DPPF}")
        A(f"v_fmac_f32_dpp v{21+2*(w&1)}, v16, v{41+2*w} row_newbcast:{w} {DPPF}")
    A("v_pk_add_f32 v[20:21], v[20:21], v[22:23]")
    A("v_cvt_pk_bf16_f32 v20, v20, v21")
    A("v_min_u32 v20, -2, v20")
    store_intra("L_o_st", [f"buffer_store_dword v20, {vOpub}, {srd('WS')}, {sO1} offen"], scc_ready=True)
    stamp(11)
    A(f"s_cmp_eq_u32 {sL}, 0")
    A("s_cbranch_scc1 L_pf2")
    A("L_roles:")
    A(f"s_cmp_eq_u32 {sRole}, 0")
    A("s_cbranch_scc0 L_notwo")

    aload = f"buffer_load_dword v14, {vAoff}, {srd('WS')}, {sP2} offen sc1"
    oload = f"buffer_load_dwordx4 {vr(vA,4)}, {vL16}, {srd('WS')}, {sP1} offen sc1"
    A(f"s_cmp_eq_u32 {sL}, 0")
    A("s_cbranch_scc1 L_wo_dma")
    A("L_wo_have:")
    A(aload); A(oload)
    for r in range(16): A(f"v_mov_b32 v{D0+r}, 0")
    stamp(12)
    poll("L_apoll", [aload, oload], ["v14"], sl_o, first_issued=True, depth=pdo)
    stamp(35, True)
    if pdo == 1: A(oload)
    A(f"v_max_f32_dpp v16, v14, v14 {steps[0]}")
    for st in steps[1:3]: A(f"v_max_f32_dpp v16, v16, v16 {st}")
    A("v_sub_f32 v15, v14, v16")
    A("v_exp_f32 v15, v15")
    A(f"v_add_f32_dpp v16, v15, v15 {steps[0]}")
    for st in steps[1:3]: A(f"v_add_f32_dpp v16, v16, v16 {st}")
    A("v_rcp_f32 v16, v16")
    lgk(0)
    missing([f"v{vA+i}" for i in range(4)])
    A("v_mul_f32 v15, v15, v16")
    A("s_cbranch_vccz L_opoll_ok")
    poll("L_opoll", [oload], [f"v{vA+i}" for i in range(4)], sl_o, first_issued=True, depth=pdo)
    stamp(13)
    cbo = [0, 2, 1, 3]
    for cb in cbo: A(f"{SMF} {vr(D0+4*cb,4)}, {vr(vA,4)}, {vr(WW+8*cb,8)}, {vIdx}")
    A(f"v_mov_b32_dpp v16, v15 row_newbcast:0 {DPPF}")
    A(f"v_mov_b32_dpp v17, v15 row_newbcast:1 {DPPF}")
    def wsum(cb):
        d = D0 + 4*cb
        A(f"v_add_f32 v{d}, v{d}, v{d+1}")
        A(f"v_add_f32 v{d+2}, v{d+2}, v{d+3}")
        A(f"v_mul_f32 v{d}, v16, v{d}")
        A(f"v_fmac_f32 v{d}, v17, v{d+2}")
    wsum(0); wsum(2); wsum(1)
    A(f"v_permlane32_swap_b32 v{D0}, v{D0+8}")
    wsum(3)
    A(f"v_add_f32 v{D0}, v{D0}, v{D0+8}")
    A(f"v_permlane32_swap_b32 v{D0+4}, v{D0+12}")
    A(f"v_add_f32 v{D0+4}, v{D0+4}, v{D0+12}")
    A(f"v_permlane16_swap_b32 v{D0}, v{D0+4}")
    A(f"v_add_f32 v{D0}, v{D0}, v{D0+4}")
    A(f"ds_write_b32 {vD4}, v{D0} offset:{L_RED}")
    A(f"s_cmp_eq_u32 {sW}, 0")
    lgk(0)
    stamp(19, True)
    if stamps == 3: A(f"s_cmp_eq_u32 {sW}, 0")
    A("s_barrier")
    A("s_cbranch_scc0 L_wo_done")
    stamp(1, True)
    for w in range(4): A(f"ds_read2st64_b32 {vr(40+2*w,2)}, {vD4} offset0:{L_RED//256 + 2*w} offset1:{L_RED//256 + 2*w + 1}") if L_RED % 256 == 0 else None
    if L_RED % 256:
        for w in range(8): A(f"ds_read_b32 v{40+w}, {vD4} offset:{L_RED + 256*w}")
        lgk(4)
    else:
        lgk(2)
    A("v_pk_add_f32 v[40:41], v[40:41], v[42:43]")
    A(f"s_xor_b32 {sT3}, {sY}, 8192")
    lgk(0)
    A("v_pk_add_f32 v[44:45], v[44:45], v[46:47]")
    A("v_pk_add_f32 v[40:41], v[40:41], v[44:45]")
    A("v_add_f32 v40, v40, v41")
    packpair("v42", "v40", "v41")
    A(f"buffer_store_dword v42, {vYoff}, {srd('WS')}, {sY} offen sc1")
    if dual: A(f"buffer_store_dword v42, {vYoff}, {srd('WS')}, {sT3} offen sc1")
    stamp(14)
    A("L_wo_done:")
    A(f"s_cmp_eq_u32 {sL}, 0")
    A("s_cbranch_scc0 L_w2_have")
    dma128("v20", 1280, sW)
    A(f"s_mul_i32 {sT0}, {sX}, 224")
    A(f"s_lshl_b32 {sT1}, {sW}, 3")
    A(f"s_add_u32 {sT0}, {sT0}, {sT1}")
    A(f"s_mul_i32 {sT0}, {sT0}, 1280")
    A(f"s_lshl_b32 {sT1}, {sR}, 7")
    A(f"s_add_u32 {sT0}, {sT0}, {sT1}")
    A(f"s_lshl_b32 {sT3}, {sW}, 10")
    A("s_barrier")
    for k in range(4):
        if k == 3:
            A(f"s_cmp_lt_u32 {sW}, 4"); A("s_cbranch_scc0 L_w2_iss")
        A(f"s_add_u32 m0, {sT3}, {L_W2 + k*8192}")
        if k: A(f"s_add_u32 {sT0}, {sT0}, {64*1280}")
        A(f"buffer_load_dwordx4 v20, {srd('W2')}, {sT0} offen {nt} lds")
    A("L_w2_iss:")
    vmc(0)
    A("s_barrier")
    A("L_w2_have:")
    A(f"s_sub_u32 {sV_}, {sW}, 5")
    A(f"s_cmp_lt_u32 {sV_}, 2")
    A("s_cbranch_scc0 L_nextlayer")
    A1 = 48; W = L0; DD = 32
    tr128("v21", 0)
    A(f"s_lshl_b32 {sT0}, {sV_}, 6")
    A(f"v_xor_b32 v21, {sT0}, v21")
    A(f"v_add_u32 v21, {L_W2}, v21")
    A(f"v_and_b32 v20, 32, {vLane}")
    A(f"v_lshl_add_u32 v20, v20, 7, v21")
    A("v_xor_b32 v22, 32, v20")
    A("v_xor_b32 v23, 32, v21")
    A("s_sleep 4")
    for cb in range(2):
        for u in range(2):
            for kp in range(2):
                for rp in range(4):
                    hb, rho = rp >> 1, rp & 1
                    A(f"ds_read_b64_tr_b16 {vr(W+32*cb+16*u+8*kp+2*rp,2)}, v{20 + 2*cb + (1 if (u and hb) else 0)} offset:{(128*u+64*hb+16*kp+2*rho)*128}")
    for r in range(16): A(f"v_mov_b32 v{DD+r}, 0")
    A(f"v_mov_b32 v26, {OOB}")
    A(f"v_cmp_gt_u32 vcc, {sNCH}, {vQ64}")
    A(f"s_lshl_b32 {sA1}, {sX}, 9")
    A(f"s_add_u32 {sA1}, {sA1}, {sLay}")
    A(f"v_cndmask_b32 v25, v26, {vQ64}, vcc")
    A(f"s_add_u32 {sA1}, {sA1}, {HB}")
    A(f"v_cmp_gt_u32 vcc, 32, {vLane}")
    A(f"s_and_b32 {sT2}, {sX}, 1")
    A(f"s_mul_i32 {sT2}, {sT2}, 1280")
    A(f"v_cndmask_b32 v26, v26, {vYoff}, vcc")
    A(f"s_add_u32 {sT0}, {sR}, {sV_}"); A(f"s_lshl_b32 {sT0}, {sT0}, 7")
    A(f"s_add_u32 {sT2}, {sT2}, {sT0}")
    A(f"s_add_u32 {sT2}, {sT2}, {sY}")
    A(f"s_add_u32 {sT2}, {sT2}, 2560")
    A(f"s_xor_b32 {sT3}, {sT2}, 8192")
    setprio(3)
    lgk(0)
    stamp(15)
    poll("L_hpoll", [f"buffer_load_dwordx4 {vr(vA,4)}, {vQ64}, {srd('WS')}, {sA1} offen sc1",
                     f"buffer_load_dwordx4 {vr(A1,4)}, v25, {srd('WS')}, {sA1} offen offset:256 sc1"],
         [f"v{vA+i}" for i in range(4)] + [f"v{A1+i}" for i in range(4)], sl_h)
    stamp(16)
    for cb in range(2):
        for kp in range(2):
            for u in range(2):
                A(f"{SMF} {vr(DD+8*cb+4*kp,4)}, {vr(A1 if u else vA,4)}, {vr(W+32*cb+16*u+8*kp,8)}, {vIdx}")
    A(f"v_add_f32 v{DD}, v{DD}, v{DD+1}")
    A(f"v_add_f32 v{DD+6}, v{DD+6}, v{DD+7}")
    A(f"v_add_f32 v14, v{DD}, v{DD+6}")
    A(f"v_add_f32 v{DD+8}, v{DD+8}, v{DD+9}")
    A(f"v_add_f32 v{DD+14}, v{DD+14}, v{DD+15}")
    A(f"v_add_f32_dpp v14, v{DD+8}, v{DD+14} quad_perm:[0,1,2,3] row_mask:0x2 bank_mask:0xf")
    packpair("v22", "v14", "v15")
    A(f"buffer_store_dword v22, v26, {srd('WS')}, {sT2} offen sc1")
    if dual: A(f"buffer_store_dword v22, v26, {srd('WS')}, {sT3} offen sc1")
    stamp(17)
    vmc(1 + dual)
    A("s_branch L_nextlayer")

    A("L_notwo:")
    A(f"s_cmp_eq_u32 {sRole}, 2")
    A("s_cbranch_scc1 L_nextlayer")
    UW = L0; UA = L0 + 40; UD = L0 + 60; UC = 43
    A(f"s_cmp_eq_u32 {sL}, 0")
    A("s_cbranch_scc0 L_w13_have")
    A(f"s_mul_i32 {sT0}, {sX}, {14*32}")
    A(f"s_lshl_b32 {sT1}, {sR}, 5")
    A(f"s_add_u32 {sT0}, {sT0}, {sT1}")
    A(f"s_sub_u32 {sT0}, {sT0}, 320")
    A(f"s_mul_i32 {sT1}, {sW}, {16*3456}")
    A(f"s_add_u32 {sT0}, {sT0}, {sT1}")
    A(f"v_lshrrev_b32 v21, 2, {vLane}")
    A(f"v_lshrrev_b32 v20, 4, {vLane}")
    A(f"v_and_b32 v20, 2, v20")
    A(f"v_xor_b32 v21, v21, v20")
    A("v_mul_u32_u24 v21, 3456, v21")
    A(f"v_xor_b32 v20, {vL16}, {vLane}")
    A(f"v_and_b32 v20, 16, v20")
    A(f"v_add3_u32 v21, {sT0}, v21, v20")
    A(f"v_and_b32 v20, 2, {vLane}")
    A("v_cmp_eq_u32 vcc, 0, v20")
    A(f"v_mov_b32 v22, s{P(7)[0]}"); A(f"v_mov_b32 v23, s{P(7)[1]}")
    A(f"v_mov_b32 v14, s{P(6)[0]}"); A(f"v_mov_b32 v15, s{P(6)[1]}")
    A("v_cndmask_b32 v22, v22, v14, vcc"); A("v_cndmask_b32 v23, v23, v15, vcc")
    A("v_add_co_u32 v22, vcc, v22, v21"); A("v_addc_co_u32 v23, vcc, 0, v23, vcc")
    A(f"s_lshl_b32 {sT2}, {sW}, 10")
    A("s_barrier")
    for k in range(5):
        if k:
            A(f"v_add_co_u32 v22, vcc, {8*16*3456}, v22"); A("v_addc_co_u32 v23, vcc, 0, v23, vcc")
        A(f"s_add_u32 m0, {sT2}, {L_R1 + k*8192}")
        A(f"global_load_lds_dwordx4 v[22:23], off {dfl}")
    A("s_branch L_w13_iss")
    A("L_w13_have:")
    A("s_barrier")
    stamp(12)
    A("L_w13_iss:")
    A(f"s_mov_b32 {sMode}, 1")
    A(f"s_cmp_ge_u32 {sW}, 4")
    A("s_cbranch_scc0 L_up_g")
    A(f"s_sub_u32 {sV_}, {sW}, 4")
    A(f"v_and_b32 v14, 32, {vLane}")
    A(f"v_and_b32 v15, 2, {vLane}")
    A(f"v_lshl_add_u32 v14, v15, 3, v14")
    A(f"v_add_u32 v14, v14, {vR0}")
    A(f"v_lshlrev_b32 v14, 6, v14")
    A(f"v_and_b32 v15, 1, {vLane}")
    A(f"v_lshl_add_u32 v14, v15, 5, v14")
    A(f"v_and_b32 v15, 8, {vLane}")
    A(f"v_lshl_add_u32 v14, v15, 4, v14")
    A(f"v_and_b32 v15, 16, {vLane}")
    A(f"v_add_u32 v14, v14, v15")
    A(f"s_lshl_b32 {sT0}, {sV_}, 3")
    A(f"v_xor_b32 v14, {sT0}, v14")
    A(f"v_add_u32 v14, {L_R1}, v14")
    A(f"v_xor_b32 v17, 128, v14")
    up_reads = [f"ds_read_b64_tr_b16 {vr(UW+8*u+2*rp,2)}, {'v17' if rp & 1 else 'v14'} offset:{(128*u+64*(rp>>1))*64}"
                for u in range(5) for rp in range(4)]
    for r in range(4):
        A(f"v_mov_b32 v{UD+r}, 0")
    A(f"v_and_b32 v15, 12, {vLane}")
    A("v_cmp_eq_u32 vcc, 4, v15")
    A(f"v_mov_b32 v15, {L_ONE - L_XI - 1280}")
    A(f"s_lshl_b32 {sA2}, {sX}, 9")
    A(f"v_cndmask_b32 v16, {vQ64}, v15, vcc")
    A(f"v_cmp_gt_u32 vcc, 4, {vLane}")
    A(f"v_mov_b32 v15, {OOB}")
    A(f"s_add_u32 {sA2}, {sA2}, {sT0}")
    A(f"v_cndmask_b32 v25, v15, {vYoff}, vcc")
    A(f"s_lshl_b32 {sT0}, {sR}, 5"); A(f"s_add_u32 {sA2}, {sA2}, {sT0}")
    A(f"s_add_u32 {sA2}, {sA2}, {HB - 320}")
    A(f"s_add_u32 {sA2}, {sA2}, {sLay}")
    setprio(3)
    A(f"s_cmp_eq_u32 {sL}, 0")
    A("s_cbranch_scc1 L_up0")
    for l in up_reads: A(l)
    A(f"s_cmp_eq_u32 {sW}, 4")
    A("s_cbranch_scc0 L_g_bar")
    if d_y > 4: A(f"s_sleep {d_y - 4}")
    A("s_branch L_g")
    A("L_up_g:")
    if d_y:
        A(f"s_cmp_eq_u32 {sL}, 0"); A("s_cbranch_scc1 L_g"); A(f"s_sleep {d_y}")
    A("s_branch L_g")
    A("L_up_m:")
    A(f"s_cmp_ge_u32 {sW}, 4")
    A("s_cbranch_scc0 L_xpub")
    stamp(13)
    for k in range(5): A(f"ds_read_b64 {vr(32+2*k,2)}, {v8L} offset:{L_ST + 2560 + 512*k}")
    for u in range(5): A(f"ds_read_b128 {vr(UA+4*u,4)}, v16 offset:{L_XI + 1280 + 256*u}")
    stats_and_mfma(lambda i: A(f"{SMF} {vr(UD,4)}, {vr(UA+4*i,4)}, {vr(UW+8*i,8)}, {vIdx}"), 5,
                   ["", "", "", f"v_add_f32 v{UD+2}, v{UD+2}, v{UD+3}", f"v_add_f32 v{UD}, v{UD}, v{UD+1}", "",
                    f"v_add_f32_dpp v{UC}, v{UD+2}, v{UD} row_shl:8 {DPPF}", f"v_add_f32_dpp v{UD}, v{UD+2}, v{UD} row_shl:8 {DPPF}",
                    f"v_readlane_b32 {sT1}, v33, 63", f"v_permlane16_swap_b32 v{UD}, v{UC}"])
    A(f"v_fma_f32 v{UD}, -{sT0}, v{UC}, v{UD}")
    A(f"v_mul_f32 v{UD}, {sT1}, v{UD}")
    A(f"v_mul_f32 v34, {-LOG2E!r}, v{UD}")
    A("v_exp_f32 v34, v34")
    A(f"v_mul_f32_dpp v{UD}, v{UD}, v{UD} row_shl:4 {DPPF}")
    A("v_add_f32 v34, 1.0, v34")
    A("v_rcp_f32 v34, v34")
    A(f"v_mul_f32 v{UD}, v{UD}, v34")
    packpair("v35", f"v{UD}", "v34")
    store_intra("L_h_st", [f"buffer_store_dword v35, v25, {srd('WS')}, {sA2} offen"], scc_ready=True)
    stamp(14)
    A("L_xpub:")
    A(f"s_cmp_eq_u32 {sR}, 10")
    A(f"s_cselect_b32 {sT0}, {sW}, 7")
    A(f"s_cmp_lt_u32 {sT0}, 5")
    A("s_cbranch_scc0 L_nextlayer")
    if xlate:
        A(f"s_add_u32 {sT0}, {sNCH}, 256")
        A(f"v_cmp_gt_u32 vcc, {sT0}, {v8L}")
        A(f"v_mov_b32 v23, {OOB}")
        A(f"s_lshl_b32 {sA1}, {sX}, 9")
        A(f"s_add_u32 {sA1}, {sA1}, {sLay}")
        A(f"v_cndmask_b32 v20, v23, {v8L}, vcc")
        A(f"s_add_u32 {sA1}, {sA1}, {HB}")
        poll("L_tpoll", [f"buffer_load_dwordx2 v[14:15], v20, {srd('WS')}, {sA1} offen sc1"], ["v14", "v15"], 0, depth=1)
    A(f"v_min_u32 v45, -2, {vXp}")
    store_intra("L_x_st", [f"buffer_store_dword v45, {vD4}, {srd('WS')}, {sM} offen"])

    A("L_nextlayer:")
    mark("h1", 0)
    setprio(0)
    A(f"s_add_u32 {sL}, {sL}, 1")
    A(f"s_add_u32 {sLay}, {sLay}, {LSTRIDE}")
    if stamps: A(f"s_add_u32 {sSI}, {sSI}, 20")
    A(f"s_mov_b32 {sMode}, 0")
    A(f"s_cmp_eq_u32 {sL}, 2")
    A("s_cbranch_scc1 L_last")
    for r in (sO1, sO2, sP1, sP2, sY): A(f"s_add_u32 {r}, {r}, {LSTRIDE}")
    zeroO()
    if warm:
        A(f"s_cmp_eq_u32 {sW}, 7")
        A("s_cbranch_scc0 L_nowarm")
        warm_o(7)
        A(f"s_lshl_b32 {sT0}, {sHead}, 10")
        A(f"s_add_u32 {sT0}, {sT0}, {QB1}")
        A(f"buffer_load_dword {vDum}, {vL16}, {srd('WS')}, {sT0} offen sc1")
        A("L_nowarm:")
    A(f"s_cmp_ge_u32 {sW}, 4")
    A("s_cbranch_scc0 L_g")
    A("s_sleep 4")
    q_prep()
    A(f"s_add_u32 {sA2}, {sA2}, {QB1}")
    A(f"s_cmp_eq_u32 {sW}, 4")
    A("s_cbranch_scc1 L_g")
    A("s_branch L_g_bar")
    A("L_last:")
    A(f"s_add_u32 {sT0}, {sW}, 24")
    A(f"s_lshl_b32 {sT1}, {sX}, 8")
    A(f"s_or_b32 {sT1}, {sT1}, {sR}")
    A(f"s_cmp_eq_u32 {sT0}, {sT1}")
    A("s_cbranch_scc0 L_end")
    A(f"s_cmp_lt_u32 {sW}, 5")
    A("s_cbranch_scc1 L_g")
    A("s_branch L_end")

    A("L_final:")
    mark("end")
    A(f"buffer_store_dword {vXp}, {vD4}, {srd('OUT')}, 0 offen")
    if amp:
        A(f"s_cmp_eq_u32 {sW}, 0"); A("s_cbranch_scc0 L_end")
        if amp.startswith("start,stag"):
            A(f"s_load_dwordx2 s[0:1], s[{P(10)[0]}:{P(10)[1]}], 64 glc"); lgk(0)
            if amp.endswith("stag"): A("s_not_b32 s100, s1")
            else: A("s_mov_b32 s0, s100"); A("s_not_b32 s100, s1")
        A("s_sub_u32 s30, s0, s100")
        A("s_min_u32 s30, s30, 5000")
        A(f"s_mul_i32 s30, s30, {ampx}")
        A("s_memrealtime s[28:29]"); A("s_waitcnt lgkmcnt(0)")
        A("L_amp:")
        A("s_memrealtime s[32:33]"); A("s_waitcnt lgkmcnt(0)")
        A("s_sub_u32 s32, s32, s28")
        A("s_cmp_lt_u32 s32, s30")
        A("s_cbranch_scc1 L_amp")
    A("L_end:")
    if stamps:
        A("s_mov_b64 exec, -1")
        A(f"s_mov_b32 {sSI}, 0"); stamp(63)
        A(f"v_writelane_b32 {vST}, {sR}, 62")
        A(f"s_lshl_b32 {sT0}, s2, 11")
        A(f"s_add_u32 {sT0}, {sT0}, {WS_STAMP}")
        A(f"v_add_u32 v14, {sT0}, {vD4}")
        A(f"global_store_dword v14, {vST}, s[{P(11)[0]}:{P(11)[1]}]")
    A("L_exit:")
    A("s_endpgm")

    A("L_q_prep0:")
    q_prep()
    A(f"s_add_u32 {sA2}, {sA2}, {QB0}")
    A("s_branch L_q_go")
    A("L_vland:")
    for u in range(8):
        vmc(14-2*u)
        vperm(u)
        if u == 3: zeroO()
    stamp(9)
    A("s_nop 0")
    A("s_branch L_pv")
    def get_rank(tag):
        A("v_mov_b32 v29, 0")
        A(f"L_rk{tag}:")
        A(f"ds_read_b32 v28, v29 offset:{L_FLAG+4}")
        lgk(0)
        A("v_cmp_eq_u32 vcc, -1, v28")
        retry(f"L_rk{tag}", 1)
        A(f"v_readfirstlane_b32 {sR}, v28")
        A(f"s_cmp_eq_u32 {sX}, 7")
        A(f"s_cselect_b32 {sT0}, 20, 24")
        A(f"s_cmp_lt_u32 {sR}, {sT0}")
        A(f"s_cselect_b32 {sRole}, 1, 2")
        A(f"s_cmp_lt_u32 {sR}, 10")
        A(f"s_cselect_b32 {sRole}, 0, {sRole}")
        A(f"s_and_b32 {sY}, {sX}, 1")
        A(f"s_mul_i32 {sY}, {sY}, 1280")
        A(f"s_lshr_b32 {sT0}, {sX}, 1")
        A(f"s_lshl_b32 {sT0}, {sT0}, 14")
        A(f"s_add_u32 {sY}, {sY}, {sT0}")
        A(f"s_xor_b32 {sT0}, {sNear}, {8192 if dual else 0}")
        A(f"s_add_u32 {sY}, {sY}, {sT0}")
        A(f"s_lshl_b32 {sT0}, {sR}, 7")
        A(f"s_add_u32 {sY}, {sY}, {sT0}")
        A(f"s_add_u32 {sY}, {sY}, {YB}")
    def wo_dma():
        dma128("v20", 1280, None)
        A("v_xor_b32 v21, 64, v20")
        A(f"s_lshl_b32 {sT0}, {sX}, 9")
        A(f"s_lshl_b32 {sT1}, {sW}, 6")
        A(f"s_add_u32 {sT0}, {sT0}, {sT1}")
        A(f"s_mul_i32 {sT0}, {sT0}, 1280")
        A(f"s_lshl_b32 {sT1}, {sR}, 7")
        A(f"s_add_u32 {sT1}, {sT0}, {sT1}")
        A(f"s_lshl_b32 {sT3}, {sW}, 13")
        for k in range(8):
            A(f"s_add_u32 m0, {sT3}, {L_R1 + k*1024}")
            if k: A(f"s_add_u32 {sT1}, {sT1}, {8*1280}")
            A(f"buffer_load_dwordx4 v{20 + (k&1)}, {srd('WO')}, {sT1} offen {nt} lds")
    A("L_pfw:")
    A(f"s_lshl_b32 {sT0}, {sX}, 7")
    A(f"s_add_u32 {sT0}, {sT0}, {TK}")
    A("s_mov_b32 s26, 1")
    A(f"s_cmp_eq_u32 {sW}, 1")
    lgk(0)
    A("s_barrier")
    A("s_cbranch_scc0 L_notk")
    if dyn:
        A(f"s_atomic_add s26, s[{P(11)[0]}:{P(11)[1]}], {sT0} glc")
        lgk(0)
        A("s_add_u32 s26, s26, 1")
        A("s_min_u32 s26, s26, 31")
    else:
        A(f"s_mov_b32 s26, {sJ}")
    A("v_mov_b32 v28, s26")
    A("v_mov_b32 v29, 0")
    A(f"ds_write_b32 v29, v28 offset:{L_FLAG+4}")
    A("L_notk:")
    get_rank("a")
    if stamps == 1: stamp(18)
    if warm: warm_o(3)
    A(f"s_cmp_eq_u32 {sRole}, 0")
    A("s_cbranch_scc0 L_pf1")
    if woearly: wo_dma()
    A("s_branch L_pfw_done")
    A("L_pf1:")
    if npfo:
        A(f"v_mul_u32_u24 v28, 1280, {vLane}")
        A(f"s_lshl_b32 {sT0}, {sX}, 3")
        A(f"s_add_u32 {sT0}, {sT0}, 7")
        A(f"s_sub_u32 {sT0}, {sT0}, {sW}")
        A(f"s_mul_i32 {sT0}, {sT0}, {64*1280}")
        A(f"s_lshl_b32 {sT1}, {sR}, 7")
        A(f"s_add_u32 {sT0}, {sT0}, {sT1}")
        A(f"s_sub_u32 {sT0}, {sT0}, 1280")
        A(f"s_cmp_lt_u32 {sR}, 20")
        A(f"s_cselect_b32 {sT1}, {sW}, 7")
        A(f"s_cmp_lt_u32 {sT1}, {npfo}")
        A(f"s_cselect_b32 {sT0}, {sT0}, {OOB}")
        A(f"buffer_load_dword {vDum}, v28, {srd('WO')}, {sT0} offen {pfl}")
    A(f"v_lshrrev_b32 v26, 2, {vLane}")
    A(f"v_mul_u32_u24 v26, 3456, v26")
    A(f"v_and_b32 v28, 3, {vLane}")
    A(f"v_lshl_add_u32 v26, v28, 7, v26")
    A(f"s_bitcmp1_b32 {sR}, 0")
    A(f"s_cselect_b32 s{SRD['WP']}, s{P(7)[0]}, s{P(6)[0]}")
    A(f"s_cselect_b32 s{SRD['WP']+1}, s{P(7)[1]}, s{P(6)[1]}")
    A(f"s_and_b32 s{SRD['WP']+1}, s{SRD['WP']+1}, 0xffff")
    A(f"s_sub_u32 {sM}, {sR}, 10")
    A(f"s_lshr_b32 {sM}, {sM}, 1")
    A(f"s_cmp_lt_u32 {sM}, 10")
    A(f"s_mul_i32 {sM}, {sM}, {64*3456}")
    A(f"s_cselect_b32 {sA2}, {sM}, {OOB}")
    A(f"s_mul_i32 {sM}, {sX}, 7")
    A(f"s_lshr_b32 {sM}, {sM}, 1")
    A(f"s_lshl_b32 {sM}, {sM}, 7")
    A(f"s_add_u32 {sA2}, {sA2}, {sM}")
    A(f"v_add_u32 v26, {sA2}, v26")
    if npf13:
        A(f"s_mul_i32 {sA2}, {sW}, {16*3456}")
        A(f"s_cmp_lt_u32 {sW}, {npf13}")
        A(f"s_cselect_b32 {sA2}, {sA2}, {OOB}")
        if pf20:
            A(f"s_cmp_ge_u32 {sR}, 20")
            A(f"s_cselect_b32 {sA2}, {sA2}, {OOB}")
        A(f"buffer_load_dword {vDum}, v26, {srd('WP')}, {sA2} offen {pfl}")
    A("s_branch L_pfw_done")
    A("L_pf2:")
    if pf20 and npf13:
        A(f"s_cmp_ge_u32 {sR}, 20")
        A("s_cbranch_scc1 L_pf2b")
        for k in range(npf13):
            A(f"s_mov_b32 {sT0}, {k*16*3456}")
            A(f"buffer_load_dword {vDum}, v26, {srd('WP')}, {sT0} offen {pfl}")
        A("L_pf2b:")
    for k in range(npf13, 4):
        A(f"s_mov_b32 {sT0}, {k*16*3456}")
        A(f"buffer_load_dword {vDum}, v26, {srd('WP')}, {sT0} offen {pfl}")
    if pfw2:
        A(f"s_cmp_ge_u32 {sR}, 24")
        A("s_cbranch_scc0 L_roles")
        A(f"v_lshlrev_b32 v28, 7, {vLane}")
        A(f"s_mul_i32 {sT0}, {sX}, {224*1280}")
        A(f"s_sub_u32 {sT1}, 31, {sR}")
        A(f"s_lshl_b32 {sT1}, {sT1}, 13")
        A(f"s_add_u32 {sT0}, {sT0}, {sT1}")
        for k in range(5):
            if k == 4:
                A(f"s_cmp_ge_u32 {sR}, 29"); A("s_cbranch_scc0 L_roles")
            if k: A(f"s_add_u32 {sT0}, {sT0}, {8*8192}")
            A(f"buffer_load_dword {vDum}, v28, {srd('W2')}, {sT0} offen {pfl}")
    A("s_branch L_roles")
    A("L_rank:")
    get_rank("b")
    A("s_branch L_roles")
    A("L_up0:")
    A(f"s_cmp_eq_u32 {sW}, 4")
    A("s_cbranch_scc1 L_g")
    vmc(0)
    A("L_hook:")
    vmc(8)
    A("s_barrier")
    stamp(12)
    A(f"s_cmp_ge_u32 {sW}, 4")
    A("s_cbranch_scc0 L_ychk")
    for l in up_reads: A(l)
    A(f"s_cmp_eq_u32 {sW}, 4")
    A("s_cbranch_scc1 L_ychk")
    A("s_branch L_g_bar")
    A("L_wo_dma:")
    if woearly:
        A(f"s_cmp_lt_u32 {sW}, 4")
        A("s_cbranch_scc1 L_wo_iss")
    wo_dma()
    A("L_wo_iss:")
    rd = wo_tr()
    vmc(0)
    for l in rd: A(l)
    lgk(12)
    A("s_branch L_wo_have")
    for t in tails:
        for l in t: A(l)
    A("L_code_end:")

    ref = open("cdna_kernels/" + NAME + ".s.ref").read().split("\n")
    head = [l for l in ref if l.startswith(";") and "@launch" not in l and "Override launch" not in l and "grid=ceil" not in l]
    out = "\n".join(head) + f"\n; @launch grid=(256,1,1) block=(512,1,1) lds={LDS_BYTES}\n"
    out += f""".amdgcn_target "amdgcn-amd-amdhsa--gfx950"
.text
.globl {NAME}_kernel
.p2align 8
.type {NAME}_kernel,@function
{NAME}_kernel:
"""
    out += A.text()
    out += f""".section .rodata,"a"
.p2align 6
.amdhsa_kernel {NAME}_kernel
  .amdhsa_next_free_vgpr 256
  .amdhsa_next_free_sgpr 102
  .amdhsa_accum_offset 256
  .amdhsa_group_segment_fixed_size 0
  .amdhsa_kernarg_size 96
  .amdhsa_user_sgpr_count 2
  .amdhsa_user_sgpr_kernarg_segment_ptr 1
  .amdhsa_system_sgpr_workgroup_id_x 1
  .amdhsa_float_denorm_mode_32 3
.end_amdhsa_kernel
"""
    return out

if __name__ == "__main__":
    kw = {}
    dst = "cdna_kernels/" + NAME + ".s"
    for a in sys.argv[1:]:
        k, v = a.split("=", 1)
        if k == "out": dst = v
        else:
            try: kw[k] = int(v)
            except ValueError: kw[k] = v
    open(dst, "w").write(gen(**kw))
    print("wrote", dst)
```

```python
import sys, math
from asmlib import Asm

NAME = "interleave_layers__mha_block_cached__glu_gated_swiglu__decode"

LSTRIDE = 0x24000
OB, YB, XB, HB, AB, TK = 0x0, 0x10000, 0x20000, 0x22800, 0x23800, 0x23c00
QB0, QB1 = 0x48000, 0x50000
WS_COMM = 0x58000
PRB = 0x60000
WS_STAMP = 0x100000
OOB = 0x7f000000
L_RED = 0
L_XI = 2048
L_ST = L_XI + 2560
L_OP = L_ST + 5120
L_ML = L_OP + 4096
L_ZERO = L_ML + 640
L_Q = L_ZERO + 64
L_FLAG = L_Q + 1024
L_ONE = L_FLAG + 64
L_WQ = 17408
assert L_ONE + 1280 <= L_WQ and L_ST % 512 == 0 and L_OP % 512 == 0
L_R1 = L_WQ + 20480
L_W2 = L_R1 + 65536
LDS_BYTES = L_W2 + 28672
sX, sJ, sW, sHead, sC, sKV, sL, sLay, sFast, sTO, sT0, sT1, sT2, sT3, sPL, sPH, sSI = \
    ["s%d" % i for i in range(3, 20)]
sV_ = "s20"; sM = "s21"; sA1 = "s22"; sA2 = "s23"; sHI = "s24"; sRole = "s25"; sMode = "s46"; sNCH = "s47"; sNear = "s84"
sO1, sO2, sP1, sP2, sY, sR = "s36", "s37", "s38", "s39", "s40", "s41"
P = lambda i: (36 + 2*i, 37 + 2*i)
SRD = dict(K=60, V=64, WS=68, WQ=72, WO=76, W2=80, X=84, OUT=88, WP=92)
def srd(n): return f"s[{SRD[n]}:{SRD[n]+3}]"
vLane, vR0, vQ64, vIdx, vXp, vD4, vML, vST = ["v%d" % i for i in range(8)]
vA = 8
vKoff, vVoff = "v12", "v13"
v8L = "v12"
vOPw, vMLr, vOpub, vAoff, vYoff = "v18", "v19", "v24", "v27", "v13"
vL16 = "v30"; vDum = "v31"
S0 = 32; K0 = 64; V0 = 128; L0 = 192
def vr(a, n): return f"v[{a}:{a+n-1}]" if n > 1 else f"v{a}"
DPPF = "row_mask:0xf bank_mask:0xf"
steps = [f"quad_perm:[1,0,3,2] {DPPF}", f"quad_perm:[2,3,0,1] {DPPF}", f"row_half_mirror {DPPF}", f"row_mirror {DPPF}",
         "row_bcast:15 row_mask:0xa bank_mask:0xf", "row_bcast:31 row_mask:0xc bank_mask:0xf"]
SMF = "v_smfmac_f32_16x16x64_bf16"
LOG2E = math.log2(math.e)

def gen(stamps=0, cyc=(), amp="", dbg="", force_slow=False, nt="nt", pfl="", dfl="",
        sl_q=0, sl_o=0, sl_y=0, sl_h=0, sl_x=2, d_y=22, d_z=4, d_f=3, pd=2, gap=1, npf13=1, gopos=15, rot=1, warm=1,
        prio=1, xlate=1, qbar=1, d_q=0, pdq=2, gapq=1, lateprio=0, pdo=1, b1='kv', dyn=1, woearly=1, pfw2=1, npfo=3, pf20=0, cpf=4, freerun=0, dual=1, pol=-1, racepos=1, rfl='', ampx=10, pre=1, rd2=1, pk=1, oseq=2, pdx=1, pdt=1, womode=1, twarm=3, ofl=''):
    A = Asm()
    PT = (1, 2)
    def mark(name, lay=None):
        if not amp or name not in amp.split(","): return
        r = (100, 0)[amp.split(",").index(name)]
        if lay is not None:
            A(f"s_cmp_eq_u32 {sL}, {lay}"); A(f"s_cbranch_scc0 L_mark_{name}")
        A(f"s_memrealtime s[{r}:{r+1}]"); A("s_waitcnt lgkmcnt(0)")
        if lay is not None: A(f"L_mark_{name}:")
    def stamp(code, fine=False):
        if not stamps: return
        if stamps == 2 and code not in (0, 10, 14, 63): return
        if stamps == 3 and code not in cyc: return
        if fine and stamps != 3: return
        A("s_memtime s[100:101]" if stamps == 3 else "s_memrealtime s[100:101]")
        A("s_waitcnt lgkmcnt(0)")
        A(f"s_add_u32 m0, {sSI}, {code}")
        A(f"v_writelane_b32 {vST}, s100, m0")
    def lgk(n): A(f"s_waitcnt lgkmcnt({n})")
    def vmc(n): A(f"s_waitcnt vmcnt({n})")
    def setprio(n):
        if prio: A(f"s_setprio {n}")
    def mksrd(n, ptr, size, part=3):
        b = SRD[n]; lo, hi = P(ptr)
        if part & 1: A(f"s_mov_b64 s[{b}:{b+1}], s[{lo}:{hi}]")
        if part & 2:
            A(f"s_mov_b32 s{b+2}, {size}")
            A(f"s_mov_b32 s{b+3}, 0x20000")
    def retry(label, sleep):
        A(f"s_cbranch_vccz {label}_ok")
        A(f"s_sub_u32 {sTO}, {sTO}, 1")
        if sleep: A(f"s_sleep {sleep}")
        A(f"s_cbranch_scc0 {label}")
        A("s_branch L_end")
        A(f"{label}_ok:")
    def missing(regs):
        regs = list(regs)
        if len(regs) == 1:
            A(f"v_cmp_eq_u32 vcc, -1, {regs[0]}"); return
        t = ["v28", "v29"]; k = 0; cur = []
        while len(regs) >= 3 and k < 2:
            A(f"v_max3_u32 {t[k]}, {regs[0]}, {regs[1]}, {regs[2]}"); regs = regs[3:]; cur.append(t[k]); k += 1
        regs = cur + regs
        while len(regs) > 1:
            if len(regs) >= 3:
                A(f"v_max3_u32 v28, {regs[0]}, {regs[-1]}, {regs[-2]}"); regs = ["v28"] + regs[1:-2]
            else:
                A(f"v_max_u32 v28, {regs[0]}, {regs[1]}"); regs = ["v28"]
        A("v_cmp_eq_u32 vcc, -1, v28")
    def poll(label, loads, regs, sleep, first_issued=False, depth=None):
        depth = pd if depth is None else depth
        n = len(loads)
        for k in range(1 if first_issued else 0, depth - 1):
            for l in loads: A(l)
            if gap: A(f"s_sleep {gap}")
        if first_issued and depth == 1: A(f"s_branch {label}_chk")
        A(f"{label}:")
        for l in loads: A(l)
        A(f"{label}_chk:")
        vmc(n*(depth-1))
        missing(regs)
        retry(label, sleep)
    tails = []
    def store_intra(label, stores, scc_ready=False):
        if not scc_ready: A(f"s_cmp_eq_u32 {sFast}, 0")
        A(f"s_cbranch_scc1 {label}_slow")
        for s in stores: A(s)
        A(f"{label}_done:")
        tails.append([f"{label}_slow:"] + [s + " sc1" if s.startswith("buffer") else s for s in stores] + [f"s_branch {label}_done"])
    def packpair(dst, val, tmp, fill=""):
        A(fill)
        A(f"v_mov_b32_dpp {tmp}, {val} quad_perm:[1,1,3,3] {DPPF}")
        A(f"v_cvt_pk_bf16_f32 {dst}, {val}, {tmp}")
        A(f"v_min_u32 {dst}, -2, {dst}")
    def kload(T):
        if T: A(f"v_xor_b32 {vKoff}, {(PT[0] ^ (PT[1] if T == 2 else 0)) << 12}, {vKoff}")
        for t in range(4):
            A(f"buffer_load_dwordx4 {vr(K0+16*T+4*t,4)}, {vKoff}, {srd('K')}, {sKV} offen offset:{64*t} {nt}")
    def vload(j0, j1):
        if j0 == 8: A(f"v_xor_b32 {vVoff}, {PT[1] << 12}, {vVoff}")
        for j in range(j0, j1):
            A(f"buffer_load_dwordx4 {vr(L0+4*j,4)}, {vVoff}, {srd('V')}, {sKV} offen offset:{(j&7)*256} {nt}")
    def vperm(u):
        for q in range(4):
            a, b = L0 + 8*u + q, L0 + 8*u + 4 + q
            A(f"v_perm_b32 v{V0+8*(2*q)+u}, v{b}, v{a}, {sPL}")
            A(f"v_perm_b32 v{V0+8*(2*q+1)+u}, v{b}, v{a}, {sPH}")
    def dma128(dst, rowbytes, par):
        A(f"v_lshrrev_b32 {dst}, 3, {vLane}")
        A(f"v_mul_u32_u24 {dst}, {rowbytes}, {dst}")
        A(f"v_and_b32 v28, 0x70, {vL16}")
        A(f"v_and_b32 v29, 32, {vLane}")
        A(f"v_xor_b32 v28, v28, v29")
        if par is not None:
            A(f"s_and_b32 {sT0}, {par}, 1"); A(f"s_lshl_b32 {sT0}, {sT0}, 6")
            A(f"v_xor_b32 v28, {sT0}, v28")
        A(f"v_add_u32 {dst}, {dst}, v28")
    def tr128(dst, b5rows):
        A(f"v_lshlrev_b32 {dst}, 7, {vR0}")
        A(f"v_and_b32 v28, 12, {vR0}")
        A(f"v_lshl_add_u32 {dst}, v28, 3, {dst}")
        A(f"v_and_b32 v28, 3, {vLane}")
        A(f"v_lshl_add_u32 {dst}, v28, 3, {dst}")
        if b5rows:
            A(f"v_and_b32 v28, 32, {vLane}")
            A(f"v_lshl_add_u32 {dst}, v28, {int(math.log2(b5rows*128//32))}, {dst}")
    def qpub_off(dst, tmp, v_is_lane):
        A(f"v_and_b32 {dst}, 2, {vLane}"); A(f"v_lshlrev_b32 {dst}, 3, {dst}")
        A(f"v_and_b32 {tmp}, 12, {vLane}"); A(f"v_add_u32 {dst}, {dst}, {tmp}")
        if v_is_lane:
            A(f"v_and_b32 {tmp}, 48, {vLane}"); A(f"v_lshl_add_u32 {dst}, {tmp}, 4, {dst}")
    def qpub_cu(dst, tmp):
        A(f"s_lshl_b32 {dst}, {sHead}, 10")
        A(f"s_lshl_b32 {tmp}, {sC}, 5"); A(f"s_add_u32 {dst}, {dst}, {tmp}")
    def warm_o(w):
        A(f"s_lshl_b32 {sT0}, {sX}, 13")
        A(f"s_add_u32 {sT0}, {sT0}, {sLay}")
        A(f"s_lshl_b32 {sT2}, {sX}, 7")
        A(f"s_add_u32 {sT2}, {sT2}, {sLay}")
        A(f"s_add_u32 {sT2}, {sT2}, {AB}")
        A(f"s_cmp_lt_u32 {sR}, 2")
        A(f"s_cselect_b32 {sT3}, {sW}, 99")
        A(f"s_cmp_eq_u32 {sT3}, {w}")
        A(f"s_cselect_b32 {sT0}, {sT0}, {OOB}")
        A(f"s_cselect_b32 {sT2}, {sT2}, {OOB}")
        A(f"v_lshlrev_b32 v28, 7, {vLane}")
        A(f"buffer_load_dword {vDum}, v28, {srd('WS')}, {sT0} offen sc1")
        A(f"buffer_load_dword {vDum}, off, {srd('WS')}, {sT2} sc1")
    def stat_reads(addr, base):
        if rd2:
            A(f"ds_read2st64_b64 v[32:35], {addr} offset0:{base//512} offset1:{base//512+1}")
            A(f"ds_read2st64_b64 v[36:39], {addr} offset0:{base//512+2} offset1:{base//512+3}")
        else:
            for k in range(4): A(f"ds_read_b64 {vr(32+2*k,2)}, {addr} offset:{base + 512*k}")
        A(f"ds_read_b64 v[40:41], {addr} offset:{base + 2048}")
    def stats_and_mfma(mf, nA, fill):
        A("v_mov_b32 v42, 1e-05")
        A(f"s_cmp_eq_u32 {sFast}, 0")
        lgk(nA+1)
        A("v_pk_add_f32 v[32:33], v[32:33], v[34:35]")
        A("v_pk_add_f32 v[36:37], v[36:37], v[38:39]")
        lgk(nA)
        A("v_pk_add_f32 v[32:33], v[32:33], v[40:41]")
        A("v_pk_add_f32 v[32:33], v[32:33], v[36:37]")
        for i, st in enumerate(steps):
            if i < nA:
                lgk(nA-1-i); mf(i)
            A(f"v_add_f32_dpp v32, v32, v32 {st}")
            A(f"v_add_f32_dpp v33, v33, v33 {st}")
        tail = [f"v_mul_f32 v32, {1/640!r}, v32", f"v_fmamk_f32 v33, v33, {1/640!r}, v42", "v_fma_f32 v33, -v32, v32, v33",
                "v_max_f32 v33, v42, v33", "v_rsq_f32 v33, v33", f"v_readlane_b32 {sT0}, v32, 63"]
        fill = list(fill)
        for t in tail:
            A(t)
            if fill: A(fill.pop(0))
        for f in fill: A(f)

    A("s_cmpk_ge_u32 s2, 256")
    A("s_cbranch_scc1 L_exit")
    mark("start")
    if stamps:
        A(f"s_mov_b32 {sSI}, 0"); A(f"v_mov_b32 {vST}, 0")
        stamp(0)
    A(f"s_load_dwordx2 s[{SRD['V']}:{SRD['V']+1}], s[0:1], 16")
    A("s_load_dwordx8 s[52:59], s[0:1], 64")
    A("s_load_dwordx16 s[36:51], s[0:1], 0")
    A(f"s_and_b32 {sX}, s2, 7")
    A(f"s_lshr_b32 {sHead}, s2, 6")
    A(f"s_lshl2_add_u32 {sHead}, {sX}, {sHead}")
    A(f"s_lshl_b32 {sKV}, {sHead}, 20")
    A(f"s_and_b32 {sT0}, s2, 56")
    A(f"s_mov_b32 s{SRD['V']+3}, 0x20000")
    A(f"s_lshl_b32 s{SRD['V']+2}, s{SRD['V']+3}, 8")
    A(f"v_lshrrev_b32 v16, 6, v0")
    A(f"v_mul_u32_u24 v17, 36, v16")
    A(f"v_and_or_b32 v17, v16, 3, v17")
    A(f"v_lshlrev_b32 v17, 1, v17")
    A(f"v_xor_b32 v17, {sT0}, v17")
    A(f"v_bfe_u32 v15, v0, 4, 2")
    A(f"v_xor_b32 {vVoff}, v15, v17")
    A(f"v_lshlrev_b32 {vVoff}, 7, {vVoff}")
    A(f"v_and_or_b32 {vVoff}, v0, 15, {vVoff}")
    A(f"v_lshlrev_b32 {vVoff}, 4, {vVoff}")
    if pre:
        lgk(0)
        vload(0, pre)
    A(f"s_lshr_b32 {sJ}, s2, 3")
    if cpf:
        A("s_getpc_b64 s[26:27]")
        A("s_and_b32 s26, s26, 0xffffff00")
        A(f"v_and_b32 v19, {cpf-1}, v0")
        A(f"s_lshl_b32 s28, {sJ}, 7")
        A("v_lshl_add_u32 v19, v19, 12, s28")
        A(f"v_min_u32 v19, L_code_end-{NAME}_kernel-4, v19")
        A("v_cmp_gt_u32 vcc, 64, v0")
        A("s_cbranch_vccz L_nocpf")
        A(f"global_load_dword {vDum}, v19, s[26:27]")
        A("L_nocpf:")
    A(f"v_readfirstlane_b32 {sW}, v16")
    A(f"v_lshlrev_b32 {vD4}, 2, v0")
    A(f"v_and_b32 {vLane}, 63, v0")
    A(f"s_and_b32 {sC}, {sJ}, 7")
    A(f"v_and_b32 v14, 15, {vLane}")
    A(f"v_lshl_add_u32 {vKoff}, v17, 3, v14")
    A(f"v_lshl_add_u32 {vKoff}, {vKoff}, 4, v15")
    A(f"v_lshlrev_b32 {vKoff}, 4, {vKoff}")
    A(f"v_lshlrev_b32 {vL16}, 4, {vLane}")
    dma128("v18", 8192, sW)
    A(f"s_lshr_b32 {sT1}, {sC}, 1")
    A(f"s_mul_i32 {sT1}, {sT1}, {160*8192}")
    A(f"s_lshl_b32 {sT2}, {sW}, 16")
    A(f"s_add_u32 {sT1}, {sT1}, {sT2}")
    A(f"s_lshl_b32 {sT2}, {sHead}, 8")
    A(f"s_add_u32 {sT1}, {sT1}, {sT2}")
    A(f"s_and_b32 {sT2}, {sC}, 1")
    A(f"s_lshl_b32 {sT2}, {sT2}, 7")
    A(f"s_add_u32 {sT1}, {sT1}, {sT2}")
    A(f"s_lshl_b32 {sT2}, {sW}, 10")
    first = [("X", 0, 1280), ("WQ", 3, 640*4096*2), ("WS", 11, WS_COMM), ("K", 1, 1 << 25)]
    for f in first: mksrd(*f, part=2)
    setprio(3)
    lgk(0)
    mark("karg")
    if amp.startswith("start,stag"):
        A(f"s_cmp_eq_u32 {sW}, 3"); A("s_cbranch_scc0 L_nostag")
        A(f"s_and_b32 s28, {sJ}, 15"); A("s_cbranch_scc1 L_nostag")
        A("s_mov_b32 s28, s100"); A("s_not_b32 s29, s100")
        A(f"s_atomic_umax s28, s[{P(10)[0]}:{P(10)[1]}], 64")
        A(f"s_atomic_umax s29, s[{P(10)[0]}:{P(10)[1]}], 68")
        A("L_nostag:")
    for f in first: mksrd(*f, part=1)
    A(f"s_cmp_eq_u32 {sW}, {99 if 'noclear' in dbg else 0}")
    A(f"buffer_load_dword {vXp}, {vD4}, {srd('X')}, 0 offen")
    A("s_cbranch_scc1 L_clear")
    A("L_noclear:")
    for k in range(3):
        if k == 2:
            A(f"s_cmp_lt_u32 {sW}, 4"); A("s_cbranch_scc0 L_wq_done")
        A(f"s_add_u32 m0, {sT2}, {L_WQ + k*8192}")
        if k: A(f"s_add_u32 {sT1}, {sT1}, {8*65536}")
        A(f"buffer_load_dwordx4 v18, {srd('WQ')}, {sT1} offen {nt} lds")
    A("L_wq_done:")
    def batch1():
        setprio(0)
        kload(0); vload(pre, pre + 4)
    A(f"s_cmp_eq_u32 {sW}, 0")
    A("s_cbranch_scc1 L_nob1")
    batch1()
    A("s_branch L_nob1")
    A("L_clear:")
    if pol < 0:
        A(f"s_and_b32 {sT0}, s2, 63")
        A(f"s_lshl_b32 {sT0}, {sT0}, 7")
        A(f"s_lshr_b32 {sT3}, s2, 6")
        A(f"s_lshl_b32 {sT3}, {sT3}, 14")
        A(f"s_add_u32 {sT0}, {sT0}, {sT3}")
        A(f"s_and_b32 s31, {sJ}, 1")
        A(f"s_lshl_b32 {sT3}, s31, 13")
        A(f"s_add_u32 {sT0}, {sT0}, {sT3}")
        A(f"s_add_u32 {sT0}, {sT0}, {PRB}")
        A(f"s_xor_b32 {sT3}, {sT0}, 8192")
        A(f"s_load_dword s30, s[{P(11)[0]}:{P(11)[1]}], {sT0} {rfl}")
        A(f"s_load_dwordx2 s[28:29], s[{P(11)[0]}:{P(11)[1]}], {sT3} {rfl}")
        if racepos == 0:
            lgk(2)
            A("s_getreg_b32 s32, hwreg(HW_REG_IB_STS, 8, 4)")
    for r in range(24, 28): A(f"v_mov_b32 v{r}, -1")
    A(f"s_lshr_b32 {sT3}, s2, 7")
    A(f"s_mul_i32 {sT3}, {sT3}, {LSTRIDE}")
    A(f"s_and_b32 {sM}, s2, 127")
    A(f"s_lshl_b32 {sT0}, {sM}, 10")
    A(f"s_add_u32 {sT0}, {sT0}, {sT3}")
    A(f"buffer_store_dwordx4 v[24:27], {vL16}, {srd('WS')}, {sT0} offen sc1")
    A(f"s_lshl_b32 {sT0}, {sM}, 7")
    A(f"s_add_u32 {sT0}, {sT0}, {sT3}")
    A(f"s_add_u32 {sT0}, {sT0}, {XB}")
    A(f"v_and_b32 v21, 0x7c, {vD4}")
    A(f"buffer_store_dword v24, v21, {srd('WS')}, {sT0} offen sc1")
    qpub_off("v21", "v22", True)
    qpub_cu(sT0, sT3)
    A(f"s_add_u32 {sT0}, {sT0}, {QB0}")
    A(f"buffer_store_dword v24, v21, {srd('WS')}, {sT0} offen sc1")
    A(f"s_add_u32 {sT0}, {sT0}, {QB1 - QB0}")
    A(f"buffer_store_dword v24, v21, {srd('WS')}, {sT0} offen sc1")
    if pol < 0 and racepos == 1:
        lgk(2)
        A("s_getreg_b32 s32, hwreg(HW_REG_IB_STS, 8, 4)")
    A("s_branch L_noclear")
    A("L_nob1:")
    mksrd("WO", 4, 4096*640*2); mksrd("W2", 8, 1728*640*2); mksrd("OUT", 9, 1280)
    mksrd("WP", 6, 640*1728*2)
    A(f"s_mov_b32 {sTO}, 0x80000")
    A(f"s_mov_b32 {sL}, 0")
    A(f"s_mov_b32 {sLay}, 0")
    A(f"s_mov_b32 {sFast}, 0")
    A(f"s_mov_b32 {sMode}, 0")
    A(f"s_mov_b32 {sPL}, 0x05040100")
    A(f"s_mov_b32 {sPH}, 0x07060302")
    A(f"s_mov_b32 {sHI}, 0xffff0000")
    A(f"s_cmp_eq_u32 {sX}, 7")
    A(f"s_cselect_b32 {sNCH}, {4*16}, {12*16}")
    A(f"s_mov_b32 {sRole}, 2")
    A(f"s_mov_b32 {sR}, 31")
    A(f"v_and_b32 v20, 3, {vLane}")
    A(f"v_lshlrev_b32 {vQ64}, 6, v15")
    A(f"v_lshl_add_u32 {vQ64}, v20, 4, {vQ64}")
    A(f"v_and_b32 {vR0}, 8, {vLane}")
    A(f"v_bfe_u32 v23, {vLane}, 4, 1")
    A(f"v_lshl_add_u32 {vR0}, v23, 2, {vR0}")
    A(f"v_bfe_u32 v23, {vLane}, 2, 1")
    A(f"v_add_u32 {vR0}, {vR0}, v23")
    A(f"v_and_b32 v17, 1, {vLane}")
    A(f"v_mul_u32_u24 {vIdx}, 0xaaaa, v17")
    A(f"v_bfe_u32 v23, {vLane}, 1, 1")
    A(f"v_mul_u32_u24 v23, 0xaaaa, v23")
    A(f"v_lshl_add_u32 {vIdx}, v23, 16, {vIdx}")
    A(f"v_add_u32 {vIdx}, 0x44444444, {vIdx}")
    A(f"v_lshl_add_u32 {vML}, {vLane}, 3, 64")
    A(f"s_lshl_b32 {sT0}, {sW}, 3")
    A(f"v_writelane_b32 {vML}, {sT0}, 63")
    A(f"v_mov_b32 v45, {vD4}")
    A(f"v_lshlrev_b32 v46, 1, {vD4}")
    A(f"v_mov_b32 v16, 0")
    A(f"v_lshlrev_b32 v17, 2, v14")
    A(f"ds_write_b32 v17, v16 offset:{L_ZERO}")
    A(f"v_mov_b32 v19, 0x3f803f80")
    A(f"v_min_u32 v20, 1276, {vD4}")
    A(f"ds_write_b32 v20, v19 offset:{L_ONE}")
    A(f"v_mov_b32 v25, {OOB}")
    A(f"v_mov_b32 v26, {OOB}")
    A(f"v_mov_b32 v24, {OOB}")
    A(f"v_mov_b32 v27, {OOB}")
    A(f"v_mov_b32 v{L0+62}, {OOB}")
    A(f"s_cmp_eq_u32 {sW}, 0")
    A("s_cbranch_scc0 L_noarr")
    A("v_mov_b32 v29, -1")
    A(f"ds_write_b32 {vL16}, v29 offset:{L_Q}")
    A(f"ds_write_b32 v16, v29 offset:{L_FLAG+4}")
    vmc(3)
    A("L_noarr:")
    if 'nowaitA' not in dbg: vmc(8)
    T = 56; GD = 40; GA = 48
    def xwrite():
        A(f"ds_write_b32 v45, {vXp} offset:{L_XI}")
        A(f"v_lshlrev_b32 v{GD}, 16, {vXp}")
        A(f"v_and_b32 v{GD+1}, {sHI}, {vXp}")
        A(f"v_mul_f32 v{GD+3}, v{GD}, v{GD}")
        A(f"v_add_f32 v{GD+2}, v{GD}, v{GD+1}")
        A(f"v_fmac_f32 v{GD+3}, v{GD+1}, v{GD+1}")
        A(f"ds_write_b64 v46, {vr(GD+2,2)} offset:{L_ST}")
    stamp(1)
    A(f"s_cmp_lt_u32 {sW}, 5")
    A("s_cbranch_scc0 L_barA")
    xwrite()
    A(f"s_cmp_eq_u32 {sW}, 0")
    A("s_cbranch_scc0 L_barA")
    A(f"s_getreg_b32 {sT0}, hwreg(HW_REG_XCC_ID, 0, 4)")
    A(f"s_mul_i32 s27, {sT0}, {sT0}")
    A(f"s_lshl_b32 s27, s27, 16")
    A(f"s_or_b32 s27, s27, {sT0}")
    A(f"s_lshl_b32 s85, s27, 5")
    if pol < 0:
        A(f"s_lshr_b32 {sT0}, {sT0}, 2")
        A(f"s_lshr_b32 s26, s32, 1")
        A(f"s_xnor_b32 s26, s26, s31")
        A(f"s_xor_b32 s26, s26, {sT0}")
        A(f"s_and_b32 s26, s26, 1")
        if stamps: A(f"v_writelane_b32 {vST}, s26, 61"); A(f"v_writelane_b32 {vST}, s32, 60")
        A(f"s_lshl_b32 s26, s26, 16")
        A(f"s_or_b32 s26, s26, 1")
    else:
        A(f"s_mov_b32 s26, {1 + (pol << 16)}")
    A(f"s_and_b32 {sT0}, {sX}, 4")
    A(f"s_mul_i32 {sT0}, {sT0}, 24")
    A(f"s_lshl_b32 {sT3}, {sX}, 3")
    A(f"s_add_u32 {sT0}, {sT0}, {sT3}")
    lgk(0)
    A(f"s_atomic_add_x2 s[26:27], s[{P(10)[0]}:{P(10)[1]}], {sT0}")
    batch1()
    vmc(8)
    A("s_branch L_barA2")
    A("L_barA:")
    lgk(0)
    A("L_barA2:")
    A(f"s_cmp_ge_u32 {sW}, 4")
    A("s_barrier")
    A("s_cbranch_scc1 L_q_prep0")
    def zeroO():
        for e in range(8):
            A(f"v_mov_b32 v{L0+4*e}, 0"); A(f"v_mov_b32 v{L0+4*e+2}, 0")
    def zeroS():
        for Tt in range(4):
            for r in (0, 1, 6, 7): A(f"v_mov_b32 v{S0+8*Tt+r}, 0")
    qload = f"buffer_load_dwordx4 {vr(vA,4)}, {vL16}, {srd('WS')}, {sA1} offen sc1"
    A("L_stream:")
    A(f"s_lshl_b32 {sA1}, {sHead}, 10")
    A(f"s_add_u32 {sA1}, {sA1}, {QB0}")
    kload(1); kload(2); kload(3)
    def goload(fl):
        A(f"s_load_dwordx8 s[28:35], s[{P(10)[0]}:{P(10)[1]}], 0 {fl}")
        A(f"s_load_dwordx8 s[36:43], s[{P(10)[0]}:{P(10)[1]}], 128 {fl}")
    vload(pre + 4, 8); vload(8, gopos)
    if twarm & 2:
        A(f"s_lshl_b32 {sT1}, {sJ}, 3")
        A(f"s_or_b32 {sT1}, {sT1}, {sW}")
        A(f"s_cmp_eq_u32 {sT1}, 2")
        A("s_cbranch_scc0 L_notw")
        A(f"s_mul_i32 {sT1}, {sX}, {512*1280}")
        A(f"s_add_u32 {sT2}, {sT1}, {512*1280 - 4}")
        A(f"s_buffer_load_dword s28, {srd('WO')}, {sT1}"); A(f"s_buffer_load_dword s28, {srd('WO')}, {sT2}")
        A(f"s_mov_b32 {sT1}, {640*3456 - 4}")
        A(f"s_buffer_load_dword s28, {srd('W2')}, 0"); A(f"s_buffer_load_dword s28, {srd('W2')}, {sT1}")
        for p_ in (6, 7):
            A(f"s_load_dword s28, s[{P(p_)[0]}:{P(p_)[1]}], 0"); A(f"s_load_dword s28, s[{P(p_)[0]}:{P(p_)[1]}], {sT1}")
        A("L_notw:")
    A(f"s_cmp_eq_u32 {sW}, 0")
    A("s_cbranch_scc0 L_nogo")
    goload("")
    A("L_nogo:")
    vload(gopos, 16)
    A(f"v_lshlrev_b32 {v8L}, 3, {vLane}")
    stamp(7)
    A(f"v_mov_b32 v29, 0")
    A(f"s_cmp_lt_u32 {sW}, 4")
    A("s_cbranch_scc0 L_barW")
    A(f"s_cmp_eq_u32 {sW}, {99 if 'noq' in dbg else 0}")
    A("s_cbranch_scc0 L_nostage")
    A("s_branch L_go_chk")
    A("L_go:")
    goload("glc")
    A("L_go_chk:")
    lgk(0)
    A(f"s_lshl_b32 {sT0}, {sX}, 1")
    A(f"s_mov_b32 m0, {sT0}")
    A("s_add_u32 s26, s28, s30")
    A("s_movrels_b32 s44, s29")
    for i in range(2, 8): A(f"s_add_u32 s26, s26, s{28+2*i}")
    A("s_bitcmp1_b32 s26, 8")
    A("s_cbranch_scc1 L_go_ok")
    A(f"s_sub_u32 {sTO}, {sTO}, 1")
    A("s_sleep 32")
    A("s_cbranch_scc0 L_go")
    A("s_branch L_end")
    A("L_go_ok:")
    if stamps: A(f"s_sub_u32 {sT0}, 0x80000, {sTO}"); A(f"v_writelane_b32 {vST}, {sT0}, 57")
    stamp(19)
    A("s_cmp_eq_u32 s44, s85")
    A(f"s_cselect_b32 {sT0}, {0 if force_slow else 1}, 0")
    A(f"s_cmp_gt_u32 s26, {128 << 16}")
    A("s_cselect_b32 s26, 2, 0")
    A(f"s_or_b32 {sT0}, {sT0}, s26")
    A(f"v_mov_b32 v15, {sT0}")
    A(f"ds_write_b32 v29, v15 offset:{L_FLAG}")
    A("L_q0:")
    A(qload)
    vmc(0)
    A(f"v_max3_u32 v14, v{vA}, v{vA+1}, v{vA+2}")
    A(f"v_max_u32 v14, v14, v{vA+3}")
    A("v_cmp_eq_u32 vcc, -1, v14")
    retry("L_q0", 16)
    A(f"ds_write_b128 {vL16}, {vr(vA,4)} offset:{L_Q}")
    A("s_branch L_nostage")
    A("L_barW:")
    A("s_barrier")
    A("L_nostage:")
    for l in [f"s_lshl_b32 {sT0}, {sW}, 9", f"v_lshl_add_u32 {vOPw}, {vLane}, 5, {sT0}", f"v_and_b32 {vMLr}, 56, {v8L}",
              f"s_lshl_b32 {sO1}, {sHead}, 11", f"s_lshl_b32 {sT0}, {sC}, 5", f"s_add_u32 {sO1}, {sO1}, {sT0}",
              f"v_lshrrev_b32 v28, 3, {vLane}", f"v_lshrrev_b32 {vOpub}, 1, {vMLr}",
              f"v_lshl_add_u32 {vOpub}, v28, 8, {vOpub}", f"v_and_b32 v28, 6, v28",
              f"s_lshl_b32 {sO2}, {sHead}, 5", f"s_lshl_b32 {sT0}, {sC}, 2", f"s_add_u32 {sO2}, {sO2}, {sT0}", f"s_add_u32 {sO2}, {sO2}, {AB}",
              f"v_add_lshl_u32 {vAoff}, v28, {vLane}, 2", f"v_lshlrev_b32 v28, 30, {vLane}",
              f"v_and_b32 {vAoff}, 28, {vAoff}", f"v_and_b32 v28, 0x40000000, v28", f"v_lshl_add_u32 {vYoff}, {vLane}, 1, v28",
              f"s_lshl_b32 {sP1}, {sX}, 13", f"s_lshl_b32 {sT0}, {sW}, 10", f"s_add_u32 {sP1}, {sP1}, {sT0}",
              f"s_lshl_b32 {sP2}, {sX}, 7", f"s_lshr_b32 {sT0}, {sW}, 1", f"s_lshl_b32 {sT0}, {sT0}, 5",
              f"s_add_u32 {sP2}, {sP2}, {sT0}", f"s_add_u32 {sP2}, {sP2}, {AB}",
              ]:
        A(l)
    zeroS()
    vmc(12 - pre)
    A("L_ql:")
    A(f"ds_read_b128 {vr(vA,4)}, {vL16} offset:{L_Q}")
    A(f"ds_read_b32 v15, v29 offset:{L_FLAG}")
    lgk(0)
    A(f"v_cmp_eq_u32 vcc, -1, v{vA}")
    if 'noq' not in dbg: retry("L_ql", 4)
    A(f"v_readfirstlane_b32 {sFast}, v15")
    A(f"s_getreg_b32 {sNear}, hwreg(HW_REG_XCC_ID, 2, 1)")
    A(f"s_lshr_b32 {sT0}, {sFast}, 1")
    A(f"s_xor_b32 {sNear}, {sNear}, {sT0}")
    A(f"s_lshl_b32 {sNear}, {sNear}, 13")
    A(f"s_and_b32 {sFast}, {sFast}, 1")
    A("s_branch L_qpoll_ok")

    A("L_g:")
    A(f"s_mul_i32 {sM}, {sX}, 1280")
    A(f"s_add_u32 {sM}, {sM}, {sLay}")
    A(f"s_add_u32 {sM}, {sM}, {XB}")
    A(f"s_cmp_eq_u32 {sMode}, 0")
    A(f"s_cselect_b32 {sT0}, 6, 7")
    A(f"s_cselect_b32 {sT1}, 63, 127")
    A(f"s_cselect_b32 {sT2}, {(2560 - LSTRIDE) & 0xffffffff}, 0")
    A(f"s_cselect_b32 {sT3}, 0, 1280")
    A(f"v_lshrrev_b32 v53, {sT0}, {vD4}")
    A(f"v_and_b32 v52, {sT1}, {vD4}")
    A(f"v_lshl_add_u32 v53, v53, 7, v52")
    A(f"s_add_u32 s28, {sT2}, {sLay}")
    A(f"s_add_u32 s28, s28, {YB}")
    A(f"s_add_u32 s28, s28, {sNear}")
    A(f"s_sub_u32 {sT2}, 2560, {sT3}")
    A(f"s_add_u32 s29, s28, {sT2}")
    for p in range(2, 8): A(f"s_add_u32 s{28+p}, s{26+p}, 16384")
    A(f"v_add_u32 v45, {sT3}, {vD4}")
    A(f"v_lshlrev_b32 v46, 1, v45")
    A(f"v_lshrrev_b32 v52, 1, {vLane}")
    A(f"v_xor_b32 v52, v52, {vLane}")
    A(f"v_and_b32 v52, 8, v52")
    A(f"v_and_b32 v54, 6, {vLane}")
    A(f"v_or_b32 v52, v52, v54")
    A("v_mov_b32 v55, 0x3f803f80")
    A("v_cmp_eq_u32 vcc, 0, v52")
    A(f"v_and_b32 v54, 1, {vLane}")
    A(f"v_mul_u32_u24 v54, 0x5555, v54")
    A(f"v_cndmask_b32 v{GA}, 0, v55, vcc")
    A(f"v_cndmask_b32 v{GA+1}, 0, v55, vcc")
    A("v_cmp_eq_u32 vcc, 4, v52")
    A(f"v_add_u32 v54, 0x8888, v54")
    A(f"v_cndmask_b32 v{GA+2}, 0, v55, vcc")
    A(f"v_cndmask_b32 v{GA+3}, 0, v55, vcc")
    A(f"s_cmp_eq_u32 {sMode}, 0")
    A("s_cbranch_scc0 L_g_x")
    A(f"s_sub_u32 {sM}, {sM}, {LSTRIDE}")
    poll("L_xpoll", [f"buffer_load_dword {vXp}, {vD4}, {srd('WS')}, {sM} offen sc1"], [vXp], sl_x, depth=pdx)
    stamp(4)
    if d_f: A(f"s_sleep {d_f}")
    if d_z > d_f:
        A(f"s_cmp_eq_u32 {sL}, 2"); A("s_cbranch_scc1 L_g_x"); A(f"s_sleep {d_z - d_f}")
    A("L_g_x:")
    yl = [f"buffer_load_dword v{T+p}, v53, {srd('WS')}, s{28+p} offen sc1" for p in range(8)]
    for l in yl: A(l)
    A(f"v_lshlrev_b32 v{GD}, 16, {vXp}")
    A(f"v_and_b32 v{GD+1}, {sHI}, {vXp}")
    A(f"s_cmp_eq_u32 {sL}, 0")
    A("s_cbranch_scc1 L_hook")
    A("L_ychk:")
    vmc(0)
    A("L_ychk2:")
    missing([f"v{T+p}" for p in range(8)])
    A("s_cbranch_vccnz L_yretry")
    t = ["L_yretry:", f"s_sub_u32 {sTO}, {sTO}, 1", "s_cbranch_scc1 L_end"]
    if sl_y: t.append(f"s_sleep {sl_y}")
    mk_ = [f"s[{r}:{r+1}]" for r in (26, 42, 44, 52, 54, 96, 98)] + ["vcc"]
    for p in range(8): t.append(f"v_cmp_eq_u32 {mk_[p]}, -1, v{T+p}")
    for p in range(8):
        t += [f"s_mov_b64 exec, {mk_[p]}", yl[p]]
    t.append("s_mov_b64 exec, -1")
    if freerun:
        if freerun > 1: t.append(f"s_waitcnt vmcnt({8*(freerun-1)})")
        t.append("s_branch L_ychk2")
    else:
        t.append("s_branch L_ychk")
    tails.append(t)
    if stamps:
        A(f"s_add_u32 {sSI}, {sSI}, {sMode}"); stamp(2); A(f"s_sub_u32 {sSI}, {sSI}, {sMode}")
    A(f"{SMF} {vr(GD,4)}, {vr(GA,4)}, {vr(T,8)}, v54")
    A(f"s_cmp_eq_u32 {sL}, 2")
    A(f"v_cvt_pk_bf16_f32 {vXp}, v{GD}, v{GD+1}")
    A("s_cbranch_scc1 L_final")
    xwrite()
    A(f"s_cmp_eq_u32 {sMode}, 1")
    A("s_cbranch_scc1 L_up_m")

    QW = L0 + 32; QD = L0 + 56; QC = L0 + 60; XA = 44; vQs = f"v{L0+61}"; vQp = f"v{L0+62}"
    def q_prep():
        A(f"s_sub_u32 {sV_}, {sW}, 4")
        tr128("v14", 16)
        A(f"s_lshl_b32 {sT0}, {sV_}, 5")
        A(f"v_xor_b32 v14, {sT0}, v14")
        for t in range(3):
            for rp in range(4):
                hb, rho = rp >> 1, rp & 1
                if t == 2 and hb: continue
                A(f"ds_read_b64_tr_b16 {vr(QW+8*t+2*rp,2)}, v14 offset:{L_WQ + (64*t+32*hb+2*rho)*128}")
        for r in range(4):
            A(f"v_mov_b32 v{QW+20+r}, 0"); A(f"v_mov_b32 v{QD+r}, 0")
        A(f"v_and_b32 v16, 48, {vLane}")
        A(f"v_and_b32 v15, 1, {vLane}")
        A(f"v_lshlrev_b32 v16, 1, v16")
        A(f"v_lshl_add_u32 v16, v15, 4, v16")
        A(f"s_lshr_b32 {sT0}, {sC}, 1")
        A(f"s_mul_i32 {sT0}, {sT0}, 320")
        A(f"v_add_u32 v16, {sT0}, v16")
        A(f"v_add_u32 v17, 256, v16")
        A(f"v_mov_b32 v15, {L_ZERO - L_XI}")
        A(f"v_cmp_gt_u32 vcc, 32, {vLane}")
        A(f"v_lshlrev_b32 {vQs}, 3, {vLane}")
        A("v_cndmask_b32 v17, v15, v17, vcc")
        A(f"v_and_b32 v15, 12, {vLane}")
        A("v_cmp_eq_u32 vcc, 4, v15")
        A(f"v_mov_b32 v15, {L_ONE - L_XI}")
        A("v_cndmask_b32 v16, v16, v15, vcc")
        A("v_cndmask_b32 v17, v17, v15, vcc")
        qpub_off(vQp, "v15", False)
        A(f"v_and_b32 v15, 0x31, {vLane}")
        A("v_cmp_eq_u32 vcc, 0, v15")
        A(f"v_mov_b32 v15, {OOB}")
        qpub_cu(sA2, sT0)
        A(f"v_cndmask_b32 {vQp}, v15, {vQp}, vcc")
        A(f"s_lshl_b32 {sT0}, {sV_}, 8"); A(f"s_add_u32 {sA2}, {sA2}, {sT0}")
        setprio(3)
    A(f"s_cmp_ge_u32 {sW}, 4")
    A("s_cbranch_scc0 L_att1")
    A("L_q_bar:")
    lgk(0)
    A("s_barrier")
    A("L_q_go:")
    stamp(5)
    stat_reads(vQs, L_ST)
    A(f"ds_read_b128 {vr(XA,4)}, v16 offset:{L_XI}")
    A(f"ds_read_b128 {vr(XA+4,4)}, v16 offset:{L_XI + 128}")
    A(f"ds_read_b128 {vr(XA+8,4)}, v17 offset:{L_XI}")
    stats_and_mfma(lambda i: A(f"{SMF} {vr(QD,4)}, {vr(XA+4*i,4)}, {vr(QW+8*i,8)}, {vIdx}"), 3,
                   [f"v_add_f32 v{QC}, v{QD}, v{QD+1}", f"v_add_f32 v{QD}, v{QD}, v{QD+1}", "", f"v_permlane16_swap_b32 v{QD}, v{QC}"])
    A(f"v_mul_f32 v33, {LOG2E/math.sqrt(128)!r}, v33")
    A(f"v_fma_f32 v{QD}, -{sT0}, v{QC}, v{QD}")
    A(f"v_readlane_b32 {sT1}, v33, 63")
    A(f"v_mov_b32_dpp v34, v{QD} quad_perm:[1,1,3,3] {DPPF}")
    A(f"v_mul_f32 v{QD}, {sT1}, v{QD}")
    A(f"v_mul_f32 v34, {sT1}, v34")
    A(f"v_cvt_pk_bf16_f32 v35, v{QD}, v34")
    A("v_min_u32 v35, -2, v35")
    store_intra("L_q_st", [f"buffer_store_dword v35, {vQp}, {srd('WS')}, {sA2} offen"], scc_ready=True)
    stamp(6)
    setprio(0)

    WW = L0 + 32; D0 = L0
    def wo_tr():
        tr128("v14", 16)
        A(f"s_lshl_b32 {sT0}, {sW}, 13")
        A(f"s_add_u32 {sT0}, {sT0}, {L_R1}")
        A(f"v_add_u32 v14, {sT0}, v14")
        for cb in range(1, 4): A(f"v_xor_b32 v{14+cb}, {32*cb}, v14")
        return [f"ds_read_b64_tr_b16 {vr(WW+8*cb+2*rp,2)}, v{14+cb} offset:{(32*(rp>>1)+2*(rp&1))*128}"
                for cb in (0, 2, 1, 3) for rp in range(4)]
    A(f"s_cmp_eq_u32 {sL}, 0")
    A("s_cbranch_scc1 L_stream")
    def att_prep(tag):
        zeroS()
        A(f"s_cmp_eq_u32 {sRole}, 0")
        A(f"s_cbranch_scc0 L_notr{tag}")
        for l in wo_tr(): A(l)
        A(f"L_notr{tag}:")
    A("s_barrier")
    A(qload)
    vmc(2)
    att_prep("b")
    A("s_branch L_qjoin")
    A("L_att1:")
    lgk(0)
    A("s_barrier")
    vmc(0)
    att_prep("a")
    A("s_barrier")
    if d_q: A(f"s_sleep {d_q}")
    A(qload)
    if pdq > 1 and gapq: A(f"s_sleep {gapq}")
    A("L_qjoin:")
    stamp(7)
    poll("L_qpoll", [qload], [f"v{vA+i}" for i in range(4)], sl_q, first_issued=True, depth=pdq)
    stamp(8)
    def tsum(Tt):
        b = S0 + 8*Tt
        if pk: return [f"v_pk_add_f32 v[{b}:{b+1}], v[{b}:{b+1}], v[{b+6}:{b+7}]", f"v_add_f32 v{b}, v{b}, v{b+1}"]
        return [f"v_add_f32 v{b}, v{b}, v{b+1}", f"v_add_f32 v{b+6}, v{b+6}, v{b+7}", f"v_add_f32 v{b}, v{b}, v{b+6}"]
    shadow = [[]]*8
    for idx, Tt in enumerate([0, 2, 1, 3]):
        for kp in range(2):
            A(f"{SMF} {vr(S0+8*Tt+4*kp,4)}, {vr(vA,4)}, {vr(K0+16*Tt+8*kp,8)}, {vIdx}")
            for l in shadow[2*idx+kp]: A(l)
    for l in tsum(0) + tsum(2) + tsum(1): A(l)
    A(f"v_permlane32_swap_b32 v{S0}, v{S0+16}")
    for l in tsum(3): A(l)
    A(f"v_add_f32 v{S0}, v{S0}, v{S0+16}")
    A(f"v_permlane32_swap_b32 v{S0+8}, v{S0+24}")
    A(f"v_add_f32 v{S0+8}, v{S0+8}, v{S0+24}")
    A(f"v_permlane16_swap_b32 v{S0}, v{S0+8}")
    A(f"v_add_f32 v14, v{S0}, v{S0+8}")
    stamp(31, True)
    A(f"v_max_f32_dpp v16, v14, v14 {steps[0]}")
    for st in steps[1:]: A(f"v_max_f32_dpp v16, v16, v16 {st}")
    A(f"v_readlane_b32 {sM}, v16, 63")
    A(f"s_cmp_eq_u32 {sL}, 0")
    A(f"v_subrev_f32 v14, {sM}, v14")
    A("v_exp_f32 v14, v14")
    A(f"v_mov_b32_dpp v15, v14 quad_perm:[1,1,3,3] {DPPF}")
    vP = 20
    A(f"v_cvt_pk_bf16_f32 v{vP}, v14, v15")
    A(f"v_add_f32_dpp v17, v14, v14 {steps[0]}")
    for q in range(1, 4): A(f"v_mov_b32_dpp v{vP+q}, v{vP} row_ror:{16-4*q} {DPPF}")
    A("s_cbranch_scc1 L_vland")
    A("L_pv:")
    stamp(32, True)
    A(f"s_cmp_lt_u32 {sW}, 4")
    def pv(e): A(f"{SMF} {vr(L0+4*e,4)}, {vr(vP,4)}, {vr(V0+8*e,8)}, {vIdx} abid:1")
    def oadd(e): A(f"v_add_f32 v{S0+e}, v{L0+4*e}, v{L0+4*e+2}")
    def owr(h):
        if h == 0: A("s_mov_b64 exec, 0xffff")
        A(f"ds_write_b128 {vOPw}, {vr(S0+4*h,4)} offset:{L_OP+16*h}")
        if h == 1: A("s_mov_b64 exec, -1")
    for e in range(5):
        pv(e); A(f"v_add_f32_dpp v17, v17, v17 {steps[e+1]}")
    A(f"ds_write_b64 {vML}, v[16:17] offset:{L_ML}")
    pv(5); oadd(0); oadd(1)
    pv(6); oadd(2)
    pv(7); oadd(3)
    A("s_cbranch_scc1 L_early")
    lgk(0)
    stamp(33, True)
    A("s_barrier")
    stamp(34, True)
    owr(0)
    for e in range(4, 8): oadd(e)
    owr(1)
    A("L_noread:")
    A(f"s_cmp_eq_u32 {sL}, 0")
    lgk(0)
    stamp(10)
    if stamps: A(f"s_cmp_eq_u32 {sL}, 0")
    A("s_barrier")
    if 'stop' in dbg: A("s_branch L_end")
    A("s_cbranch_scc1 L_rank")
    A("s_branch L_roles")
    A("L_early:")
    owr(0)
    A("s_nop 1")
    for e in range(4, 8): oadd(e)
    owr(1)
    A(f"s_cmp_eq_u32 {sL}, 0")
    A("s_cbranch_scc1 L_pfw")
    A("L_pfw_done:")
    A(f"s_cmp_lt_u32 {sW}, 2")
    lgk(0)
    A("s_barrier")
    A("s_cbranch_scc0 L_noread")
    A(f"ds_read_b64 v[16:17], {vMLr} offset:{L_ML}")
    A(f"s_cmp_eq_u32 {sW}, 1")
    lgk(0)
    A(f"v_max_f32_dpp v14, v16, v16 {steps[0]}")
    for st in steps[1:3]: A(f"v_max_f32_dpp v14, v14, v14 {st}")
    A("v_sub_f32 v16, v16, v14")
    A("v_exp_f32 v16, v16")
    A("s_cbranch_scc1 L_awave")
    stamp(10)
    A("s_barrier")
    mark("att1", 0)
    stamp(18, True)
    if 'stop' in dbg: A("s_branch L_end")
    if rd2:
        for w in range(4): A(f"ds_read2st64_b64 {vr(40+4*w,4)}, {v8L} offset0:{L_OP//512 + 2*w} offset1:{L_OP//512 + 2*w + 1}")
    else:
        for w in range(8): A(f"ds_read_b64 {vr(40+2*w,2)}, {v8L} offset:{L_OP + 512*w}")
    u_ = 1 if rd2 else 2
    A("v_mul_f32 v17, v16, v17")
    A(f"s_cmp_eq_u32 {sFast}, 0")
    for st in steps[:3]: A(f"v_add_f32_dpp v17, v17, v17 {st}")
    A("v_rcp_f32 v15, v17")
    lgk(3*u_)
    A(f"v_mul_f32_dpp v20, v16, v40 row_newbcast:0 {DPPF}")
    A(f"v_mul_f32_dpp v21, v16, v41 row_newbcast:0 {DPPF}")
    A(f"v_mul_f32_dpp v22, v16, v42 row_newbcast:1 {DPPF}")
    A(f"v_mul_f32_dpp v23, v16, v43 row_newbcast:1 {DPPF}")
    for w in range(2, 8):
        if w in (2, 4, 6): lgk((3 - w//2)*u_)
        A(f"v_fmac_f32_dpp v{20+2*(w&1)}, v16, v{40+2*w} row_newbcast:{w} {DPPF}")
        A(f"v_fmac_f32_dpp v{21+2*(w&1)}, v16, v{41+2*w} row_newbcast:{w} {DPPF}")
    A("v_pk_add_f32 v[20:21], v[20:21], v[22:23]")
    A("v_pk_mul_f32 v[20:21], v[20:21], v[14:15] op_sel:[0,1] op_sel_hi:[1,1]")
    A("v_cvt_pk_bf16_f32 v20, v20, v21")
    A("v_min_u32 v20, -2, v20")
    store_intra("L_o_st", [f"buffer_store_dword v20, {vOpub}, {srd('WS')}, {sO1} offen"], scc_ready=True)
    stamp(11)
    A(f"s_cmp_eq_u32 {sL}, 0")
    A("s_cbranch_scc1 L_pf2")
    A("L_roles:")
    A(f"s_cmp_eq_u32 {sRole}, 0")
    A("s_cbranch_scc0 L_notwo")

    aload = f"buffer_load_dword v14, {vAoff}, {srd('WS')}, {sP2} offen sc1"
    oload = f"buffer_load_dwordx4 {vr(vA,4)}, {vL16}, {srd('WS')}, {sP1} offen sc1"
    A(f"s_cmp_eq_u32 {sL}, 0")
    A("s_cbranch_scc1 L_wo_dma")
    A("L_wo_have:")
    A(aload)
    if not oseq: A(oload)
    for r in range(16): A(f"v_mov_b32 v{D0+r}, 0")
    stamp(12)
    if oseq:
        poll("L_apoll", [aload], ["v14"], sl_o, first_issued=True, depth=oseq)
        A(oload)
    else:
        poll("L_apoll", [aload, oload], ["v14"], sl_o, first_issued=True, depth=pdo)
        if pdo == 1: A(oload)
    stamp(35, True)
    A(f"v_max_f32_dpp v16, v14, v14 {steps[0]}")
    for st in steps[1:3]: A(f"v_max_f32_dpp v16, v16, v16 {st}")
    A("v_sub_f32 v15, v14, v16")
    A("v_exp_f32 v15, v15")
    A(f"v_add_f32_dpp v16, v15, v15 {steps[0]}")
    for st in steps[1:3]: A(f"v_add_f32_dpp v16, v16, v16 {st}")
    A("v_rcp_f32 v16, v16")
    lgk(0)
    if not oseq: missing([f"v{vA+i}" for i in range(4)])
    A("v_mul_f32 v15, v15, v16")
    if not oseq: A("s_cbranch_vccz L_opoll_ok")
    poll("L_opoll", [oload], [f"v{vA+i}" for i in range(4)], sl_o, first_issued=True, depth=pdo)
    stamp(13)
    cbo = [0, 2, 1, 3]
    for cb in cbo: A(f"{SMF} {vr(D0+4*cb,4)}, {vr(vA,4)}, {vr(WW+8*cb,8)}, {vIdx}")
    A(f"v_mov_b32_dpp v16, v15 row_newbcast:0 {DPPF}")
    A(f"v_mov_b32_dpp v17, v15 row_newbcast:1 {DPPF}")
    def wsum(cb):
        d = D0 + 4*cb
        if pk:
            A(f"v_pk_mul_f32 v[{d}:{d+1}], v[{d}:{d+1}], v[16:17] op_sel_hi:[1,0]")
            A(f"v_pk_fma_f32 v[{d}:{d+1}], v[{d+2}:{d+3}], v[16:17], v[{d}:{d+1}] op_sel:[0,1,0] op_sel_hi:[1,1,1]")
            A(f"v_add_f32 v{d}, v{d}, v{d+1}")
            return
        A(f"v_add_f32 v{d}, v{d}, v{d+1}")
        A(f"v_add_f32 v{d+2}, v{d+2}, v{d+3}")
        A(f"v_mul_f32 v{d}, v16, v{d}")
        A(f"v_fmac_f32 v{d}, v17, v{d+2}")
    wsum(0); wsum(2); wsum(1)
    A(f"v_permlane32_swap_b32 v{D0}, v{D0+8}")
    wsum(3)
    A(f"v_add_f32 v{D0}, v{D0}, v{D0+8}")
    A(f"v_permlane32_swap_b32 v{D0+4}, v{D0+12}")
    A(f"v_add_f32 v{D0+4}, v{D0+4}, v{D0+12}")
    A(f"v_permlane16_swap_b32 v{D0}, v{D0+4}")
    A(f"v_add_f32 v{D0}, v{D0}, v{D0+4}")
    A(f"ds_write_b32 {vD4}, v{D0} offset:{L_RED}")
    A(f"s_cmp_eq_u32 {sW}, 0")
    lgk(0)
    stamp(19, True)
    if stamps == 3: A(f"s_cmp_eq_u32 {sW}, 0")
    A("s_barrier")
    A("s_cbranch_scc0 L_wo_done")
    stamp(1, True)
    for w in range(4): A(f"ds_read2st64_b32 {vr(40+2*w,2)}, {vD4} offset0:{L_RED//256 + 2*w} offset1:{L_RED//256 + 2*w + 1}") if L_RED % 256 == 0 else None
    if L_RED % 256:
        for w in range(8): A(f"ds_read_b32 v{40+w}, {vD4} offset:{L_RED + 256*w}")
        lgk(4)
    else:
        lgk(2)
    A("v_pk_add_f32 v[40:41], v[40:41], v[42:43]")
    A(f"s_xor_b32 {sT3}, {sY}, 8192")
    lgk(0)
    A("v_pk_add_f32 v[44:45], v[44:45], v[46:47]")
    A("v_pk_add_f32 v[40:41], v[40:41], v[44:45]")
    A("v_add_f32 v40, v40, v41")
    packpair("v42", "v40", "v41")
    A(f"buffer_store_dword v42, {vYoff}, {srd('WS')}, {sY} offen sc1")
    if dual: A(f"buffer_store_dword v42, {vYoff}, {srd('WS')}, {sT3} offen sc1")
    stamp(14)
    A("L_wo_done:")
    A(f"s_cmp_eq_u32 {sL}, 0")
    A("s_cbranch_scc0 L_w2_have")
    dma128("v20", 1280, sW)
    A(f"s_mul_i32 {sT0}, {sX}, 224")
    A(f"s_lshl_b32 {sT1}, {sW}, 3")
    A(f"s_add_u32 {sT0}, {sT0}, {sT1}")
    A(f"s_mul_i32 {sT0}, {sT0}, 1280")
    A(f"s_lshl_b32 {sT1}, {sR}, 7")
    A(f"s_add_u32 {sT0}, {sT0}, {sT1}")
    A(f"s_lshl_b32 {sT3}, {sW}, 10")
    A("s_barrier")
    for k in range(4):
        if k == 3:
            A(f"s_cmp_lt_u32 {sW}, 4"); A("s_cbranch_scc0 L_w2_iss")
        A(f"s_add_u32 m0, {sT3}, {L_W2 + k*8192}")
        if k: A(f"s_add_u32 {sT0}, {sT0}, {64*1280}")
        A(f"buffer_load_dwordx4 v20, {srd('W2')}, {sT0} offen {nt} lds")
    A("L_w2_iss:")
    vmc(0)
    A("s_barrier")
    A("L_w2_have:")
    A(f"s_sub_u32 {sV_}, {sW}, 5")
    A(f"s_cmp_lt_u32 {sV_}, 2")
    A("s_cbranch_scc0 L_nextlayer")
    A1 = 48; W = L0; DD = 32
    tr128("v21", 0)
    A(f"s_lshl_b32 {sT0}, {sV_}, 6")
    A(f"v_xor_b32 v21, {sT0}, v21")
    A(f"v_add_u32 v21, {L_W2}, v21")
    A(f"v_and_b32 v20, 32, {vLane}")
    A(f"v_lshl_add_u32 v20, v20, 7, v21")
    A("v_xor_b32 v22, 32, v20")
    A("v_xor_b32 v23, 32, v21")
    A("s_sleep 4")
    for cb in range(2):
        for u in range(2):
            for kp in range(2):
                for rp in range(4):
                    hb, rho = rp >> 1, rp & 1
                    A(f"ds_read_b64_tr_b16 {vr(W+32*cb+16*u+8*kp+2*rp,2)}, v{20 + 2*cb + (1 if (u and hb) else 0)} offset:{(128*u+64*hb+16*kp+2*rho)*128}")
    for r in range(16): A(f"v_mov_b32 v{DD+r}, 0")
    A(f"v_mov_b32 v26, {OOB}")
    A(f"v_cmp_gt_u32 vcc, {sNCH}, {vQ64}")
    A(f"s_lshl_b32 {sA1}, {sX}, 9")
    A(f"s_add_u32 {sA1}, {sA1}, {sLay}")
    A(f"v_cndmask_b32 v25, v26, {vQ64}, vcc")
    A(f"s_add_u32 {sA1}, {sA1}, {HB}")
    A(f"v_cmp_gt_u32 vcc, 32, {vLane}")
    A(f"s_and_b32 {sT2}, {sX}, 1")
    A(f"s_mul_i32 {sT2}, {sT2}, 1280")
    A(f"v_cndmask_b32 v26, v26, {vYoff}, vcc")
    A(f"s_add_u32 {sT0}, {sR}, {sV_}"); A(f"s_lshl_b32 {sT0}, {sT0}, 7")
    A(f"s_add_u32 {sT2}, {sT2}, {sT0}")
    A(f"s_add_u32 {sT2}, {sT2}, {sY}")
    A(f"s_add_u32 {sT2}, {sT2}, 2560")
    A(f"s_xor_b32 {sT3}, {sT2}, 8192")
    setprio(3)
    lgk(0)
    stamp(15)
    poll("L_hpoll", [f"buffer_load_dwordx4 {vr(vA,4)}, {vQ64}, {srd('WS')}, {sA1} offen sc1",
                     f"buffer_load_dwordx4 {vr(A1,4)}, v25, {srd('WS')}, {sA1} offen offset:256 sc1"],
         [f"v{vA+i}" for i in range(4)] + [f"v{A1+i}" for i in range(4)], sl_h)
    stamp(16)
    for cb in range(2):
        for kp in range(2):
            for u in range(2):
                A(f"{SMF} {vr(DD+8*cb+4*kp,4)}, {vr(A1 if u else vA,4)}, {vr(W+32*cb+16*u+8*kp,8)}, {vIdx}")
    A(f"v_add_f32 v{DD}, v{DD}, v{DD+1}")
    A(f"v_add_f32 v{DD+6}, v{DD+6}, v{DD+7}")
    A(f"v_add_f32 v14, v{DD}, v{DD+6}")
    A(f"v_add_f32 v{DD+8}, v{DD+8}, v{DD+9}")
    A(f"v_add_f32 v{DD+14}, v{DD+14}, v{DD+15}")
    A(f"v_add_f32_dpp v14, v{DD+8}, v{DD+14} quad_perm:[0,1,2,3] row_mask:0x2 bank_mask:0xf")
    packpair("v22", "v14", "v15")
    A(f"buffer_store_dword v22, v26, {srd('WS')}, {sT2} offen sc1")
    if dual: A(f"buffer_store_dword v22, v26, {srd('WS')}, {sT3} offen sc1")
    stamp(17)
    vmc(1 + dual)
    A("s_branch L_nextlayer")

    A("L_awave:")
    A("s_barrier")
    if 'stop' in dbg: A("s_branch L_end")
    A("v_mul_f32 v17, v16, v17")
    A(f"s_cmp_eq_u32 {sFast}, 0")
    for st in steps[:3]: A(f"v_add_f32_dpp v17, v17, v17 {st}")
    A("v_log_f32 v17, v17")
    A("s_mov_b64 exec, 1")
    A("v_add_f32 v17, v17, v14")
    A("v_min_u32 v17, -2, v17")
    store_intra("L_a_st", [f"buffer_store_dword v17, off, {srd('WS')}, {sO2}"], scc_ready=True)
    A("s_mov_b64 exec, -1")
    A("s_branch L_roles")

    A("L_notwo:")
    A(f"s_cmp_eq_u32 {sRole}, 2")
    A("s_cbranch_scc1 L_nextlayer")
    UW = L0; UA = L0 + 40; UD = L0 + 60; UC = 43
    A(f"s_cmp_eq_u32 {sL}, 0")
    A("s_cbranch_scc0 L_w13_have")
    A(f"s_mul_i32 {sT0}, {sX}, {14*32}")
    A(f"s_lshl_b32 {sT1}, {sR}, 5")
    A(f"s_add_u32 {sT0}, {sT0}, {sT1}")
    A(f"s_sub_u32 {sT0}, {sT0}, 320")
    A(f"s_mul_i32 {sT1}, {sW}, {16*3456}")
    A(f"s_add_u32 {sT0}, {sT0}, {sT1}")
    A(f"v_lshrrev_b32 v21, 2, {vLane}")
    A(f"v_lshrrev_b32 v20, 4, {vLane}")
    A(f"v_and_b32 v20, 2, v20")
    A(f"v_xor_b32 v21, v21, v20")
    A("v_mul_u32_u24 v21, 3456, v21")
    A(f"v_xor_b32 v20, {vL16}, {vLane}")
    A(f"v_and_b32 v20, 16, v20")
    A(f"v_add3_u32 v21, {sT0}, v21, v20")
    A(f"v_and_b32 v20, 2, {vLane}")
    A("v_cmp_eq_u32 vcc, 0, v20")
    A(f"v_mov_b32 v22, s{P(7)[0]}"); A(f"v_mov_b32 v23, s{P(7)[1]}")
    A(f"v_mov_b32 v14, s{P(6)[0]}"); A(f"v_mov_b32 v15, s{P(6)[1]}")
    A("v_cndmask_b32 v22, v22, v14, vcc"); A("v_cndmask_b32 v23, v23, v15, vcc")
    A("v_add_co_u32 v22, vcc, v22, v21"); A("v_addc_co_u32 v23, vcc, 0, v23, vcc")
    A(f"s_lshl_b32 {sT2}, {sW}, 10")
    A("s_barrier")
    for k in range(5):
        if k:
            A(f"v_add_co_u32 v22, vcc, {8*16*3456}, v22"); A("v_addc_co_u32 v23, vcc, 0, v23, vcc")
        A(f"s_add_u32 m0, {sT2}, {L_R1 + k*8192}")
        A(f"global_load_lds_dwordx4 v[22:23], off {dfl}")
    A("s_branch L_w13_iss")
    A("L_w13_have:")
    A("s_barrier")
    stamp(12)
    A("L_w13_iss:")
    A(f"s_mov_b32 {sMode}, 1")
    A(f"s_cmp_ge_u32 {sW}, 4")
    A("s_cbranch_scc0 L_up_g")
    A(f"s_sub_u32 {sV_}, {sW}, 4")
    A(f"v_and_b32 v14, 32, {vLane}")
    A(f"v_and_b32 v15, 2, {vLane}")
    A(f"v_lshl_add_u32 v14, v15, 3, v14")
    A(f"v_add_u32 v14, v14, {vR0}")
    A(f"v_lshlrev_b32 v14, 6, v14")
    A(f"v_and_b32 v15, 1, {vLane}")
    A(f"v_lshl_add_u32 v14, v15, 5, v14")
    A(f"v_and_b32 v15, 8, {vLane}")
    A(f"v_lshl_add_u32 v14, v15, 4, v14")
    A(f"v_and_b32 v15, 16, {vLane}")
    A(f"v_add_u32 v14, v14, v15")
    A(f"s_lshl_b32 {sT0}, {sV_}, 3")
    A(f"v_xor_b32 v14, {sT0}, v14")
    A(f"v_add_u32 v14, {L_R1}, v14")
    A(f"v_xor_b32 v17, 128, v14")
    up_reads = [f"ds_read_b64_tr_b16 {vr(UW+8*u+2*rp,2)}, {'v17' if rp & 1 else 'v14'} offset:{(128*u+64*(rp>>1))*64}"
                for u in range(5) for rp in range(4)]
    for r in range(4):
        A(f"v_mov_b32 v{UD+r}, 0")
    A(f"v_and_b32 v15, 12, {vLane}")
    A("v_cmp_eq_u32 vcc, 4, v15")
    A(f"v_mov_b32 v15, {L_ONE - L_XI - 1280}")
    A(f"s_lshl_b32 {sA2}, {sX}, 9")
    A(f"v_cndmask_b32 v16, {vQ64}, v15, vcc")
    A(f"v_cmp_gt_u32 vcc, 4, {vLane}")
    A(f"v_mov_b32 v15, {OOB}")
    A(f"s_add_u32 {sA2}, {sA2}, {sT0}")
    A(f"v_cndmask_b32 v25, v15, {vYoff}, vcc")
    A(f"s_lshl_b32 {sT0}, {sR}, 5"); A(f"s_add_u32 {sA2}, {sA2}, {sT0}")
    A(f"s_add_u32 {sA2}, {sA2}, {HB - 320}")
    A(f"s_add_u32 {sA2}, {sA2}, {sLay}")
    setprio(3)
    A(f"s_cmp_eq_u32 {sL}, 0")
    A("s_cbranch_scc1 L_up0")
    for l in up_reads: A(l)
    A(f"s_cmp_eq_u32 {sW}, 4")
    A("s_cbranch_scc0 L_up_bar")
    if d_y > 4: A(f"s_sleep {d_y - 4}")
    A("s_branch L_g")
    A("L_up_g:")
    if d_y:
        A(f"s_cmp_eq_u32 {sL}, 0"); A("s_cbranch_scc1 L_g"); A(f"s_sleep {d_y}")
    A("s_branch L_g")
    A("L_up_m:")
    A(f"s_cmp_ge_u32 {sW}, 4")
    A("s_cbranch_scc0 L_up_nom")
    A("L_up_bar:")
    lgk(0)
    A("s_barrier")
    stamp(13)
    stat_reads(v8L, L_ST + 2560)
    for u in range(5): A(f"ds_read_b128 {vr(UA+4*u,4)}, v16 offset:{L_XI + 1280 + 256*u}")
    stats_and_mfma(lambda i: A(f"{SMF} {vr(UD,4)}, {vr(UA+4*i,4)}, {vr(UW+8*i,8)}, {vIdx}"), 5,
                   ["", "", "", f"v_add_f32 v{UD+2}, v{UD+2}, v{UD+3}", f"v_add_f32 v{UD}, v{UD}, v{UD+1}", "",
                    f"v_add_f32_dpp v{UC}, v{UD+2}, v{UD} row_shl:8 {DPPF}", f"v_add_f32_dpp v{UD}, v{UD+2}, v{UD} row_shl:8 {DPPF}",
                    f"v_readlane_b32 {sT1}, v33, 63", f"v_permlane16_swap_b32 v{UD}, v{UC}"])
    A(f"v_fma_f32 v{UD}, -{sT0}, v{UC}, v{UD}")
    A(f"v_mul_f32 v{UD}, {sT1}, v{UD}")
    A(f"v_mul_f32 v34, {-LOG2E!r}, v{UD}")
    A("v_exp_f32 v34, v34")
    A(f"v_mul_f32_dpp v{UD}, v{UD}, v{UD} row_shl:4 {DPPF}")
    A("v_add_f32 v34, 1.0, v34")
    A("v_rcp_f32 v34, v34")
    A(f"v_mul_f32 v{UD}, v{UD}, v34")
    packpair("v35", f"v{UD}", "v34")
    store_intra("L_h_st", [f"buffer_store_dword v35, v25, {srd('WS')}, {sA2} offen"], scc_ready=True)
    stamp(14)
    A("L_xpub:")
    A(f"s_cmp_eq_u32 {sR}, 10")
    A(f"s_cselect_b32 {sT0}, {sW}, 7")
    A(f"s_cmp_lt_u32 {sT0}, 5")
    A("s_cbranch_scc0 L_nextlayer")
    if xlate:
        A(f"s_add_u32 {sT0}, {sNCH}, 256")
        A(f"v_cmp_gt_u32 vcc, {sT0}, {v8L}")
        A(f"v_mov_b32 v23, {OOB}")
        A(f"s_lshl_b32 {sA1}, {sX}, 9")
        A(f"s_add_u32 {sA1}, {sA1}, {sLay}")
        A(f"v_cndmask_b32 v20, v23, {v8L}, vcc")
        A(f"s_add_u32 {sA1}, {sA1}, {HB}")
        poll("L_tpoll", [f"buffer_load_dwordx2 v[14:15], v20, {srd('WS')}, {sA1} offen sc1"], ["v14", "v15"], 0, depth=pdt)
        if pdt > 1: tdrain = True
    A(f"v_min_u32 v45, -2, {vXp}")
    store_intra("L_x_st", [f"buffer_store_dword v45, {vD4}, {srd('WS')}, {sM} offen"])
    if pdt > 1: vmc(1)

    A("L_nextlayer:")
    mark("h1", 0)
    setprio(0)
    A(f"s_add_u32 {sL}, {sL}, 1")
    A(f"s_add_u32 {sLay}, {sLay}, {LSTRIDE}")
    if stamps: A(f"s_add_u32 {sSI}, {sSI}, 20")
    A(f"s_mov_b32 {sMode}, 0")
    A(f"s_cmp_eq_u32 {sL}, 2")
    A("s_cbranch_scc1 L_last")
    for r in (sO1, sO2, sP1, sP2, sY): A(f"s_add_u32 {r}, {r}, {LSTRIDE}")
    A(f"s_lshl_b32 {sA1}, {sHead}, 10")
    A(f"s_add_u32 {sA1}, {sA1}, {QB1}")
    zeroO()
    if warm:
        A(f"s_cmp_eq_u32 {sW}, 7")
        A("s_cbranch_scc0 L_nowarm")
        warm_o(7)
        A(f"s_lshl_b32 {sT0}, {sHead}, 10")
        A(f"s_add_u32 {sT0}, {sT0}, {QB1}")
        A(f"buffer_load_dword {vDum}, {vL16}, {srd('WS')}, {sT0} offen sc1")
        A("L_nowarm:")
    A(f"s_cmp_ge_u32 {sW}, 4")
    A("s_cbranch_scc0 L_g")
    A("s_sleep 4")
    q_prep()
    A(f"s_add_u32 {sA2}, {sA2}, {QB1}")
    A(f"s_cmp_eq_u32 {sW}, 4")
    A("s_cbranch_scc1 L_g")
    A("s_branch L_q_bar")
    A("L_up_nom:")
    lgk(0)
    A("s_barrier")
    A("s_branch L_xpub")
    A("L_last:")
    A(f"s_add_u32 {sT0}, {sW}, 24")
    A(f"s_lshl_b32 {sT1}, {sX}, 8")
    A(f"s_or_b32 {sT1}, {sT1}, {sR}")
    A(f"s_cmp_eq_u32 {sT0}, {sT1}")
    A("s_cbranch_scc0 L_end")
    A(f"s_cmp_lt_u32 {sW}, 5")
    A("s_cbranch_scc0 L_end")
    if twarm & 1: A(f"buffer_load_dword {vDum}, {vD4}, {srd('OUT')}, 0 offen")
    A("s_branch L_g")

    A("L_final:")
    mark("end")
    A(f"buffer_store_dword {vXp}, {vD4}, {srd('OUT')}, 0 offen {ofl}")
    if stamps or amp: vmc(0)
    mark("end2")
    if amp:
        A(f"s_cmp_eq_u32 {sW}, 0"); A("s_cbranch_scc0 L_end")
        if amp.startswith("start,stag"):
            A(f"s_load_dwordx2 s[0:1], s[{P(10)[0]}:{P(10)[1]}], 64 glc"); lgk(0)
            if amp.endswith("stag"): A("s_not_b32 s100, s1")
            else: A("s_mov_b32 s0, s100"); A("s_not_b32 s100, s1")
        A("s_sub_u32 s30, s0, s100")
        A("s_min_u32 s30, s30, 5000")
        A(f"s_mul_i32 s30, s30, {ampx}")
        A("s_memrealtime s[28:29]"); A("s_waitcnt lgkmcnt(0)")
        A("L_amp:")
        A("s_memrealtime s[32:33]"); A("s_waitcnt lgkmcnt(0)")
        A("s_sub_u32 s32, s32, s28")
        A("s_cmp_lt_u32 s32, s30")
        A("s_cbranch_scc1 L_amp")
    A("L_end:")
    if stamps:
        A("s_mov_b64 exec, -1")
        A(f"s_mov_b32 {sSI}, 0"); stamp(63)
        A(f"v_writelane_b32 {vST}, {sR}, 62")
        A("s_getreg_b32 s26, hwreg(HW_REG_HW_ID)"); A(f"v_writelane_b32 {vST}, s26, 59")
        A("s_getreg_b32 s26, hwreg(HW_REG_XCC_ID, 0, 4)"); A(f"v_writelane_b32 {vST}, s26, 58")
        A(f"s_lshl_b32 {sT0}, s2, 11")
        A(f"s_add_u32 {sT0}, {sT0}, {WS_STAMP}")
        A(f"v_add_u32 v14, {sT0}, {vD4}")
        A(f"global_store_dword v14, {vST}, s[{P(11)[0]}:{P(11)[1]}]")
    A("L_exit:")
    A("s_endpgm")

    A("L_q_prep0:")
    q_prep()
    A(f"s_add_u32 {sA2}, {sA2}, {QB0}")
    A("s_branch L_q_go")
    A("L_vland:")
    for u in range(8):
        vmc(14-2*u)
        vperm(u)
        if u == 3: zeroO()
    stamp(9)
    A("s_nop 0")
    A("s_branch L_pv")
    def get_rank(tag):
        A("v_mov_b32 v29, 0")
        A(f"L_rk{tag}:")
        A(f"ds_read_b32 v28, v29 offset:{L_FLAG+4}")
        lgk(0)
        A("v_cmp_eq_u32 vcc, -1, v28")
        retry(f"L_rk{tag}", 1)
        A(f"v_readfirstlane_b32 {sR}, v28")
        A(f"s_cmp_eq_u32 {sX}, 7")
        A(f"s_cselect_b32 {sT0}, 20, 24")
        A(f"s_cmp_lt_u32 {sR}, {sT0}")
        A(f"s_cselect_b32 {sRole}, 1, 2")
        A(f"s_cmp_lt_u32 {sR}, 10")
        A(f"s_cselect_b32 {sRole}, 0, {sRole}")
        A(f"s_and_b32 {sY}, {sX}, 1")
        A(f"s_mul_i32 {sY}, {sY}, 1280")
        A(f"s_lshr_b32 {sT0}, {sX}, 1")
        A(f"s_lshl_b32 {sT0}, {sT0}, 14")
        A(f"s_add_u32 {sY}, {sY}, {sT0}")
        A(f"s_xor_b32 {sT0}, {sNear}, {8192 if dual else 0}")
        A(f"s_add_u32 {sY}, {sY}, {sT0}")
        A(f"s_lshl_b32 {sT0}, {sR}, 7")
        A(f"s_add_u32 {sY}, {sY}, {sT0}")
        A(f"s_add_u32 {sY}, {sY}, {YB}")
    def wo_dma():
        dma128("v20", 1280, None)
        A("v_xor_b32 v21, 64, v20")
        A(f"s_lshl_b32 {sT0}, {sX}, 9")
        A(f"s_lshl_b32 {sT1}, {sW}, 6")
        A(f"s_add_u32 {sT0}, {sT0}, {sT1}")
        A(f"s_mul_i32 {sT0}, {sT0}, 1280")
        A(f"s_lshl_b32 {sT1}, {sR}, 7")
        A(f"s_add_u32 {sT1}, {sT0}, {sT1}")
        A(f"s_lshl_b32 {sT3}, {sW}, 13")
        for k in range(8):
            A(f"s_add_u32 m0, {sT3}, {L_R1 + k*1024}")
            if k: A(f"s_add_u32 {sT1}, {sT1}, {8*1280}")
            A(f"buffer_load_dwordx4 v{20 + (k&1)}, {srd('WO')}, {sT1} offen {nt} lds")
    A("L_pfw:")
    A(f"s_lshl_b32 {sT0}, {sX}, 7")
    A(f"s_add_u32 {sT0}, {sT0}, {TK}")
    A("s_mov_b32 s26, 1")
    A(f"s_cmp_eq_u32 {sW}, 1")
    lgk(0)
    A("s_barrier")
    A("s_cbranch_scc0 L_notk")
    if dyn:
        A(f"s_atomic_add s26, s[{P(11)[0]}:{P(11)[1]}], {sT0} glc")
        lgk(0)
        A("s_add_u32 s26, s26, 1")
        A("s_min_u32 s26, s26, 31")
    else:
        A(f"s_mov_b32 s26, {sJ}")
    A("v_mov_b32 v28, s26")
    A("v_mov_b32 v29, 0")
    A(f"ds_write_b32 v29, v28 offset:{L_FLAG+4}")
    A("L_notk:")
    get_rank("a")
    if stamps == 1: stamp(18)
    if warm: warm_o(3)
    A(f"s_cmp_eq_u32 {sRole}, 0")
    A("s_cbranch_scc0 L_pf1")
    if woearly: wo_dma()
    A("s_branch L_pfw_done")
    A("L_pf1:")
    if npfo:
        first = 10 - (10*npfo)//4
        A(f"v_mul_u32_u24 v28, 1280, {vLane}")
        A(f"s_sub_u32 {sT1}, {sR}, 10")
        if womode:
            A(f"s_mul_i32 {sT1}, {sT1}, {npfo}")
            A(f"s_add_u32 {sT1}, {sT1}, {sW}")
            A(f"s_add_u32 {sT1}, {sT1}, {40 - 10*npfo}")
            A(f"s_and_b32 {sT2}, {sT1}, 3")
            A(f"s_add_u32 {sT2}, {sT2}, 4")
            A(f"s_lshr_b32 {sT1}, {sT1}, 2")
        else:
            A(f"s_sub_u32 {sT2}, 7, {sW}")
        A(f"s_lshl_b32 {sT0}, {sX}, 3")
        A(f"s_add_u32 {sT0}, {sT0}, {sT2}")
        A(f"s_mul_i32 {sT0}, {sT0}, {64*1280}")
        A(f"s_lshl_b32 {sT1}, {sT1}, 7")
        A(f"s_add_u32 {sT0}, {sT0}, {sT1}")
        A(f"s_cmp_lt_u32 {sR}, 20")
        A(f"s_cselect_b32 {sT1}, {sW}, 7")
        A(f"s_cmp_lt_u32 {sT1}, {npfo}")
        A(f"s_cselect_b32 {sT0}, {sT0}, {OOB}")
        A(f"buffer_load_dword {vDum}, v28, {srd('WO')}, {sT0} offen {pfl}")
    A(f"v_lshrrev_b32 v26, 2, {vLane}")
    A(f"v_mul_u32_u24 v26, 3456, v26")
    A(f"v_and_b32 v28, 3, {vLane}")
    A(f"v_lshl_add_u32 v26, v28, 7, v26")
    A(f"s_bitcmp1_b32 {sR}, 0")
    A(f"s_cselect_b32 s{SRD['WP']}, s{P(7)[0]}, s{P(6)[0]}")
    A(f"s_cselect_b32 s{SRD['WP']+1}, s{P(7)[1]}, s{P(6)[1]}")
    A(f"s_and_b32 s{SRD['WP']+1}, s{SRD['WP']+1}, 0xffff")
    A(f"s_sub_u32 {sM}, {sR}, 10")
    A(f"s_lshr_b32 {sM}, {sM}, 1")
    A(f"s_cmp_lt_u32 {sM}, 10")
    A(f"s_mul_i32 {sM}, {sM}, {64*3456}")
    A(f"s_cselect_b32 {sA2}, {sM}, {OOB}")
    A(f"s_mul_i32 {sM}, {sX}, 7")
    A(f"s_lshr_b32 {sM}, {sM}, 1")
    A(f"s_lshl_b32 {sM}, {sM}, 7")
    A(f"s_add_u32 {sA2}, {sA2}, {sM}")
    A(f"v_add_u32 v26, {sA2}, v26")
    if npf13:
        A(f"s_mul_i32 {sA2}, {sW}, {16*3456}")
        A(f"s_cmp_lt_u32 {sW}, {npf13}")
        A(f"s_cselect_b32 {sA2}, {sA2}, {OOB}")
        if pf20:
            A(f"s_cmp_ge_u32 {sR}, 20")
            A(f"s_cselect_b32 {sA2}, {sA2}, {OOB}")
        A(f"buffer_load_dword {vDum}, v26, {srd('WP')}, {sA2} offen {pfl}")
    A("s_branch L_pfw_done")
    A("L_pf2:")
    if pf20 and npf13:
        A(f"s_cmp_ge_u32 {sR}, 20")
        A("s_cbranch_scc1 L_pf2b")
        for k in range(npf13):
            A(f"s_mov_b32 {sT0}, {k*16*3456}")
            A(f"buffer_load_dword {vDum}, v26, {srd('WP')}, {sT0} offen {pfl}")
        A("L_pf2b:")
    for k in range(npf13, 4):
        A(f"s_mov_b32 {sT0}, {k*16*3456}")
        A(f"buffer_load_dword {vDum}, v26, {srd('WP')}, {sT0} offen {pfl}")
    if pfw2:
        A(f"s_cmp_ge_u32 {sR}, 24")
        A("s_cbranch_scc0 L_roles")
        A(f"v_lshlrev_b32 v28, 7, {vLane}")
        A(f"s_mul_i32 {sT0}, {sX}, {224*1280}")
        A(f"s_sub_u32 {sT1}, 31, {sR}")
        A(f"s_lshl_b32 {sT1}, {sT1}, 13")
        A(f"s_add_u32 {sT0}, {sT0}, {sT1}")
        for k in range(5):
            if k == 4:
                A(f"s_cmp_ge_u32 {sR}, 29"); A("s_cbranch_scc0 L_roles")
            if k: A(f"s_add_u32 {sT0}, {sT0}, {8*8192}")
            A(f"buffer_load_dword {vDum}, v28, {srd('W2')}, {sT0} offen {pfl}")
    A("s_branch L_roles")
    A("L_rank:")
    get_rank("b")
    A("s_branch L_roles")
    A("L_up0:")
    A(f"s_cmp_eq_u32 {sW}, 4")
    A("s_cbranch_scc1 L_g")
    vmc(0)
    A("L_hook:")
    vmc(8)
    A("s_barrier")
    stamp(12)
    A(f"s_cmp_ge_u32 {sW}, 4")
    A("s_cbranch_scc0 L_ychk")
    for l in up_reads: A(l)
    A(f"s_cmp_eq_u32 {sW}, 4")
    A("s_cbranch_scc1 L_ychk")
    A("s_branch L_up_bar")
    A("L_wo_dma:")
    if woearly:
        A(f"s_cmp_lt_u32 {sW}, 4")
        A("s_cbranch_scc1 L_wo_iss")
    wo_dma()
    A("L_wo_iss:")
    rd = wo_tr()
    vmc(0)
    for l in rd: A(l)
    lgk(12)
    A("s_branch L_wo_have")
    for t in tails:
        for l in t: A(l)
    A("L_code_end:")

    ref = open("cdna_kernels/" + NAME + ".s.ref").read().split("\n")
    head = [l for l in ref if l.startswith(";") and "@launch" not in l and "Override launch" not in l and "grid=ceil" not in l]
    out = "\n".join(head) + f"\n; @launch grid=(256,1,1) block=(512,1,1) lds={LDS_BYTES}\n"
    out += f""".amdgcn_target "amdgcn-amd-amdhsa--gfx950"
.text
.globl {NAME}_kernel
.p2align 8
.type {NAME}_kernel,@function
{NAME}_kernel:
"""
    out += A.text()
    out += f""".section .rodata,"a"
.p2align 6
.amdhsa_kernel {NAME}_kernel
  .amdhsa_next_free_vgpr 256
  .amdhsa_next_free_sgpr 102
  .amdhsa_accum_offset 256
  .amdhsa_group_segment_fixed_size 0
  .amdhsa_kernarg_size 96
  .amdhsa_user_sgpr_count 2
  .amdhsa_user_sgpr_kernarg_segment_ptr 1
  .amdhsa_system_sgpr_workgroup_id_x 1
  .amdhsa_float_denorm_mode_32 3
.end_amdhsa_kernel
"""
    return out

if __name__ == "__main__":
    kw = {}
    dst = "cdna_kernels/" + NAME + ".s"
    for a in sys.argv[1:]:
        k, v = a.split("=", 1)
        if k == "out": dst = v
        else:
            try: kw[k] = int(v)
            except ValueError: kw[k] = v
    open(dst, "w").write(gen(**kw))
    print("wrote", dst)
```

```python
import sys, math
from asmlib import Asm

NAME = "interleave_layers__mha_block_cached__glu_gated_swiglu__decode"

LSTRIDE = 0x24000
OB, YB, XB, HB, AB, TK = 0x0, 0x10000, 0x20000, 0x22800, 0x23800, 0x23c00
QB0, QB1 = 0x48000, 0x50000
WS_COMM = 0x58000
PRB = 0x60000
WS_STAMP = 0x100000
OOB = 0x7f000000
L_RED = 0
L_XI = 2048
L_ST = L_XI + 2560
L_OP = L_ST + 5120
L_ML = L_OP + 4096
L_ZERO = L_ML + 640
L_Q = L_ZERO + 64
L_FLAG = L_Q + 1024
L_ONE = L_FLAG + 64
L_WQ = 17408
assert L_ONE + 1280 <= L_WQ and L_ST % 512 == 0 and L_OP % 512 == 0
L_R1 = L_WQ + 20480
L_W2 = L_R1 + 65536
LDS_BYTES = L_W2 + 28672
sX, sJ, sW, sHead, sC, sKV, sL, sLay, sFast, sTO, sT0, sT1, sT2, sT3, sPL, sPH, sSI = \
    ["s%d" % i for i in range(3, 20)]
sV_ = "s20"; sM = "s21"; sA1 = "s22"; sA2 = "s23"; sHI = "s24"; sRole = "s25"; sMode = "s46"; sNCH = "s47"; sNear = "s84"
sO1, sO2, sP1, sP2, sY, sR = "s36", "s37", "s38", "s39", "s40", "s41"
P = lambda i: (36 + 2*i, 37 + 2*i)
SRD = dict(K=60, V=64, WS=68, WQ=72, WO=76, W2=80, X=84, OUT=88, WP=92)
def srd(n): return f"s[{SRD[n]}:{SRD[n]+3}]"
vLane, vR0, vQ64, vIdx, vXp, vD4, vML, vST = ["v%d" % i for i in range(8)]
vA = 8
vKoff, vVoff = "v12", "v13"
v8L = "v12"
vOPw, vMLr, vOpub, vAoff, vYoff = "v18", "v19", "v24", "v27", "v13"
vL16 = "v30"; vDum = "v31"
S0 = 32; K0 = 64; V0 = 128; L0 = 192
def vr(a, n): return f"v[{a}:{a+n-1}]" if n > 1 else f"v{a}"
DPPF = "row_mask:0xf bank_mask:0xf"
steps = [f"quad_perm:[1,0,3,2] {DPPF}", f"quad_perm:[2,3,0,1] {DPPF}", f"row_half_mirror {DPPF}", f"row_mirror {DPPF}",
         "row_bcast:15 row_mask:0xa bank_mask:0xf", "row_bcast:31 row_mask:0xc bank_mask:0xf"]
SMF = "v_smfmac_f32_16x16x64_bf16"
LOG2E = math.log2(math.e)

def gen(stamps=0, cyc=(), amp="", dbg="", force_slow=False, nt="nt", pfl="", dfl="",
        sl_q=0, sl_o=0, sl_y=0, sl_h=0, sl_x=2, d_y=22, d_z=4, d_f=3, pd=2, gap=1, npf13=1, gopos=15, rot=1, warm=1,
        prio=1, xlate=1, qbar=1, d_q=0, pdq=2, gapq=1, lateprio=0, pdo=1, b1='kv', dyn=1, woearly=1, pfw2=1, npfo=3, pf20=0, cpf=4, freerun=0, dual=1, pol=-1, racepos=1, rfl='', ampx=10, pre=1, rd2=1, pk=1, oseq=2, pdx=1, pdt=1, womode=1, twarm=0, ofl=''):
    A = Asm()
    PT = (1, 2)
    def mark(name, lay=None):
        if not amp or name not in amp.split(","): return
        r = (100, 0)[amp.split(",").index(name)]
        if lay is not None:
            A(f"s_cmp_eq_u32 {sL}, {lay}"); A(f"s_cbranch_scc0 L_mark_{name}")
        A(f"s_memrealtime s[{r}:{r+1}]"); A("s_waitcnt lgkmcnt(0)")
        if lay is not None: A(f"L_mark_{name}:")
    def stamp(code, fine=False):
        if not stamps: return
        if stamps == 2 and code not in (0, 10, 14, 63): return
        if stamps == 3 and code not in cyc: return
        if fine and stamps != 3: return
        A("s_memtime s[100:101]" if stamps == 3 else "s_memrealtime s[100:101]")
        A("s_waitcnt lgkmcnt(0)")
        A(f"s_add_u32 m0, {sSI}, {code}")
        A(f"v_writelane_b32 {vST}, s100, m0")
    def lgk(n): A(f"s_waitcnt lgkmcnt({n})")
    def vmc(n): A(f"s_waitcnt vmcnt({n})")
    def setprio(n):
        if prio: A(f"s_setprio {n}")
    def mksrd(n, ptr, size, part=3):
        b = SRD[n]; lo, hi = P(ptr)
        if part & 1: A(f"s_mov_b64 s[{b}:{b+1}], s[{lo}:{hi}]")
        if part & 2:
            A(f"s_mov_b32 s{b+2}, {size}")
            A(f"s_mov_b32 s{b+3}, 0x20000")
    def retry(label, sleep):
        A(f"s_cbranch_vccz {label}_ok")
        A(f"s_sub_u32 {sTO}, {sTO}, 1")
        if sleep: A(f"s_sleep {sleep}")
        A(f"s_cbranch_scc0 {label}")
        A("s_branch L_end")
        A(f"{label}_ok:")
    def missing(regs):
        regs = list(regs)
        if len(regs) == 1:
            A(f"v_cmp_eq_u32 vcc, -1, {regs[0]}"); return
        t = ["v28", "v29"]; k = 0; cur = []
        while len(regs) >= 3 and k < 2:
            A(f"v_max3_u32 {t[k]}, {regs[0]}, {regs[1]}, {regs[2]}"); regs = regs[3:]; cur.append(t[k]); k += 1
        regs = cur + regs
        while len(regs) > 1:
            if len(regs) >= 3:
                A(f"v_max3_u32 v28, {regs[0]}, {regs[-1]}, {regs[-2]}"); regs = ["v28"] + regs[1:-2]
            else:
                A(f"v_max_u32 v28, {regs[0]}, {regs[1]}"); regs = ["v28"]
        A("v_cmp_eq_u32 vcc, -1, v28")
    def poll(label, loads, regs, sleep, first_issued=False, depth=None):
        depth = pd if depth is None else depth
        n = len(loads)
        for k in range(1 if first_issued else 0, depth - 1):
            for l in loads: A(l)
            if gap: A(f"s_sleep {gap}")
        if first_issued and depth == 1: A(f"s_branch {label}_chk")
        A(f"{label}:")
        for l in loads: A(l)
        A(f"{label}_chk:")
        vmc(n*(depth-1))
        missing(regs)
        retry(label, sleep)
    tails = []
    def store_intra(label, stores, scc_ready=False):
        if not scc_ready: A(f"s_cmp_eq_u32 {sFast}, 0")
        A(f"s_cbranch_scc1 {label}_slow")
        for s in stores: A(s)
        A(f"{label}_done:")
        tails.append([f"{label}_slow:"] + [s + " sc1" if s.startswith("buffer") else s for s in stores] + [f"s_branch {label}_done"])
    def packpair(dst, val, tmp, fill=""):
        A(fill)
        A(f"v_mov_b32_dpp {tmp}, {val} quad_perm:[1,1,3,3] {DPPF}")
        A(f"v_cvt_pk_bf16_f32 {dst}, {val}, {tmp}")
        A(f"v_min_u32 {dst}, -2, {dst}")
    def kload(T):
        if T: A(f"v_xor_b32 {vKoff}, {(PT[0] ^ (PT[1] if T == 2 else 0)) << 12}, {vKoff}")
        for t in range(4):
            A(f"buffer_load_dwordx4 {vr(K0+16*T+4*t,4)}, {vKoff}, {srd('K')}, {sKV} offen offset:{64*t} {nt}")
    def vload(j0, j1):
        if j0 == 8: A(f"v_xor_b32 {vVoff}, {PT[1] << 12}, {vVoff}")
        for j in range(j0, j1):
            A(f"buffer_load_dwordx4 {vr(L0+4*j,4)}, {vVoff}, {srd('V')}, {sKV} offen offset:{(j&7)*256} {nt}")
    def vperm(u):
        for q in range(4):
            a, b = L0 + 8*u + q, L0 + 8*u + 4 + q
            A(f"v_perm_b32 v{V0+8*(2*q)+u}, v{b}, v{a}, {sPL}")
            A(f"v_perm_b32 v{V0+8*(2*q+1)+u}, v{b}, v{a}, {sPH}")
    def dma128(dst, rowbytes, par):
        A(f"v_lshrrev_b32 {dst}, 3, {vLane}")
        A(f"v_mul_u32_u24 {dst}, {rowbytes}, {dst}")
        A(f"v_and_b32 v28, 0x70, {vL16}")
        A(f"v_and_b32 v29, 32, {vLane}")
        A(f"v_xor_b32 v28, v28, v29")
        if par is not None:
            A(f"s_and_b32 {sT0}, {par}, 1"); A(f"s_lshl_b32 {sT0}, {sT0}, 6")
            A(f"v_xor_b32 v28, {sT0}, v28")
        A(f"v_add_u32 {dst}, {dst}, v28")
    def tr128(dst, b5rows):
        A(f"v_lshlrev_b32 {dst}, 7, {vR0}")
        A(f"v_and_b32 v28, 12, {vR0}")
        A(f"v_lshl_add_u32 {dst}, v28, 3, {dst}")
        A(f"v_and_b32 v28, 3, {vLane}")
        A(f"v_lshl_add_u32 {dst}, v28, 3, {dst}")
        if b5rows:
            A(f"v_and_b32 v28, 32, {vLane}")
            A(f"v_lshl_add_u32 {dst}, v28, {int(math.log2(b5rows*128//32))}, {dst}")
    def qpub_off(dst, tmp, v_is_lane):
        A(f"v_and_b32 {dst}, 2, {vLane}"); A(f"v_lshlrev_b32 {dst}, 3, {dst}")
        A(f"v_and_b32 {tmp}, 12, {vLane}"); A(f"v_add_u32 {dst}, {dst}, {tmp}")
        if v_is_lane:
            A(f"v_and_b32 {tmp}, 48, {vLane}"); A(f"v_lshl_add_u32 {dst}, {tmp}, 4, {dst}")
    def qpub_cu(dst, tmp):
        A(f"s_lshl_b32 {dst}, {sHead}, 10")
        A(f"s_lshl_b32 {tmp}, {sC}, 5"); A(f"s_add_u32 {dst}, {dst}, {tmp}")
    def warm_o(w):
        A(f"s_lshl_b32 {sT0}, {sX}, 13")
        A(f"s_add_u32 {sT0}, {sT0}, {sLay}")
        A(f"s_lshl_b32 {sT2}, {sX}, 7")
        A(f"s_add_u32 {sT2}, {sT2}, {sLay}")
        A(f"s_add_u32 {sT2}, {sT2}, {AB}")
        A(f"s_cmp_lt_u32 {sR}, 2")
        A(f"s_cselect_b32 {sT3}, {sW}, 99")
        A(f"s_cmp_eq_u32 {sT3}, {w}")
        A(f"s_cselect_b32 {sT0}, {sT0}, {OOB}")
        A(f"s_cselect_b32 {sT2}, {sT2}, {OOB}")
        A(f"v_lshlrev_b32 v28, 7, {vLane}")
        A(f"buffer_load_dword {vDum}, v28, {srd('WS')}, {sT0} offen sc1")
        A(f"buffer_load_dword {vDum}, off, {srd('WS')}, {sT2} sc1")
    def stat_reads(addr, base):
        if rd2:
            A(f"ds_read2st64_b64 v[32:35], {addr} offset0:{base//512} offset1:{base//512+1}")
            A(f"ds_read2st64_b64 v[36:39], {addr} offset0:{base//512+2} offset1:{base//512+3}")
        else:
            for k in range(4): A(f"ds_read_b64 {vr(32+2*k,2)}, {addr} offset:{base + 512*k}")
        A(f"ds_read_b64 v[40:41], {addr} offset:{base + 2048}")
    def stats_and_mfma(mf, nA, fill):
        A("v_mov_b32 v42, 1e-05")
        A(f"s_cmp_eq_u32 {sFast}, 0")
        lgk(nA+1)
        A("v_pk_add_f32 v[32:33], v[32:33], v[34:35]")
        A("v_pk_add_f32 v[36:37], v[36:37], v[38:39]")
        lgk(nA)
        A("v_pk_add_f32 v[32:33], v[32:33], v[40:41]")
        A("v_pk_add_f32 v[32:33], v[32:33], v[36:37]")
        for i, st in enumerate(steps):
            if i < nA:
                lgk(nA-1-i); mf(i)
            A(f"v_add_f32_dpp v32, v32, v32 {st}")
            A(f"v_add_f32_dpp v33, v33, v33 {st}")
        tail = [f"v_mul_f32 v32, {1/640!r}, v32", f"v_fmamk_f32 v33, v33, {1/640!r}, v42", "v_fma_f32 v33, -v32, v32, v33",
                "v_max_f32 v33, v42, v33", "v_rsq_f32 v33, v33", f"v_readlane_b32 {sT0}, v32, 63"]
        fill = list(fill)
        for t in tail:
            A(t)
            if fill: A(fill.pop(0))
        for f in fill: A(f)

    A("s_cmpk_ge_u32 s2, 256")
    A("s_cbranch_scc1 L_exit")
    mark("start")
    if stamps:
        A(f"s_mov_b32 {sSI}, 0"); A(f"v_mov_b32 {vST}, 0")
        stamp(0)
    A(f"s_load_dwordx2 s[{SRD['V']}:{SRD['V']+1}], s[0:1], 16")
    A("s_load_dwordx8 s[52:59], s[0:1], 64")
    A("s_load_dwordx16 s[36:51], s[0:1], 0")
    A(f"s_and_b32 {sX}, s2, 7")
    A(f"s_lshr_b32 {sHead}, s2, 6")
    A(f"s_lshl2_add_u32 {sHead}, {sX}, {sHead}")
    A(f"s_lshl_b32 {sKV}, {sHead}, 20")
    A(f"s_and_b32 {sT0}, s2, 56")
    A(f"s_mov_b32 s{SRD['V']+3}, 0x20000")
    A(f"s_lshl_b32 s{SRD['V']+2}, s{SRD['V']+3}, 8")
    A(f"v_lshrrev_b32 v16, 6, v0")
    A(f"v_mul_u32_u24 v17, 36, v16")
    A(f"v_and_or_b32 v17, v16, 3, v17")
    A(f"v_lshlrev_b32 v17, 1, v17")
    A(f"v_xor_b32 v17, {sT0}, v17")
    A(f"v_bfe_u32 v15, v0, 4, 2")
    A(f"v_xor_b32 {vVoff}, v15, v17")
    A(f"v_lshlrev_b32 {vVoff}, 7, {vVoff}")
    A(f"v_and_or_b32 {vVoff}, v0, 15, {vVoff}")
    A(f"v_lshlrev_b32 {vVoff}, 4, {vVoff}")
    if pre:
        lgk(0)
        vload(0, pre)
    A(f"s_lshr_b32 {sJ}, s2, 3")
    if cpf:
        A("s_getpc_b64 s[26:27]")
        A("s_and_b32 s26, s26, 0xffffff00")
        A(f"v_and_b32 v19, {cpf-1}, v0")
        A(f"s_lshl_b32 s28, {sJ}, 7")
        A("v_lshl_add_u32 v19, v19, 12, s28")
        A(f"v_min_u32 v19, L_code_end-{NAME}_kernel-4, v19")
        A("v_cmp_gt_u32 vcc, 64, v0")
        A("s_cbranch_vccz L_nocpf")
        A(f"global_load_dword {vDum}, v19, s[26:27]")
        A("L_nocpf:")
    A(f"v_readfirstlane_b32 {sW}, v16")
    A(f"v_lshlrev_b32 {vD4}, 2, v0")
    A(f"v_and_b32 {vLane}, 63, v0")
    A(f"s_and_b32 {sC}, {sJ}, 7")
    A(f"v_and_b32 v14, 15, {vLane}")
    A(f"v_lshl_add_u32 {vKoff}, v17, 3, v14")
    A(f"v_lshl_add_u32 {vKoff}, {vKoff}, 4, v15")
    A(f"v_lshlrev_b32 {vKoff}, 4, {vKoff}")
    A(f"v_lshlrev_b32 {vL16}, 4, {vLane}")
    dma128("v18", 8192, sW)
    A(f"s_lshr_b32 {sT1}, {sC}, 1")
    A(f"s_mul_i32 {sT1}, {sT1}, {160*8192}")
    A(f"s_lshl_b32 {sT2}, {sW}, 16")
    A(f"s_add_u32 {sT1}, {sT1}, {sT2}")
    A(f"s_lshl_b32 {sT2}, {sHead}, 8")
    A(f"s_add_u32 {sT1}, {sT1}, {sT2}")
    A(f"s_and_b32 {sT2}, {sC}, 1")
    A(f"s_lshl_b32 {sT2}, {sT2}, 7")
    A(f"s_add_u32 {sT1}, {sT1}, {sT2}")
    A(f"s_lshl_b32 {sT2}, {sW}, 10")
    first = [("X", 0, 1280), ("WQ", 3, 640*4096*2), ("WS", 11, WS_COMM), ("K", 1, 1 << 25)]
    for f in first: mksrd(*f, part=2)
    setprio(3)
    lgk(0)
    mark("karg")
    if amp.startswith("start,stag"):
        A(f"s_cmp_eq_u32 {sW}, 3"); A("s_cbranch_scc0 L_nostag")
        A(f"s_and_b32 s28, {sJ}, 15"); A("s_cbranch_scc1 L_nostag")
        A("s_mov_b32 s28, s100"); A("s_not_b32 s29, s100")
        A(f"s_atomic_umax s28, s[{P(10)[0]}:{P(10)[1]}], 64")
        A(f"s_atomic_umax s29, s[{P(10)[0]}:{P(10)[1]}], 68")
        A("L_nostag:")
    for f in first: mksrd(*f, part=1)
    A(f"s_cmp_eq_u32 {sW}, {99 if 'noclear' in dbg else 0}")
    A(f"buffer_load_dword {vXp}, {vD4}, {srd('X')}, 0 offen")
    A("s_cbranch_scc1 L_clear")
    A("L_noclear:")
    for k in range(3):
        if k == 2:
            A(f"s_cmp_lt_u32 {sW}, 4"); A("s_cbranch_scc0 L_wq_done")
        A(f"s_add_u32 m0, {sT2}, {L_WQ + k*8192}")
        if k: A(f"s_add_u32 {sT1}, {sT1}, {8*65536}")
        A(f"buffer_load_dwordx4 v18, {srd('WQ')}, {sT1} offen {nt} lds")
    A("L_wq_done:")
    def batch1():
        setprio(0)
        kload(0); vload(pre, pre + 4)
    A(f"s_cmp_eq_u32 {sW}, 0")
    A("s_cbranch_scc1 L_nob1")
    batch1()
    A("s_branch L_nob1")
    A("L_clear:")
    if pol < 0:
        A(f"s_and_b32 {sT0}, s2, 63")
        A(f"s_lshl_b32 {sT0}, {sT0}, 7")
        A(f"s_lshr_b32 {sT3}, s2, 6")
        A(f"s_lshl_b32 {sT3}, {sT3}, 14")
        A(f"s_add_u32 {sT0}, {sT0}, {sT3}")
        A(f"s_and_b32 s31, {sJ}, 1")
        A(f"s_lshl_b32 {sT3}, s31, 13")
        A(f"s_add_u32 {sT0}, {sT0}, {sT3}")
        A(f"s_add_u32 {sT0}, {sT0}, {PRB}")
        A(f"s_xor_b32 {sT3}, {sT0}, 8192")
        A(f"s_load_dword s30, s[{P(11)[0]}:{P(11)[1]}], {sT0} {rfl}")
        A(f"s_load_dwordx2 s[28:29], s[{P(11)[0]}:{P(11)[1]}], {sT3} {rfl}")
        if racepos == 0:
            lgk(2)
            A("s_getreg_b32 s32, hwreg(HW_REG_IB_STS, 8, 4)")
    for r in range(24, 28): A(f"v_mov_b32 v{r}, -1")
    A(f"s_lshr_b32 {sT3}, s2, 7")
    A(f"s_mul_i32 {sT3}, {sT3}, {LSTRIDE}")
    A(f"s_and_b32 {sM}, s2, 127")
    A(f"s_lshl_b32 {sT0}, {sM}, 10")
    A(f"s_add_u32 {sT0}, {sT0}, {sT3}")
    A(f"buffer_store_dwordx4 v[24:27], {vL16}, {srd('WS')}, {sT0} offen sc1")
    A(f"s_lshl_b32 {sT0}, {sM}, 7")
    A(f"s_add_u32 {sT0}, {sT0}, {sT3}")
    A(f"s_add_u32 {sT0}, {sT0}, {XB}")
    A(f"v_and_b32 v21, 0x7c, {vD4}")
    A(f"buffer_store_dword v24, v21, {srd('WS')}, {sT0} offen sc1")
    qpub_off("v21", "v22", True)
    qpub_cu(sT0, sT3)
    A(f"s_add_u32 {sT0}, {sT0}, {QB0}")
    A(f"buffer_store_dword v24, v21, {srd('WS')}, {sT0} offen sc1")
    A(f"s_add_u32 {sT0}, {sT0}, {QB1 - QB0}")
    A(f"buffer_store_dword v24, v21, {srd('WS')}, {sT0} offen sc1")
    if pol < 0 and racepos == 1:
        lgk(2)
        A("s_getreg_b32 s32, hwreg(HW_REG_IB_STS, 8, 4)")
    A("s_branch L_noclear")
    A("L_nob1:")
    mksrd("WO", 4, 4096*640*2); mksrd("W2", 8, 1728*640*2); mksrd("OUT", 9, 1280)
    mksrd("WP", 6, 640*1728*2)
    A(f"s_mov_b32 {sTO}, 0x80000")
    A(f"s_mov_b32 {sL}, 0")
    A(f"s_mov_b32 {sLay}, 0")
    A(f"s_mov_b32 {sFast}, 0")
    A(f"s_mov_b32 {sMode}, 0")
    A(f"s_mov_b32 {sPL}, 0x05040100")
    A(f"s_mov_b32 {sPH}, 0x07060302")
    A(f"s_mov_b32 {sHI}, 0xffff0000")
    A(f"s_cmp_eq_u32 {sX}, 7")
    A(f"s_cselect_b32 {sNCH}, {4*16}, {12*16}")
    A(f"s_mov_b32 {sRole}, 2")
    A(f"s_mov_b32 {sR}, 31")
    A(f"v_and_b32 v20, 3, {vLane}")
    A(f"v_lshlrev_b32 {vQ64}, 6, v15")
    A(f"v_lshl_add_u32 {vQ64}, v20, 4, {vQ64}")
    A(f"v_and_b32 {vR0}, 8, {vLane}")
    A(f"v_bfe_u32 v23, {vLane}, 4, 1")
    A(f"v_lshl_add_u32 {vR0}, v23, 2, {vR0}")
    A(f"v_bfe_u32 v23, {vLane}, 2, 1")
    A(f"v_add_u32 {vR0}, {vR0}, v23")
    A(f"v_and_b32 v17, 1, {vLane}")
    A(f"v_mul_u32_u24 {vIdx}, 0xaaaa, v17")
    A(f"v_bfe_u32 v23, {vLane}, 1, 1")
    A(f"v_mul_u32_u24 v23, 0xaaaa, v23")
    A(f"v_lshl_add_u32 {vIdx}, v23, 16, {vIdx}")
    A(f"v_add_u32 {vIdx}, 0x44444444, {vIdx}")
    A(f"v_lshl_add_u32 {vML}, {vLane}, 3, 64")
    A(f"s_lshl_b32 {sT0}, {sW}, 3")
    A(f"v_writelane_b32 {vML}, {sT0}, 63")
    A(f"v_mov_b32 v45, {vD4}")
    A(f"v_lshlrev_b32 v46, 1, {vD4}")
    A(f"v_mov_b32 v16, 0")
    A(f"v_lshlrev_b32 v17, 2, v14")
    A(f"ds_write_b32 v17, v16 offset:{L_ZERO}")
    A(f"v_mov_b32 v19, 0x3f803f80")
    A(f"v_min_u32 v20, 1276, {vD4}")
    A(f"ds_write_b32 v20, v19 offset:{L_ONE}")
    A(f"v_mov_b32 v25, {OOB}")
    A(f"v_mov_b32 v26, {OOB}")
    A(f"v_mov_b32 v24, {OOB}")
    A(f"v_mov_b32 v27, {OOB}")
    A(f"v_mov_b32 v{L0+62}, {OOB}")
    A(f"s_cmp_eq_u32 {sW}, 0")
    A("s_cbranch_scc0 L_noarr")
    A("v_mov_b32 v29, -1")
    A(f"ds_write_b32 {vL16}, v29 offset:{L_Q}")
    A(f"ds_write_b32 v16, v29 offset:{L_FLAG+4}")
    vmc(3)
    A("L_noarr:")
    if 'nowaitA' not in dbg: vmc(8)
    T = 56; GD = 40; GA = 48
    def xwrite():
        A(f"ds_write_b32 v45, {vXp} offset:{L_XI}")
        A(f"v_lshlrev_b32 v{GD}, 16, {vXp}")
        A(f"v_and_b32 v{GD+1}, {sHI}, {vXp}")
        A(f"v_mul_f32 v{GD+3}, v{GD}, v{GD}")
        A(f"v_add_f32 v{GD+2}, v{GD}, v{GD+1}")
        A(f"v_fmac_f32 v{GD+3}, v{GD+1}, v{GD+1}")
        A(f"ds_write_b64 v46, {vr(GD+2,2)} offset:{L_ST}")
    stamp(1)
    A(f"s_cmp_lt_u32 {sW}, 5")
    A("s_cbranch_scc0 L_barA")
    xwrite()
    A(f"s_cmp_eq_u32 {sW}, 0")
    A("s_cbranch_scc0 L_barA")
    A(f"s_getreg_b32 {sT0}, hwreg(HW_REG_XCC_ID, 0, 4)")
    A(f"s_mul_i32 s27, {sT0}, {sT0}")
    A(f"s_lshl_b32 s27, s27, 16")
    A(f"s_or_b32 s27, s27, {sT0}")
    A(f"s_lshl_b32 s85, s27, 5")
    if pol < 0:
        A(f"s_lshr_b32 {sT0}, {sT0}, 2")
        A(f"s_lshr_b32 s26, s32, 1")
        A(f"s_xnor_b32 s26, s26, s31")
        A(f"s_xor_b32 s26, s26, {sT0}")
        A(f"s_and_b32 s26, s26, 1")
        if stamps: A(f"v_writelane_b32 {vST}, s26, 61"); A(f"v_writelane_b32 {vST}, s32, 60")
        A(f"s_lshl_b32 s26, s26, 16")
        A(f"s_or_b32 s26, s26, 1")
    else:
        A(f"s_mov_b32 s26, {1 + (pol << 16)}")
    A(f"s_and_b32 {sT0}, {sX}, 4")
    A(f"s_mul_i32 {sT0}, {sT0}, 24")
    A(f"s_lshl_b32 {sT3}, {sX}, 3")
    A(f"s_add_u32 {sT0}, {sT0}, {sT3}")
    lgk(0)
    A(f"s_atomic_add_x2 s[26:27], s[{P(10)[0]}:{P(10)[1]}], {sT0}")
    batch1()
    vmc(8)
    A("s_branch L_barA2")
    A("L_barA:")
    lgk(0)
    A("L_barA2:")
    A(f"s_cmp_ge_u32 {sW}, 4")
    A("s_barrier")
    A("s_cbranch_scc1 L_q_prep0")
    def zeroO():
        for e in range(8):
            A(f"v_mov_b32 v{L0+4*e}, 0"); A(f"v_mov_b32 v{L0+4*e+2}, 0")
    def zeroS():
        for Tt in range(4):
            for r in (0, 1, 6, 7): A(f"v_mov_b32 v{S0+8*Tt+r}, 0")
    qload = f"buffer_load_dwordx4 {vr(vA,4)}, {vL16}, {srd('WS')}, {sA1} offen sc1"
    A("L_stream:")
    A(f"s_lshl_b32 {sA1}, {sHead}, 10")
    A(f"s_add_u32 {sA1}, {sA1}, {QB0}")
    kload(1); kload(2); kload(3)
    def goload(fl):
        A(f"s_load_dwordx8 s[28:35], s[{P(10)[0]}:{P(10)[1]}], 0 {fl}")
        A(f"s_load_dwordx8 s[36:43], s[{P(10)[0]}:{P(10)[1]}], 128 {fl}")
    vload(pre + 4, 8); vload(8, gopos)
    if twarm & 2:
        A(f"s_lshl_b32 {sT1}, {sJ}, 3")
        A(f"s_or_b32 {sT1}, {sT1}, {sW}")
        A(f"s_cmp_eq_u32 {sT1}, 2")
        A("s_cbranch_scc0 L_notw")
        A(f"s_mul_i32 {sT1}, {sX}, {512*1280}")
        A(f"s_add_u32 {sT2}, {sT1}, {512*1280 - 4}")
        A(f"s_buffer_load_dword s28, {srd('WO')}, {sT1}"); A(f"s_buffer_load_dword s28, {srd('WO')}, {sT2}")
        A(f"s_mov_b32 {sT1}, {640*3456 - 4}")
        A(f"s_buffer_load_dword s28, {srd('W2')}, 0"); A(f"s_buffer_load_dword s28, {srd('W2')}, {sT1}")
        for p_ in (6, 7):
            A(f"s_load_dword s28, s[{P(p_)[0]}:{P(p_)[1]}], 0"); A(f"s_load_dword s28, s[{P(p_)[0]}:{P(p_)[1]}], {sT1}")
        A("L_notw:")
    A(f"s_cmp_eq_u32 {sW}, 0")
    A("s_cbranch_scc0 L_nogo")
    goload("")
    A("L_nogo:")
    vload(gopos, 16)
    A(f"v_lshlrev_b32 {v8L}, 3, {vLane}")
    stamp(7)
    A(f"v_mov_b32 v29, 0")
    A(f"s_cmp_lt_u32 {sW}, 4")
    A("s_cbranch_scc0 L_barW")
    A(f"s_cmp_eq_u32 {sW}, {99 if 'noq' in dbg else 0}")
    A("s_cbranch_scc0 L_nostage")
    A("s_branch L_go_chk")
    A("L_go:")
    goload("glc")
    A("L_go_chk:")
    lgk(0)
    A(f"s_lshl_b32 {sT0}, {sX}, 1")
    A(f"s_mov_b32 m0, {sT0}")
    A("s_add_u32 s26, s28, s30")
    A("s_movrels_b32 s44, s29")
    for i in range(2, 8): A(f"s_add_u32 s26, s26, s{28+2*i}")
    A("s_bitcmp1_b32 s26, 8")
    A("s_cbranch_scc1 L_go_ok")
    A(f"s_sub_u32 {sTO}, {sTO}, 1")
    A("s_sleep 32")
    A("s_cbranch_scc0 L_go")
    A("s_branch L_end")
    A("L_go_ok:")
    if stamps: A(f"s_sub_u32 {sT0}, 0x80000, {sTO}"); A(f"v_writelane_b32 {vST}, {sT0}, 57")
    stamp(19)
    A("s_cmp_eq_u32 s44, s85")
    A(f"s_cselect_b32 {sT0}, {0 if force_slow else 1}, 0")
    A(f"s_cmp_gt_u32 s26, {128 << 16}")
    A("s_cselect_b32 s26, 2, 0")
    A(f"s_or_b32 {sT0}, {sT0}, s26")
    A(f"v_mov_b32 v15, {sT0}")
    A(f"ds_write_b32 v29, v15 offset:{L_FLAG}")
    A("L_q0:")
    A(qload)
    vmc(0)
    A(f"v_max3_u32 v14, v{vA}, v{vA+1}, v{vA+2}")
    A(f"v_max_u32 v14, v14, v{vA+3}")
    A("v_cmp_eq_u32 vcc, -1, v14")
    retry("L_q0", 16)
    A(f"ds_write_b128 {vL16}, {vr(vA,4)} offset:{L_Q}")
    A("s_branch L_nostage")
    A("L_barW:")
    A("s_barrier")
    A("L_nostage:")
    for l in [f"s_lshl_b32 {sT0}, {sW}, 9", f"v_lshl_add_u32 {vOPw}, {vLane}, 5, {sT0}", f"v_and_b32 {vMLr}, 56, {v8L}",
              f"s_lshl_b32 {sO1}, {sHead}, 11", f"s_lshl_b32 {sT0}, {sC}, 5", f"s_add_u32 {sO1}, {sO1}, {sT0}",
              f"v_lshrrev_b32 v28, 3, {vLane}", f"v_lshrrev_b32 {vOpub}, 1, {vMLr}",
              f"v_lshl_add_u32 {vOpub}, v28, 8, {vOpub}", f"v_and_b32 v28, 6, v28",
              f"s_lshl_b32 {sO2}, {sHead}, 5", f"s_lshl_b32 {sT0}, {sC}, 2", f"s_add_u32 {sO2}, {sO2}, {sT0}", f"s_add_u32 {sO2}, {sO2}, {AB}",
              f"v_add_lshl_u32 {vAoff}, v28, {vLane}, 2", f"v_lshlrev_b32 v28, 30, {vLane}",
              f"v_and_b32 {vAoff}, 28, {vAoff}", f"v_and_b32 v28, 0x40000000, v28", f"v_lshl_add_u32 {vYoff}, {vLane}, 1, v28",
              f"s_lshl_b32 {sP1}, {sX}, 13", f"s_lshl_b32 {sT0}, {sW}, 10", f"s_add_u32 {sP1}, {sP1}, {sT0}",
              f"s_lshl_b32 {sP2}, {sX}, 7", f"s_lshr_b32 {sT0}, {sW}, 1", f"s_lshl_b32 {sT0}, {sT0}, 5",
              f"s_add_u32 {sP2}, {sP2}, {sT0}", f"s_add_u32 {sP2}, {sP2}, {AB}",
              ]:
        A(l)
    zeroS()
    vmc(12 - pre)
    A("L_ql:")
    A(f"ds_read_b128 {vr(vA,4)}, {vL16} offset:{L_Q}")
    A(f"ds_read_b32 v15, v29 offset:{L_FLAG}")
    lgk(0)
    A(f"v_cmp_eq_u32 vcc, -1, v{vA}")
    if 'noq' not in dbg: retry("L_ql", 4)
    A(f"v_readfirstlane_b32 {sFast}, v15")
    A(f"s_getreg_b32 {sNear}, hwreg(HW_REG_XCC_ID, 2, 1)")
    A(f"s_lshr_b32 {sT0}, {sFast}, 1")
    A(f"s_xor_b32 {sNear}, {sNear}, {sT0}")
    A(f"s_lshl_b32 {sNear}, {sNear}, 13")
    A(f"s_and_b32 {sFast}, {sFast}, 1")
    A("s_branch L_qpoll_ok")

    A("L_g:")
    A(f"s_mul_i32 {sM}, {sX}, 1280")
    A(f"s_add_u32 {sM}, {sM}, {sLay}")
    A(f"s_add_u32 {sM}, {sM}, {XB}")
    A(f"s_cmp_eq_u32 {sMode}, 0")
    A(f"s_cselect_b32 {sT0}, 6, 7")
    A(f"s_cselect_b32 {sT1}, 63, 127")
    A(f"s_cselect_b32 {sT2}, {(2560 - LSTRIDE) & 0xffffffff}, 0")
    A(f"s_cselect_b32 {sT3}, 0, 1280")
    A(f"v_lshrrev_b32 v53, {sT0}, {vD4}")
    A(f"v_and_b32 v52, {sT1}, {vD4}")
    A(f"v_lshl_add_u32 v53, v53, 7, v52")
    A(f"s_add_u32 s28, {sT2}, {sLay}")
    A(f"s_add_u32 s28, s28, {YB}")
    A(f"s_add_u32 s28, s28, {sNear}")
    A(f"s_sub_u32 {sT2}, 2560, {sT3}")
    A(f"s_add_u32 s29, s28, {sT2}")
    for p in range(2, 8): A(f"s_add_u32 s{28+p}, s{26+p}, 16384")
    A(f"v_add_u32 v45, {sT3}, {vD4}")
    A(f"v_lshlrev_b32 v46, 1, v45")
    A(f"v_lshrrev_b32 v52, 1, {vLane}")
    A(f"v_xor_b32 v52, v52, {vLane}")
    A(f"v_and_b32 v52, 8, v52")
    A(f"v_and_b32 v54, 6, {vLane}")
    A(f"v_or_b32 v52, v52, v54")
    A("v_mov_b32 v55, 0x3f803f80")
    A("v_cmp_eq_u32 vcc, 0, v52")
    A(f"v_and_b32 v54, 1, {vLane}")
    A(f"v_mul_u32_u24 v54, 0x5555, v54")
    A(f"v_cndmask_b32 v{GA}, 0, v55, vcc")
    A(f"v_cndmask_b32 v{GA+1}, 0, v55, vcc")
    A("v_cmp_eq_u32 vcc, 4, v52")
    A(f"v_add_u32 v54, 0x8888, v54")
    A(f"v_cndmask_b32 v{GA+2}, 0, v55, vcc")
    A(f"v_cndmask_b32 v{GA+3}, 0, v55, vcc")
    A(f"s_cmp_eq_u32 {sMode}, 0")
    A("s_cbranch_scc0 L_g_x")
    A(f"s_sub_u32 {sM}, {sM}, {LSTRIDE}")
    poll("L_xpoll", [f"buffer_load_dword {vXp}, {vD4}, {srd('WS')}, {sM} offen sc1"], [vXp], sl_x, depth=pdx)
    stamp(4)
    if d_f: A(f"s_sleep {d_f}")
    if d_z > d_f:
        A(f"s_cmp_eq_u32 {sL}, 2"); A("s_cbranch_scc1 L_g_x"); A(f"s_sleep {d_z - d_f}")
    A("L_g_x:")
    yl = [f"buffer_load_dword v{T+p}, v53, {srd('WS')}, s{28+p} offen sc1" for p in range(8)]
    for l in yl: A(l)
    A(f"v_lshlrev_b32 v{GD}, 16, {vXp}")
    A(f"v_and_b32 v{GD+1}, {sHI}, {vXp}")
    A(f"s_cmp_eq_u32 {sL}, 0")
    A("s_cbranch_scc1 L_hook")
    A("L_ychk:")
    vmc(0)
    A("L_ychk2:")
    missing([f"v{T+p}" for p in range(8)])
    A("s_cbranch_vccnz L_yretry")
    t = ["L_yretry:", f"s_sub_u32 {sTO}, {sTO}, 1", "s_cbranch_scc1 L_end"]
    if sl_y: t.append(f"s_sleep {sl_y}")
    mk_ = [f"s[{r}:{r+1}]" for r in (26, 42, 44, 52, 54, 96, 98)] + ["vcc"]
    for p in range(8): t.append(f"v_cmp_eq_u32 {mk_[p]}, -1, v{T+p}")
    for p in range(8):
        t += [f"s_mov_b64 exec, {mk_[p]}", yl[p]]
    t.append("s_mov_b64 exec, -1")
    if freerun:
        if freerun > 1: t.append(f"s_waitcnt vmcnt({8*(freerun-1)})")
        t.append("s_branch L_ychk2")
    else:
        t.append("s_branch L_ychk")
    tails.append(t)
    if stamps:
        A(f"s_add_u32 {sSI}, {sSI}, {sMode}"); stamp(2); A(f"s_sub_u32 {sSI}, {sSI}, {sMode}")
    A(f"{SMF} {vr(GD,4)}, {vr(GA,4)}, {vr(T,8)}, v54")
    A(f"s_cmp_eq_u32 {sL}, 2")
    A(f"v_cvt_pk_bf16_f32 {vXp}, v{GD}, v{GD+1}")
    A("s_cbranch_scc1 L_final")
    xwrite()
    A(f"s_cmp_eq_u32 {sMode}, 1")
    A("s_cbranch_scc1 L_up_m")

    QW = L0 + 32; QD = L0 + 56; QC = L0 + 60; XA = 44; vQs = f"v{L0+61}"; vQp = f"v{L0+62}"
    def q_prep():
        A(f"s_sub_u32 {sV_}, {sW}, 4")
        tr128("v14", 16)
        A(f"s_lshl_b32 {sT0}, {sV_}, 5")
        A(f"v_xor_b32 v14, {sT0}, v14")
        for t in range(3):
            for rp in range(4):
                hb, rho = rp >> 1, rp & 1
                if t == 2 and hb: continue
                A(f"ds_read_b64_tr_b16 {vr(QW+8*t+2*rp,2)}, v14 offset:{L_WQ + (64*t+32*hb+2*rho)*128}")
        for r in range(4):
            A(f"v_mov_b32 v{QW+20+r}, 0"); A(f"v_mov_b32 v{QD+r}, 0")
        A(f"v_and_b32 v16, 48, {vLane}")
        A(f"v_and_b32 v15, 1, {vLane}")
        A(f"v_lshlrev_b32 v16, 1, v16")
        A(f"v_lshl_add_u32 v16, v15, 4, v16")
        A(f"s_lshr_b32 {sT0}, {sC}, 1")
        A(f"s_mul_i32 {sT0}, {sT0}, 320")
        A(f"v_add_u32 v16, {sT0}, v16")
        A(f"v_add_u32 v17, 256, v16")
        A(f"v_mov_b32 v15, {L_ZERO - L_XI}")
        A(f"v_cmp_gt_u32 vcc, 32, {vLane}")
        A(f"v_lshlrev_b32 {vQs}, 3, {vLane}")
        A("v_cndmask_b32 v17, v15, v17, vcc")
        A(f"v_and_b32 v15, 12, {vLane}")
        A("v_cmp_eq_u32 vcc, 4, v15")
        A(f"v_mov_b32 v15, {L_ONE - L_XI}")
        A("v_cndmask_b32 v16, v16, v15, vcc")
        A("v_cndmask_b32 v17, v17, v15, vcc")
        qpub_off(vQp, "v15", False)
        A(f"v_and_b32 v15, 0x31, {vLane}")
        A("v_cmp_eq_u32 vcc, 0, v15")
        A(f"v_mov_b32 v15, {OOB}")
        qpub_cu(sA2, sT0)
        A(f"v_cndmask_b32 {vQp}, v15, {vQp}, vcc")
        A(f"s_lshl_b32 {sT0}, {sV_}, 8"); A(f"s_add_u32 {sA2}, {sA2}, {sT0}")
        setprio(3)
    A(f"s_cmp_ge_u32 {sW}, 4")
    A("s_cbranch_scc0 L_att1")
    A("L_q_bar:")
    lgk(0)
    A("s_barrier")
    A("L_q_go:")
    stamp(5)
    stat_reads(vQs, L_ST)
    A(f"ds_read_b128 {vr(XA,4)}, v16 offset:{L_XI}")
    A(f"ds_read_b128 {vr(XA+4,4)}, v16 offset:{L_XI + 128}")
    A(f"ds_read_b128 {vr(XA+8,4)}, v17 offset:{L_XI}")
    stats_and_mfma(lambda i: A(f"{SMF} {vr(QD,4)}, {vr(XA+4*i,4)}, {vr(QW+8*i,8)}, {vIdx}"), 3,
                   [f"v_add_f32 v{QC}, v{QD}, v{QD+1}", f"v_add_f32 v{QD}, v{QD}, v{QD+1}", "", f"v_permlane16_swap_b32 v{QD}, v{QC}"])
    A(f"v_mul_f32 v33, {LOG2E/math.sqrt(128)!r}, v33")
    A(f"v_fma_f32 v{QD}, -{sT0}, v{QC}, v{QD}")
    A(f"v_readlane_b32 {sT1}, v33, 63")
    A(f"v_mov_b32_dpp v34, v{QD} quad_perm:[1,1,3,3] {DPPF}")
    A(f"v_mul_f32 v{QD}, {sT1}, v{QD}")
    A(f"v_mul_f32 v34, {sT1}, v34")
    A(f"v_cvt_pk_bf16_f32 v35, v{QD}, v34")
    A("v_min_u32 v35, -2, v35")
    store_intra("L_q_st", [f"buffer_store_dword v35, {vQp}, {srd('WS')}, {sA2} offen"], scc_ready=True)
    stamp(6)
    setprio(0)

    WW = L0 + 32; D0 = L0
    def wo_tr():
        tr128("v14", 16)
        A(f"s_lshl_b32 {sT0}, {sW}, 13")
        A(f"s_add_u32 {sT0}, {sT0}, {L_R1}")
        A(f"v_add_u32 v14, {sT0}, v14")
        for cb in range(1, 4): A(f"v_xor_b32 v{14+cb}, {32*cb}, v14")
        return [f"ds_read_b64_tr_b16 {vr(WW+8*cb+2*rp,2)}, v{14+cb} offset:{(32*(rp>>1)+2*(rp&1))*128}"
                for cb in (0, 2, 1, 3) for rp in range(4)]
    A(f"s_cmp_eq_u32 {sL}, 0")
    A("s_cbranch_scc1 L_stream")
    def att_prep(tag):
        zeroS()
        A(f"s_cmp_eq_u32 {sRole}, 0")
        A(f"s_cbranch_scc0 L_notr{tag}")
        for l in wo_tr(): A(l)
        A(f"L_notr{tag}:")
    A("s_barrier")
    A(qload)
    vmc(2)
    att_prep("b")
    A("s_branch L_qjoin")
    A("L_att1:")
    lgk(0)
    A("s_barrier")
    vmc(0)
    att_prep("a")
    A("s_barrier")
    if d_q: A(f"s_sleep {d_q}")
    A(qload)
    if pdq > 1 and gapq: A(f"s_sleep {gapq}")
    A("L_qjoin:")
    stamp(7)
    poll("L_qpoll", [qload], [f"v{vA+i}" for i in range(4)], sl_q, first_issued=True, depth=pdq)
    stamp(8)
    def tsum(Tt):
        b = S0 + 8*Tt
        if pk: return [f"v_pk_add_f32 v[{b}:{b+1}], v[{b}:{b+1}], v[{b+6}:{b+7}]", f"v_add_f32 v{b}, v{b}, v{b+1}"]
        return [f"v_add_f32 v{b}, v{b}, v{b+1}", f"v_add_f32 v{b+6}, v{b+6}, v{b+7}", f"v_add_f32 v{b}, v{b}, v{b+6}"]
    shadow = [[]]*8
    for idx, Tt in enumerate([0, 2, 1, 3]):
        for kp in range(2):
            A(f"{SMF} {vr(S0+8*Tt+4*kp,4)}, {vr(vA,4)}, {vr(K0+16*Tt+8*kp,8)}, {vIdx}")
            for l in shadow[2*idx+kp]: A(l)
    for l in tsum(0) + tsum(2) + tsum(1): A(l)
    A(f"v_permlane32_swap_b32 v{S0}, v{S0+16}")
    for l in tsum(3): A(l)
    A(f"v_add_f32 v{S0}, v{S0}, v{S0+16}")
    A(f"v_permlane32_swap_b32 v{S0+8}, v{S0+24}")
    A(f"v_add_f32 v{S0+8}, v{S0+8}, v{S0+24}")
    A(f"v_permlane16_swap_b32 v{S0}, v{S0+8}")
    A(f"v_add_f32 v14, v{S0}, v{S0+8}")
    stamp(31, True)
    A(f"v_max_f32_dpp v16, v14, v14 {steps[0]}")
    for st in steps[1:]: A(f"v_max_f32_dpp v16, v16, v16 {st}")
    A(f"v_readlane_b32 {sM}, v16, 63")
    A(f"s_cmp_eq_u32 {sL}, 0")
    A(f"v_subrev_f32 v14, {sM}, v14")
    A("v_exp_f32 v14, v14")
    A(f"v_mov_b32_dpp v15, v14 quad_perm:[1,1,3,3] {DPPF}")
    vP = 20
    A(f"v_cvt_pk_bf16_f32 v{vP}, v14, v15")
    A(f"v_add_f32_dpp v17, v14, v14 {steps[0]}")
    for q in range(1, 4): A(f"v_mov_b32_dpp v{vP+q}, v{vP} row_ror:{16-4*q} {DPPF}")
    A("s_cbranch_scc1 L_vland")
    A("L_pv:")
    stamp(32, True)
    A(f"s_cmp_lt_u32 {sW}, 4")
    def pv(e): A(f"{SMF} {vr(L0+4*e,4)}, {vr(vP,4)}, {vr(V0+8*e,8)}, {vIdx} abid:1")
    def oadd(e): A(f"v_add_f32 v{S0+e}, v{L0+4*e}, v{L0+4*e+2}")
    def owr(h):
        if h == 0: A("s_mov_b64 exec, 0xffff")
        A(f"ds_write_b128 {vOPw}, {vr(S0+4*h,4)} offset:{L_OP+16*h}")
        if h == 1: A("s_mov_b64 exec, -1")
    for e in range(5):
        pv(e); A(f"v_add_f32_dpp v17, v17, v17 {steps[e+1]}")
    A(f"ds_write_b64 {vML}, v[16:17] offset:{L_ML}")
    pv(5); oadd(0); oadd(1)
    pv(6); oadd(2)
    pv(7); oadd(3)
    A("s_cbranch_scc1 L_early")
    lgk(0)
    stamp(33, True)
    A("s_barrier")
    stamp(34, True)
    owr(0)
    for e in range(4, 8): oadd(e)
    owr(1)
    A("L_noread:")
    A(f"s_cmp_eq_u32 {sL}, 0")
    lgk(0)
    stamp(10)
    if stamps: A(f"s_cmp_eq_u32 {sL}, 0")
    A("s_barrier")
    if 'stop' in dbg: A("s_branch L_end")
    A("s_cbranch_scc1 L_rank")
    A("s_branch L_roles")
    A("L_early:")
    owr(0)
    A("s_nop 1")
    for e in range(4, 8): oadd(e)
    owr(1)
    A(f"s_cmp_eq_u32 {sL}, 0")
    A("s_cbranch_scc1 L_pfw")
    A("L_pfw_done:")
    A(f"s_cmp_lt_u32 {sW}, 2")
    lgk(0)
    A("s_barrier")
    A("s_cbranch_scc0 L_noread")
    A(f"ds_read_b64 v[16:17], {vMLr} offset:{L_ML}")
    A(f"s_cmp_eq_u32 {sW}, 1")
    lgk(0)
    A(f"v_max_f32_dpp v14, v16, v16 {steps[0]}")
    for st in steps[1:3]: A(f"v_max_f32_dpp v14, v14, v14 {st}")
    A("v_sub_f32 v16, v16, v14")
    A("v_exp_f32 v16, v16")
    A("s_cbranch_scc1 L_awave")
    stamp(10)
    A("s_barrier")
    mark("att1", 0)
    stamp(18, True)
    if 'stop' in dbg: A("s_branch L_end")
    if rd2:
        for w in range(4): A(f"ds_read2st64_b64 {vr(40+4*w,4)}, {v8L} offset0:{L_OP//512 + 2*w} offset1:{L_OP//512 + 2*w + 1}")
    else:
        for w in range(8): A(f"ds_read_b64 {vr(40+2*w,2)}, {v8L} offset:{L_OP + 512*w}")
    u_ = 1 if rd2 else 2
    A("v_mul_f32 v17, v16, v17")
    A(f"s_cmp_eq_u32 {sFast}, 0")
    for st in steps[:3]: A(f"v_add_f32_dpp v17, v17, v17 {st}")
    A("v_rcp_f32 v15, v17")
    lgk(3*u_)
    A(f"v_mul_f32_dpp v20, v16, v40 row_newbcast:0 {DPPF}")
    A(f"v_mul_f32_dpp v21, v16, v41 row_newbcast:0 {DPPF}")
    A(f"v_mul_f32_dpp v22, v16, v42 row_newbcast:1 {DPPF}")
    A(f"v_mul_f32_dpp v23, v16, v43 row_newbcast:1 {DPPF}")
    for w in range(2, 8):
        if w in (2, 4, 6): lgk((3 - w//2)*u_)
        A(f"v_fmac_f32_dpp v{20+2*(w&1)}, v16, v{40+2*w} row_newbcast:{w} {DPPF}")
        A(f"v_fmac_f32_dpp v{21+2*(w&1)}, v16, v{41+2*w} row_newbcast:{w} {DPPF}")
    A("v_pk_add_f32 v[20:21], v[20:21], v[22:23]")
    A("v_pk_mul_f32 v[20:21], v[20:21], v[14:15] op_sel:[0,1] op_sel_hi:[1,1]")
    A("v_cvt_pk_bf16_f32 v20, v20, v21")
    A("v_min_u32 v20, -2, v20")
    store_intra("L_o_st", [f"buffer_store_dword v20, {vOpub}, {srd('WS')}, {sO1} offen"], scc_ready=True)
    stamp(11)
    A(f"s_cmp_eq_u32 {sL}, 0")
    A("s_cbranch_scc1 L_pf2")
    A("L_roles:")
    A(f"s_cmp_eq_u32 {sRole}, 0")
    A("s_cbranch_scc0 L_notwo")

    aload = f"buffer_load_dword v14, {vAoff}, {srd('WS')}, {sP2} offen sc1"
    oload = f"buffer_load_dwordx4 {vr(vA,4)}, {vL16}, {srd('WS')}, {sP1} offen sc1"
    A(f"s_cmp_eq_u32 {sL}, 0")
    A("s_cbranch_scc1 L_wo_dma")
    A("L_wo_have:")
    A(aload)
    if not oseq: A(oload)
    for r in range(16): A(f"v_mov_b32 v{D0+r}, 0")
    stamp(12)
    if oseq:
        poll("L_apoll", [aload], ["v14"], sl_o, first_issued=True, depth=oseq)
        A(oload)
    else:
        poll("L_apoll", [aload, oload], ["v14"], sl_o, first_issued=True, depth=pdo)
        if pdo == 1: A(oload)
    stamp(35, True)
    A(f"v_max_f32_dpp v16, v14, v14 {steps[0]}")
    for st in steps[1:3]: A(f"v_max_f32_dpp v16, v16, v16 {st}")
    A("v_sub_f32 v15, v14, v16")
    A("v_exp_f32 v15, v15")
    A(f"v_add_f32_dpp v16, v15, v15 {steps[0]}")
    for st in steps[1:3]: A(f"v_add_f32_dpp v16, v16, v16 {st}")
    A("v_rcp_f32 v16, v16")
    lgk(0)
    if not oseq: missing([f"v{vA+i}" for i in range(4)])
    A("v_mul_f32 v15, v15, v16")
    if not oseq: A("s_cbranch_vccz L_opoll_ok")
    poll("L_opoll", [oload], [f"v{vA+i}" for i in range(4)], sl_o, first_issued=True, depth=pdo)
    stamp(13)
    cbo = [0, 2, 1, 3]
    for cb in cbo: A(f"{SMF} {vr(D0+4*cb,4)}, {vr(vA,4)}, {vr(WW+8*cb,8)}, {vIdx}")
    A(f"v_mov_b32_dpp v16, v15 row_newbcast:0 {DPPF}")
    A(f"v_mov_b32_dpp v17, v15 row_newbcast:1 {DPPF}")
    def wsum(cb):
        d = D0 + 4*cb
        if pk:
            A(f"v_pk_mul_f32 v[{d}:{d+1}], v[{d}:{d+1}], v[16:17] op_sel_hi:[1,0]")
            A(f"v_pk_fma_f32 v[{d}:{d+1}], v[{d+2}:{d+3}], v[16:17], v[{d}:{d+1}] op_sel:[0,1,0] op_sel_hi:[1,1,1]")
            A(f"v_add_f32 v{d}, v{d}, v{d+1}")
            return
        A(f"v_add_f32 v{d}, v{d}, v{d+1}")
        A(f"v_add_f32 v{d+2}, v{d+2}, v{d+3}")
        A(f"v_mul_f32 v{d}, v16, v{d}")
        A(f"v_fmac_f32 v{d}, v17, v{d+2}")
    wsum(0); wsum(2); wsum(1)
    A(f"v_permlane32_swap_b32 v{D0}, v{D0+8}")
    wsum(3)
    A(f"v_add_f32 v{D0}, v{D0}, v{D0+8}")
    A(f"v_permlane32_swap_b32 v{D0+4}, v{D0+12}")
    A(f"v_add_f32 v{D0+4}, v{D0+4}, v{D0+12}")
    A(f"v_permlane16_swap_b32 v{D0}, v{D0+4}")
    A(f"v_add_f32 v{D0}, v{D0}, v{D0+4}")
    A(f"ds_write_b32 {vD4}, v{D0} offset:{L_RED}")
    A(f"s_cmp_eq_u32 {sW}, 0")
    lgk(0)
    stamp(19, True)
    if stamps == 3: A(f"s_cmp_eq_u32 {sW}, 0")
    A("s_barrier")
    A("s_cbranch_scc0 L_wo_done")
    stamp(1, True)
    for w in range(4): A(f"ds_read2st64_b32 {vr(40+2*w,2)}, {vD4} offset0:{L_RED//256 + 2*w} offset1:{L_RED//256 + 2*w + 1}") if L_RED % 256 == 0 else None
    if L_RED % 256:
        for w in range(8): A(f"ds_read_b32 v{40+w}, {vD4} offset:{L_RED + 256*w}")
        lgk(4)
    else:
        lgk(2)
    A("v_pk_add_f32 v[40:41], v[40:41], v[42:43]")
    A(f"s_xor_b32 {sT3}, {sY}, 8192")
    lgk(0)
    A("v_pk_add_f32 v[44:45], v[44:45], v[46:47]")
    A("v_pk_add_f32 v[40:41], v[40:41], v[44:45]")
    A("v_add_f32 v40, v40, v41")
    packpair("v42", "v40", "v41")
    A(f"buffer_store_dword v42, {vYoff}, {srd('WS')}, {sY} offen sc1")
    if dual: A(f"buffer_store_dword v42, {vYoff}, {srd('WS')}, {sT3} offen sc1")
    stamp(14)
    A("L_wo_done:")
    A(f"s_cmp_eq_u32 {sL}, 0")
    A("s_cbranch_scc0 L_w2_have")
    dma128("v20", 1280, sW)
    A(f"s_mul_i32 {sT0}, {sX}, 224")
    A(f"s_lshl_b32 {sT1}, {sW}, 3")
    A(f"s_add_u32 {sT0}, {sT0}, {sT1}")
    A(f"s_mul_i32 {sT0}, {sT0}, 1280")
    A(f"s_lshl_b32 {sT1}, {sR}, 7")
    A(f"s_add_u32 {sT0}, {sT0}, {sT1}")
    A(f"s_lshl_b32 {sT3}, {sW}, 10")
    A("s_barrier")
    for k in range(4):
        if k == 3:
            A(f"s_cmp_lt_u32 {sW}, 4"); A("s_cbranch_scc0 L_w2_iss")
        A(f"s_add_u32 m0, {sT3}, {L_W2 + k*8192}")
        if k: A(f"s_add_u32 {sT0}, {sT0}, {64*1280}")
        A(f"buffer_load_dwordx4 v20, {srd('W2')}, {sT0} offen {nt} lds")
    A("L_w2_iss:")
    vmc(0)
    A("s_barrier")
    A("L_w2_have:")
    A(f"s_sub_u32 {sV_}, {sW}, 5")
    A(f"s_cmp_lt_u32 {sV_}, 2")
    A("s_cbranch_scc0 L_nextlayer")
    A1 = 48; W = L0; DD = 32
    tr128("v21", 0)
    A(f"s_lshl_b32 {sT0}, {sV_}, 6")
    A(f"v_xor_b32 v21, {sT0}, v21")
    A(f"v_add_u32 v21, {L_W2}, v21")
    A(f"v_and_b32 v20, 32, {vLane}")
    A(f"v_lshl_add_u32 v20, v20, 7, v21")
    A("v_xor_b32 v22, 32, v20")
    A("v_xor_b32 v23, 32, v21")
    A("s_sleep 4")
    for cb in range(2):
        for u in range(2):
            for kp in range(2):
                for rp in range(4):
                    hb, rho = rp >> 1, rp & 1
                    A(f"ds_read_b64_tr_b16 {vr(W+32*cb+16*u+8*kp+2*rp,2)}, v{20 + 2*cb + (1 if (u and hb) else 0)} offset:{(128*u+64*hb+16*kp+2*rho)*128}")
    for r in range(16): A(f"v_mov_b32 v{DD+r}, 0")
    A(f"v_mov_b32 v26, {OOB}")
    A(f"v_cmp_gt_u32 vcc, {sNCH}, {vQ64}")
    A(f"s_lshl_b32 {sA1}, {sX}, 9")
    A(f"s_add_u32 {sA1}, {sA1}, {sLay}")
    A(f"v_cndmask_b32 v25, v26, {vQ64}, vcc")
    A(f"s_add_u32 {sA1}, {sA1}, {HB}")
    A(f"v_cmp_gt_u32 vcc, 32, {vLane}")
    A(f"s_and_b32 {sT2}, {sX}, 1")
    A(f"s_mul_i32 {sT2}, {sT2}, 1280")
    A(f"v_cndmask_b32 v26, v26, {vYoff}, vcc")
    A(f"s_add_u32 {sT0}, {sR}, {sV_}"); A(f"s_lshl_b32 {sT0}, {sT0}, 7")
    A(f"s_add_u32 {sT2}, {sT2}, {sT0}")
    A(f"s_add_u32 {sT2}, {sT2}, {sY}")
    A(f"s_add_u32 {sT2}, {sT2}, 2560")
    A(f"s_xor_b32 {sT3}, {sT2}, 8192")
    setprio(3)
    lgk(0)
    stamp(15)
    poll("L_hpoll", [f"buffer_load_dwordx4 {vr(vA,4)}, {vQ64}, {srd('WS')}, {sA1} offen sc1",
                     f"buffer_load_dwordx4 {vr(A1,4)}, v25, {srd('WS')}, {sA1} offen offset:256 sc1"],
         [f"v{vA+i}" for i in range(4)] + [f"v{A1+i}" for i in range(4)], sl_h)
    stamp(16)
    for cb in range(2):
        for kp in range(2):
            for u in range(2):
                A(f"{SMF} {vr(DD+8*cb+4*kp,4)}, {vr(A1 if u else vA,4)}, {vr(W+32*cb+16*u+8*kp,8)}, {vIdx}")
    A(f"v_add_f32 v{DD}, v{DD}, v{DD+1}")
    A(f"v_add_f32 v{DD+6}, v{DD+6}, v{DD+7}")
    A(f"v_add_f32 v14, v{DD}, v{DD+6}")
    A(f"v_add_f32 v{DD+8}, v{DD+8}, v{DD+9}")
    A(f"v_add_f32 v{DD+14}, v{DD+14}, v{DD+15}")
    A(f"v_add_f32_dpp v14, v{DD+8}, v{DD+14} quad_perm:[0,1,2,3] row_mask:0x2 bank_mask:0xf")
    packpair("v22", "v14", "v15")
    A(f"buffer_store_dword v22, v26, {srd('WS')}, {sT2} offen sc1")
    if dual: A(f"buffer_store_dword v22, v26, {srd('WS')}, {sT3} offen sc1")
    stamp(17)
    vmc(1 + dual)
    A("s_branch L_nextlayer")

    A("L_awave:")
    A("s_barrier")
    if 'stop' in dbg: A("s_branch L_end")
    A("v_mul_f32 v17, v16, v17")
    A(f"s_cmp_eq_u32 {sFast}, 0")
    for st in steps[:3]: A(f"v_add_f32_dpp v17, v17, v17 {st}")
    A("v_log_f32 v17, v17")
    A("s_mov_b64 exec, 1")
    A("v_add_f32 v17, v17, v14")
    A("v_min_u32 v17, -2, v17")
    store_intra("L_a_st", [f"buffer_store_dword v17, off, {srd('WS')}, {sO2}"], scc_ready=True)
    A("s_mov_b64 exec, -1")
    A("s_branch L_roles")

    A("L_notwo:")
    A(f"s_cmp_eq_u32 {sRole}, 2")
    A("s_cbranch_scc1 L_nextlayer")
    UW = L0; UA = L0 + 40; UD = L0 + 60; UC = 43
    A(f"s_cmp_eq_u32 {sL}, 0")
    A("s_cbranch_scc0 L_w13_have")
    A(f"s_mul_i32 {sT0}, {sX}, {14*32}")
    A(f"s_lshl_b32 {sT1}, {sR}, 5")
    A(f"s_add_u32 {sT0}, {sT0}, {sT1}")
    A(f"s_sub_u32 {sT0}, {sT0}, 320")
    A(f"s_mul_i32 {sT1}, {sW}, {16*3456}")
    A(f"s_add_u32 {sT0}, {sT0}, {sT1}")
    A(f"v_lshrrev_b32 v21, 2, {vLane}")
    A(f"v_lshrrev_b32 v20, 4, {vLane}")
    A(f"v_and_b32 v20, 2, v20")
    A(f"v_xor_b32 v21, v21, v20")
    A("v_mul_u32_u24 v21, 3456, v21")
    A(f"v_xor_b32 v20, {vL16}, {vLane}")
    A(f"v_and_b32 v20, 16, v20")
    A(f"v_add3_u32 v21, {sT0}, v21, v20")
    A(f"v_and_b32 v20, 2, {vLane}")
    A("v_cmp_eq_u32 vcc, 0, v20")
    A(f"v_mov_b32 v22, s{P(7)[0]}"); A(f"v_mov_b32 v23, s{P(7)[1]}")
    A(f"v_mov_b32 v14, s{P(6)[0]}"); A(f"v_mov_b32 v15, s{P(6)[1]}")
    A("v_cndmask_b32 v22, v22, v14, vcc"); A("v_cndmask_b32 v23, v23, v15, vcc")
    A("v_add_co_u32 v22, vcc, v22, v21"); A("v_addc_co_u32 v23, vcc, 0, v23, vcc")
    A(f"s_lshl_b32 {sT2}, {sW}, 10")
    A("s_barrier")
    for k in range(5):
        if k:
            A(f"v_add_co_u32 v22, vcc, {8*16*3456}, v22"); A("v_addc_co_u32 v23, vcc, 0, v23, vcc")
        A(f"s_add_u32 m0, {sT2}, {L_R1 + k*8192}")
        A(f"global_load_lds_dwordx4 v[22:23], off {dfl}")
    A("s_branch L_w13_iss")
    A("L_w13_have:")
    A("s_barrier")
    stamp(12)
    A("L_w13_iss:")
    A(f"s_mov_b32 {sMode}, 1")
    A(f"s_cmp_ge_u32 {sW}, 4")
    A("s_cbranch_scc0 L_up_g")
    A(f"s_sub_u32 {sV_}, {sW}, 4")
    A(f"v_and_b32 v14, 32, {vLane}")
    A(f"v_and_b32 v15, 2, {vLane}")
    A(f"v_lshl_add_u32 v14, v15, 3, v14")
    A(f"v_add_u32 v14, v14, {vR0}")
    A(f"v_lshlrev_b32 v14, 6, v14")
    A(f"v_and_b32 v15, 1, {vLane}")
    A(f"v_lshl_add_u32 v14, v15, 5, v14")
    A(f"v_and_b32 v15, 8, {vLane}")
    A(f"v_lshl_add_u32 v14, v15, 4, v14")
    A(f"v_and_b32 v15, 16, {vLane}")
    A(f"v_add_u32 v14, v14, v15")
    A(f"s_lshl_b32 {sT0}, {sV_}, 3")
    A(f"v_xor_b32 v14, {sT0}, v14")
    A(f"v_add_u32 v14, {L_R1}, v14")
    A(f"v_xor_b32 v17, 128, v14")
    up_reads = [f"ds_read_b64_tr_b16 {vr(UW+8*u+2*rp,2)}, {'v17' if rp & 1 else 'v14'} offset:{(128*u+64*(rp>>1))*64}"
                for u in range(5) for rp in range(4)]
    for r in range(4):
        A(f"v_mov_b32 v{UD+r}, 0")
    A(f"v_and_b32 v15, 12, {vLane}")
    A("v_cmp_eq_u32 vcc, 4, v15")
    A(f"v_mov_b32 v15, {L_ONE - L_XI - 1280}")
    A(f"s_lshl_b32 {sA2}, {sX}, 9")
    A(f"v_cndmask_b32 v16, {vQ64}, v15, vcc")
    A(f"v_cmp_gt_u32 vcc, 4, {vLane}")
    A(f"v_mov_b32 v15, {OOB}")
    A(f"s_add_u32 {sA2}, {sA2}, {sT0}")
    A(f"v_cndmask_b32 v25, v15, {vYoff}, vcc")
    A(f"s_lshl_b32 {sT0}, {sR}, 5"); A(f"s_add_u32 {sA2}, {sA2}, {sT0}")
    A(f"s_add_u32 {sA2}, {sA2}, {HB - 320}")
    A(f"s_add_u32 {sA2}, {sA2}, {sLay}")
    setprio(3)
    A(f"s_cmp_eq_u32 {sL}, 0")
    A("s_cbranch_scc1 L_up0")
    for l in up_reads: A(l)
    A(f"s_cmp_eq_u32 {sW}, 4")
    A("s_cbranch_scc0 L_up_bar")
    if d_y > 4: A(f"s_sleep {d_y - 4}")
    A("s_branch L_g")
    A("L_up_g:")
    if d_y:
        A(f"s_cmp_eq_u32 {sL}, 0"); A("s_cbranch_scc1 L_g"); A(f"s_sleep {d_y}")
    A("s_branch L_g")
    A("L_up_m:")
    A(f"s_cmp_ge_u32 {sW}, 4")
    A("s_cbranch_scc0 L_up_nom")
    A("L_up_bar:")
    lgk(0)
    A("s_barrier")
    stamp(13)
    stat_reads(v8L, L_ST + 2560)
    for u in range(5): A(f"ds_read_b128 {vr(UA+4*u,4)}, v16 offset:{L_XI + 1280 + 256*u}")
    stats_and_mfma(lambda i: A(f"{SMF} {vr(UD,4)}, {vr(UA+4*i,4)}, {vr(UW+8*i,8)}, {vIdx}"), 5,
                   ["", "", "", f"v_add_f32 v{UD+2}, v{UD+2}, v{UD+3}", f"v_add_f32 v{UD}, v{UD}, v{UD+1}", "",
                    f"v_add_f32_dpp v{UC}, v{UD+2}, v{UD} row_shl:8 {DPPF}", f"v_add_f32_dpp v{UD}, v{UD+2}, v{UD} row_shl:8 {DPPF}",
                    f"v_readlane_b32 {sT1}, v33, 63", f"v_permlane16_swap_b32 v{UD}, v{UC}"])
    A(f"v_fma_f32 v{UD}, -{sT0}, v{UC}, v{UD}")
    A(f"v_mul_f32 v{UD}, {sT1}, v{UD}")
    A(f"v_mul_f32 v34, {-LOG2E!r}, v{UD}")
    A("v_exp_f32 v34, v34")
    A(f"v_mul_f32_dpp v{UD}, v{UD}, v{UD} row_shl:4 {DPPF}")
    A("v_add_f32 v34, 1.0, v34")
    A("v_rcp_f32 v34, v34")
    A(f"v_mul_f32 v{UD}, v{UD}, v34")
    packpair("v35", f"v{UD}", "v34")
    store_intra("L_h_st", [f"buffer_store_dword v35, v25, {srd('WS')}, {sA2} offen"], scc_ready=True)
    stamp(14)
    A("L_xpub:")
    A(f"s_cmp_eq_u32 {sR}, 10")
    A(f"s_cselect_b32 {sT0}, {sW}, 7")
    A(f"s_cmp_lt_u32 {sT0}, 5")
    A("s_cbranch_scc0 L_nextlayer")
    if xlate:
        A(f"s_add_u32 {sT0}, {sNCH}, 256")
        A(f"v_cmp_gt_u32 vcc, {sT0}, {v8L}")
        A(f"v_mov_b32 v23, {OOB}")
        A(f"s_lshl_b32 {sA1}, {sX}, 9")
        A(f"s_add_u32 {sA1}, {sA1}, {sLay}")
        A(f"v_cndmask_b32 v20, v23, {v8L}, vcc")
        A(f"s_add_u32 {sA1}, {sA1}, {HB}")
        poll("L_tpoll", [f"buffer_load_dwordx2 v[14:15], v20, {srd('WS')}, {sA1} offen sc1"], ["v14", "v15"], 0, depth=pdt)
        if pdt > 1: tdrain = True
    A(f"v_min_u32 v45, -2, {vXp}")
    store_intra("L_x_st", [f"buffer_store_dword v45, {vD4}, {srd('WS')}, {sM} offen"])
    if pdt > 1: vmc(1)

    A("L_nextlayer:")
    mark("h1", 0)
    setprio(0)
    A(f"s_add_u32 {sL}, {sL}, 1")
    A(f"s_add_u32 {sLay}, {sLay}, {LSTRIDE}")
    if stamps: A(f"s_add_u32 {sSI}, {sSI}, 20")
    A(f"s_mov_b32 {sMode}, 0")
    A(f"s_cmp_eq_u32 {sL}, 2")
    A("s_cbranch_scc1 L_last")
    for r in (sO1, sO2, sP1, sP2, sY): A(f"s_add_u32 {r}, {r}, {LSTRIDE}")
    A(f"s_lshl_b32 {sA1}, {sHead}, 10")
    A(f"s_add_u32 {sA1}, {sA1}, {QB1}")
    zeroO()
    if warm:
        A(f"s_cmp_eq_u32 {sW}, 7")
        A("s_cbranch_scc0 L_nowarm")
        warm_o(7)
        A(f"s_lshl_b32 {sT0}, {sHead}, 10")
        A(f"s_add_u32 {sT0}, {sT0}, {QB1}")
        A(f"buffer_load_dword {vDum}, {vL16}, {srd('WS')}, {sT0} offen sc1")
        A("L_nowarm:")
    A(f"s_cmp_ge_u32 {sW}, 4")
    A("s_cbranch_scc0 L_g")
    A("s_sleep 4")
    q_prep()
    A(f"s_add_u32 {sA2}, {sA2}, {QB1}")
    A(f"s_cmp_eq_u32 {sW}, 4")
    A("s_cbranch_scc1 L_g")
    A("s_branch L_q_bar")
    A("L_up_nom:")
    lgk(0)
    A("s_barrier")
    A("s_branch L_xpub")
    A("L_last:")
    A(f"s_add_u32 {sT0}, {sW}, 24")
    A(f"s_lshl_b32 {sT1}, {sX}, 8")
    A(f"s_or_b32 {sT1}, {sT1}, {sR}")
    A(f"s_cmp_eq_u32 {sT0}, {sT1}")
    A("s_cbranch_scc0 L_end")
    A(f"s_cmp_lt_u32 {sW}, 5")
    A("s_cbranch_scc0 L_end")
    if twarm & 1: A(f"buffer_load_dword {vDum}, {vD4}, {srd('OUT')}, 0 offen")
    A("s_branch L_g")

    A("L_final:")
    mark("end")
    A(f"buffer_store_dword {vXp}, {vD4}, {srd('OUT')}, 0 offen {ofl}")
    if stamps or amp: vmc(0)
    mark("end2")
    if amp:
        A(f"s_cmp_eq_u32 {sW}, 0"); A("s_cbranch_scc0 L_end")
        if amp.startswith("start,stag"):
            A(f"s_load_dwordx2 s[0:1], s[{P(10)[0]}:{P(10)[1]}], 64 glc"); lgk(0)
            if amp.endswith("stag"): A("s_not_b32 s100, s1")
            else: A("s_mov_b32 s0, s100"); A("s_not_b32 s100, s1")
        if amp == "votes":
            A(f"s_load_dwordx8 s[28:35], s[{P(10)[0]}:{P(10)[1]}], 0 glc"); A(f"s_load_dwordx8 s[36:43], s[{P(10)[0]}:{P(10)[1]}], 128 glc"); lgk(0)
            A("s_mov_b32 s0, 0"); A("s_mov_b32 s100, 0")
            for i in range(8): A(f"s_add_u32 s0, s0, s{28+2*i}")
            A("s_lshr_b32 s0, s0, 16")
        A("s_sub_u32 s30, s0, s100")
        A("s_min_u32 s30, s30, 5000")
        A(f"s_mul_i32 s30, s30, {ampx}")
        A("s_memrealtime s[28:29]"); A("s_waitcnt lgkmcnt(0)")
        A("L_amp:")
        A("s_memrealtime s[32:33]"); A("s_waitcnt lgkmcnt(0)")
        A("s_sub_u32 s32, s32, s28")
        A("s_cmp_lt_u32 s32, s30")
        A("s_cbranch_scc1 L_amp")
    A("L_end:")
    if stamps:
        A("s_mov_b64 exec, -1")
        A(f"s_mov_b32 {sSI}, 0"); stamp(63)
        A(f"v_writelane_b32 {vST}, {sR}, 62")
        A("s_getreg_b32 s26, hwreg(HW_REG_HW_ID)"); A(f"v_writelane_b32 {vST}, s26, 59")
        A("s_getreg_b32 s26, hwreg(HW_REG_XCC_ID, 0, 4)"); A(f"v_writelane_b32 {vST}, s26, 58")
        A(f"s_lshl_b32 {sT0}, s2, 11")
        A(f"s_add_u32 {sT0}, {sT0}, {WS_STAMP}")
        A(f"v_add_u32 v14, {sT0}, {vD4}")
        A(f"global_store_dword v14, {vST}, s[{P(11)[0]}:{P(11)[1]}]")
    A("L_exit:")
    A("s_endpgm")

    A("L_q_prep0:")
    q_prep()
    A(f"s_add_u32 {sA2}, {sA2}, {QB0}")
    A("s_branch L_q_go")
    A("L_vland:")
    for u in range(8):
        vmc(14-2*u)
        vperm(u)
        if u == 3: zeroO()
    stamp(9)
    A("s_nop 0")
    A("s_branch L_pv")
    def get_rank(tag):
        A("v_mov_b32 v29, 0")
        A(f"L_rk{tag}:")
        A(f"ds_read_b32 v28, v29 offset:{L_FLAG+4}")
        lgk(0)
        A("v_cmp_eq_u32 vcc, -1, v28")
        retry(f"L_rk{tag}", 1)
        A(f"v_readfirstlane_b32 {sR}, v28")
        A(f"s_cmp_eq_u32 {sX}, 7")
        A(f"s_cselect_b32 {sT0}, 20, 24")
        A(f"s_cmp_lt_u32 {sR}, {sT0}")
        A(f"s_cselect_b32 {sRole}, 1, 2")
        A(f"s_cmp_lt_u32 {sR}, 10")
        A(f"s_cselect_b32 {sRole}, 0, {sRole}")
        A(f"s_and_b32 {sY}, {sX}, 1")
        A(f"s_mul_i32 {sY}, {sY}, 1280")
        A(f"s_lshr_b32 {sT0}, {sX}, 1")
        A(f"s_lshl_b32 {sT0}, {sT0}, 14")
        A(f"s_add_u32 {sY}, {sY}, {sT0}")
        A(f"s_xor_b32 {sT0}, {sNear}, {8192 if dual else 0}")
        A(f"s_add_u32 {sY}, {sY}, {sT0}")
        A(f"s_lshl_b32 {sT0}, {sR}, 7")
        A(f"s_add_u32 {sY}, {sY}, {sT0}")
        A(f"s_add_u32 {sY}, {sY}, {YB}")
    def wo_dma():
        dma128("v20", 1280, None)
        A("v_xor_b32 v21, 64, v20")
        A(f"s_lshl_b32 {sT0}, {sX}, 9")
        A(f"s_lshl_b32 {sT1}, {sW}, 6")
        A(f"s_add_u32 {sT0}, {sT0}, {sT1}")
        A(f"s_mul_i32 {sT0}, {sT0}, 1280")
        A(f"s_lshl_b32 {sT1}, {sR}, 7")
        A(f"s_add_u32 {sT1}, {sT0}, {sT1}")
        A(f"s_lshl_b32 {sT3}, {sW}, 13")
        for k in range(8):
            A(f"s_add_u32 m0, {sT3}, {L_R1 + k*1024}")
            if k: A(f"s_add_u32 {sT1}, {sT1}, {8*1280}")
            A(f"buffer_load_dwordx4 v{20 + (k&1)}, {srd('WO')}, {sT1} offen {nt} lds")
    A("L_pfw:")
    A(f"s_lshl_b32 {sT0}, {sX}, 7")
    A(f"s_add_u32 {sT0}, {sT0}, {TK}")
    A("s_mov_b32 s26, 1")
    A(f"s_cmp_eq_u32 {sW}, 1")
    lgk(0)
    A("s_barrier")
    A("s_cbranch_scc0 L_notk")
    if dyn:
        A(f"s_atomic_add s26, s[{P(11)[0]}:{P(11)[1]}], {sT0} glc")
        lgk(0)
        A("s_add_u32 s26, s26, 1")
        A("s_min_u32 s26, s26, 31")
    else:
        A(f"s_mov_b32 s26, {sJ}")
    A("v_mov_b32 v28, s26")
    A("v_mov_b32 v29, 0")
    A(f"ds_write_b32 v29, v28 offset:{L_FLAG+4}")
    A("L_notk:")
    get_rank("a")
    if stamps == 1: stamp(18)
    if warm: warm_o(3)
    A(f"s_cmp_eq_u32 {sRole}, 0")
    A("s_cbranch_scc0 L_pf1")
    if woearly: wo_dma()
    A("s_branch L_pfw_done")
    A("L_pf1:")
    if npfo:
        first = 10 - (10*npfo)//4
        A(f"v_mul_u32_u24 v28, 1280, {vLane}")
        A(f"s_sub_u32 {sT1}, {sR}, 10")
        if womode:
            A(f"s_mul_i32 {sT1}, {sT1}, {npfo}")
            A(f"s_add_u32 {sT1}, {sT1}, {sW}")
            A(f"s_add_u32 {sT1}, {sT1}, {40 - 10*npfo}")
            A(f"s_and_b32 {sT2}, {sT1}, 3")
            A(f"s_add_u32 {sT2}, {sT2}, 4")
            A(f"s_lshr_b32 {sT1}, {sT1}, 2")
        else:
            A(f"s_sub_u32 {sT2}, 7, {sW}")
        A(f"s_lshl_b32 {sT0}, {sX}, 3")
        A(f"s_add_u32 {sT0}, {sT0}, {sT2}")
        A(f"s_mul_i32 {sT0}, {sT0}, {64*1280}")
        A(f"s_lshl_b32 {sT1}, {sT1}, 7")
        A(f"s_add_u32 {sT0}, {sT0}, {sT1}")
        A(f"s_cmp_lt_u32 {sR}, 20")
        A(f"s_cselect_b32 {sT1}, {sW}, 7")
        A(f"s_cmp_lt_u32 {sT1}, {npfo}")
        A(f"s_cselect_b32 {sT0}, {sT0}, {OOB}")
        A(f"buffer_load_dword {vDum}, v28, {srd('WO')}, {sT0} offen {pfl}")
    A(f"v_lshrrev_b32 v26, 2, {vLane}")
    A(f"v_mul_u32_u24 v26, 3456, v26")
    A(f"v_and_b32 v28, 3, {vLane}")
    A(f"v_lshl_add_u32 v26, v28, 7, v26")
    A(f"s_bitcmp1_b32 {sR}, 0")
    A(f"s_cselect_b32 s{SRD['WP']}, s{P(7)[0]}, s{P(6)[0]}")
    A(f"s_cselect_b32 s{SRD['WP']+1}, s{P(7)[1]}, s{P(6)[1]}")
    A(f"s_and_b32 s{SRD['WP']+1}, s{SRD['WP']+1}, 0xffff")
    A(f"s_sub_u32 {sM}, {sR}, 10")
    A(f"s_lshr_b32 {sM}, {sM}, 1")
    A(f"s_cmp_lt_u32 {sM}, 10")
    A(f"s_mul_i32 {sM}, {sM}, {64*3456}")
    A(f"s_cselect_b32 {sA2}, {sM}, {OOB}")
    A(f"s_mul_i32 {sM}, {sX}, 7")
    A(f"s_lshr_b32 {sM}, {sM}, 1")
    A(f"s_lshl_b32 {sM}, {sM}, 7")
    A(f"s_add_u32 {sA2}, {sA2}, {sM}")
    A(f"v_add_u32 v26, {sA2}, v26")
    if npf13:
        A(f"s_mul_i32 {sA2}, {sW}, {16*3456}")
        A(f"s_cmp_lt_u32 {sW}, {npf13}")
        A(f"s_cselect_b32 {sA2}, {sA2}, {OOB}")
        if pf20:
            A(f"s_cmp_ge_u32 {sR}, 20")
            A(f"s_cselect_b32 {sA2}, {sA2}, {OOB}")
        A(f"buffer_load_dword {vDum}, v26, {srd('WP')}, {sA2} offen {pfl}")
    A("s_branch L_pfw_done")
    A("L_pf2:")
    if pf20 and npf13:
        A(f"s_cmp_ge_u32 {sR}, 20")
        A("s_cbranch_scc1 L_pf2b")
        for k in range(npf13):
            A(f"s_mov_b32 {sT0}, {k*16*3456}")
            A(f"buffer_load_dword {vDum}, v26, {srd('WP')}, {sT0} offen {pfl}")
        A("L_pf2b:")
    for k in range(npf13, 4):
        A(f"s_mov_b32 {sT0}, {k*16*3456}")
        A(f"buffer_load_dword {vDum}, v26, {srd('WP')}, {sT0} offen {pfl}")
    if pfw2:
        A(f"s_cmp_ge_u32 {sR}, 24")
        A("s_cbranch_scc0 L_roles")
        A(f"v_lshlrev_b32 v28, 7, {vLane}")
        A(f"s_mul_i32 {sT0}, {sX}, {224*1280}")
        A(f"s_sub_u32 {sT1}, 31, {sR}")
        A(f"s_lshl_b32 {sT1}, {sT1}, 13")
        A(f"s_add_u32 {sT0}, {sT0}, {sT1}")
        for k in range(5):
            if k == 4:
                A(f"s_cmp_ge_u32 {sR}, 29"); A("s_cbranch_scc0 L_roles")
            if k: A(f"s_add_u32 {sT0}, {sT0}, {8*8192}")
            A(f"buffer_load_dword {vDum}, v28, {srd('W2')}, {sT0} offen {pfl}")
    A("s_branch L_roles")
    A("L_rank:")
    get_rank("b")
    A("s_branch L_roles")
    A("L_up0:")
    A(f"s_cmp_eq_u32 {sW}, 4")
    A("s_cbranch_scc1 L_g")
    vmc(0)
    A("L_hook:")
    vmc(8)
    A("s_barrier")
    stamp(12)
    A(f"s_cmp_ge_u32 {sW}, 4")
    A("s_cbranch_scc0 L_ychk")
    for l in up_reads: A(l)
    A(f"s_cmp_eq_u32 {sW}, 4")
    A("s_cbranch_scc1 L_ychk")
    A("s_branch L_up_bar")
    A("L_wo_dma:")
    if woearly:
        A(f"s_cmp_lt_u32 {sW}, 4")
        A("s_cbranch_scc1 L_wo_iss")
    wo_dma()
    A("L_wo_iss:")
    rd = wo_tr()
    vmc(0)
    for l in rd: A(l)
    lgk(12)
    A("s_branch L_wo_have")
    for t in tails:
        for l in t: A(l)
    A("L_code_end:")

    ref = open("cdna_kernels/" + NAME + ".s.ref").read().split("\n")
    head = [l for l in ref if l.startswith(";") and "@launch" not in l and "Override launch" not in l and "grid=ceil" not in l]
    out = "\n".join(head) + f"\n; @launch grid=(256,1,1) block=(512,1,1) lds={LDS_BYTES}\n"
    out += f""".amdgcn_target "amdgcn-amd-amdhsa--gfx950"
.text
.globl {NAME}_kernel
.p2align 8
.type {NAME}_kernel,@function
{NAME}_kernel:
"""
    out += A.text()
    out += f""".section .rodata,"a"
.p2align 6
.amdhsa_kernel {NAME}_kernel
  .amdhsa_next_free_vgpr 256
  .amdhsa_next_free_sgpr 102
  .amdhsa_accum_offset 256
  .amdhsa_group_segment_fixed_size 0
  .amdhsa_kernarg_size 96
  .amdhsa_user_sgpr_count 2
  .amdhsa_user_sgpr_kernarg_segment_ptr 1
  .amdhsa_system_sgpr_workgroup_id_x 1
  .amdhsa_float_denorm_mode_32 3
.end_amdhsa_kernel
"""
    return out

if __name__ == "__main__":
    kw = {}
    dst = "cdna_kernels/" + NAME + ".s"
    for a in sys.argv[1:]:
        k, v = a.split("=", 1)
        if k == "out": dst = v
        else:
            try: kw[k] = int(v)
            except ValueError: kw[k] = v
    open(dst, "w").write(gen(**kw))
    print("wrote", dst)
```

```python
import sys, math
from asmlib import Asm

NAME = "interleave_layers__mha_block_cached__glu_gated_swiglu__decode"

LSTRIDE = 0x24000
OB, YB, XB, HB, AB, TK = 0x0, 0x10000, 0x20000, 0x22800, 0x23800, 0x23c00
QB0, QB1 = 0x48000, 0x50000
WS_COMM = 0x58000
PRB = 0x60000
WS_STAMP = 0x100000
OOB = 0x7f000000
L_RED = 0
L_XI = 2048
L_ST = L_XI + 2560
L_OP = L_ST + 5120
L_ML = L_OP + 4096
L_ZERO = L_ML + 640
L_Q = L_ZERO + 64
L_FLAG = L_Q + 1024
L_ONE = L_FLAG + 64
L_WQ = 17408
assert L_ONE + 1280 <= L_WQ and L_ST % 512 == 0 and L_OP % 512 == 0
L_R1 = L_WQ + 20480
L_W2 = L_R1 + 65536
LDS_BYTES = L_W2 + 28672
sX, sJ, sW, sHead, sC, sKV, sL, sLay, sFast, sTO, sT0, sT1, sT2, sT3, sPL, sPH, sSI = \
    ["s%d" % i for i in range(3, 20)]
sV_ = "s20"; sM = "s21"; sA1 = "s22"; sA2 = "s23"; sHI = "s24"; sRole = "s25"; sMode = "s46"; sNCH = "s47"; sNear = "s84"
sO1, sO2, sP1, sP2, sY, sR = "s36", "s37", "s38", "s39", "s40", "s41"
P = lambda i: (36 + 2*i, 37 + 2*i)
SRD = dict(K=60, V=64, WS=68, WQ=72, WO=76, W2=80, X=84, OUT=88, WP=92)
def srd(n): return f"s[{SRD[n]}:{SRD[n]+3}]"
vLane, vR0, vQ64, vIdx, vXp, vD4, vML, vST = ["v%d" % i for i in range(8)]
vA = 8
vKoff, vVoff = "v12", "v13"
v8L = "v12"
vOPw, vMLr, vOpub, vAoff, vYoff = "v18", "v19", "v24", "v27", "v13"
vL16 = "v30"; vDum = "v31"
S0 = 32; K0 = 64; V0 = 128; L0 = 192
def vr(a, n): return f"v[{a}:{a+n-1}]" if n > 1 else f"v{a}"
DPPF = "row_mask:0xf bank_mask:0xf"
steps = [f"quad_perm:[1,0,3,2] {DPPF}", f"quad_perm:[2,3,0,1] {DPPF}", f"row_half_mirror {DPPF}", f"row_mirror {DPPF}",
         "row_bcast:15 row_mask:0xa bank_mask:0xf", "row_bcast:31 row_mask:0xc bank_mask:0xf"]
SMF = "v_smfmac_f32_16x16x64_bf16"
LOG2E = math.log2(math.e)

def gen(stamps=0, cyc=(), amp="", dbg="", force_slow=False, nt="nt", pfl="", dfl="",
        sl_q=0, sl_o=0, sl_y=0, sl_h=0, sl_x=2, d_y=22, d_z=3, d_f=3, pd=2, gap=1, npf13=1, gopos=15, rot=1, warm=1,
        prio=1, xlate=1, qbar=1, d_q=0, pdq=2, gapq=1, lateprio=0, pdo=1, b1='kv', dyn=1, woearly=1, pfw2=1, npfo=3, pf20=0, cpf=4, freerun=0, dual=1, pol=-1, racepos=1, rfl='', ampx=10, pre=1, rd2=1, pk=1, oseq=2, pdx=1, pdt=1, womode=1, twarm=0, ofl=''):
    A = Asm()
    PT = (1, 2)
    def mark(name, lay=None):
        if not amp or name not in amp.split(","): return
        r = (100, 0)[amp.split(",").index(name)]
        if lay is not None:
            A(f"s_cmp_eq_u32 {sL}, {lay}"); A(f"s_cbranch_scc0 L_mark_{name}")
        A(f"s_memrealtime s[{r}:{r+1}]"); A("s_waitcnt lgkmcnt(0)")
        if lay is not None: A(f"L_mark_{name}:")
    def stamp(code, fine=False):
        if not stamps: return
        if stamps == 2 and code not in (0, 10, 14, 63): return
        if stamps == 3 and code not in cyc: return
        if fine and stamps != 3: return
        A("s_memtime s[100:101]" if stamps == 3 else "s_memrealtime s[100:101]")
        A("s_waitcnt lgkmcnt(0)")
        A(f"s_add_u32 m0, {sSI}, {code}")
        A(f"v_writelane_b32 {vST}, s100, m0")
    def lgk(n): A(f"s_waitcnt lgkmcnt({n})")
    def vmc(n): A(f"s_waitcnt vmcnt({n})")
    def setprio(n):
        if prio: A(f"s_setprio {n}")
    def mksrd(n, ptr, size, part=3):
        b = SRD[n]; lo, hi = P(ptr)
        if part & 1: A(f"s_mov_b64 s[{b}:{b+1}], s[{lo}:{hi}]")
        if part & 2:
            A(f"s_mov_b32 s{b+2}, {size}")
            A(f"s_mov_b32 s{b+3}, 0x20000")
    def retry(label, sleep):
        A(f"s_cbranch_vccz {label}_ok")
        A(f"s_sub_u32 {sTO}, {sTO}, 1")
        if sleep: A(f"s_sleep {sleep}")
        A(f"s_cbranch_scc0 {label}")
        A("s_branch L_end")
        A(f"{label}_ok:")
    def missing(regs):
        regs = list(regs)
        if len(regs) == 1:
            A(f"v_cmp_eq_u32 vcc, -1, {regs[0]}"); return
        t = ["v28", "v29"]; k = 0; cur = []
        while len(regs) >= 3 and k < 2:
            A(f"v_max3_u32 {t[k]}, {regs[0]}, {regs[1]}, {regs[2]}"); regs = regs[3:]; cur.append(t[k]); k += 1
        regs = cur + regs
        while len(regs) > 1:
            if len(regs) >= 3:
                A(f"v_max3_u32 v28, {regs[0]}, {regs[-1]}, {regs[-2]}"); regs = ["v28"] + regs[1:-2]
            else:
                A(f"v_max_u32 v28, {regs[0]}, {regs[1]}"); regs = ["v28"]
        A("v_cmp_eq_u32 vcc, -1, v28")
    def poll(label, loads, regs, sleep, first_issued=False, depth=None):
        depth = pd if depth is None else depth
        n = len(loads)
        for k in range(1 if first_issued else 0, depth - 1):
            for l in loads: A(l)
            if gap: A(f"s_sleep {gap}")
        if first_issued and depth == 1: A(f"s_branch {label}_chk")
        A(f"{label}:")
        for l in loads: A(l)
        A(f"{label}_chk:")
        vmc(n*(depth-1))
        missing(regs)
        retry(label, sleep)
    tails = []
    def store_intra(label, stores, scc_ready=False):
        if not scc_ready: A(f"s_cmp_eq_u32 {sFast}, 0")
        A(f"s_cbranch_scc1 {label}_slow")
        for s in stores: A(s)
        A(f"{label}_done:")
        tails.append([f"{label}_slow:"] + [s + " sc1" if s.startswith("buffer") else s for s in stores] + [f"s_branch {label}_done"])
    def packpair(dst, val, tmp, fill=""):
        A(fill)
        A(f"v_mov_b32_dpp {tmp}, {val} quad_perm:[1,1,3,3] {DPPF}")
        A(f"v_cvt_pk_bf16_f32 {dst}, {val}, {tmp}")
        A(f"v_min_u32 {dst}, -2, {dst}")
    def kload(T):
        if T: A(f"v_xor_b32 {vKoff}, {(PT[0] ^ (PT[1] if T == 2 else 0)) << 12}, {vKoff}")
        for t in range(4):
            A(f"buffer_load_dwordx4 {vr(K0+16*T+4*t,4)}, {vKoff}, {srd('K')}, {sKV} offen offset:{64*t} {nt}")
    def vload(j0, j1):
        if j0 == 8: A(f"v_xor_b32 {vVoff}, {PT[1] << 12}, {vVoff}")
        for j in range(j0, j1):
            A(f"buffer_load_dwordx4 {vr(L0+4*j,4)}, {vVoff}, {srd('V')}, {sKV} offen offset:{(j&7)*256} {nt}")
    def vperm(u):
        for q in range(4):
            a, b = L0 + 8*u + q, L0 + 8*u + 4 + q
            A(f"v_perm_b32 v{V0+8*(2*q)+u}, v{b}, v{a}, {sPL}")
            A(f"v_perm_b32 v{V0+8*(2*q+1)+u}, v{b}, v{a}, {sPH}")
    def dma128(dst, rowbytes, par):
        A(f"v_lshrrev_b32 {dst}, 3, {vLane}")
        A(f"v_mul_u32_u24 {dst}, {rowbytes}, {dst}")
        A(f"v_and_b32 v28, 0x70, {vL16}")
        A(f"v_and_b32 v29, 32, {vLane}")
        A(f"v_xor_b32 v28, v28, v29")
        if par is not None:
            A(f"s_and_b32 {sT0}, {par}, 1"); A(f"s_lshl_b32 {sT0}, {sT0}, 6")
            A(f"v_xor_b32 v28, {sT0}, v28")
        A(f"v_add_u32 {dst}, {dst}, v28")
    def tr128(dst, b5rows):
        A(f"v_lshlrev_b32 {dst}, 7, {vR0}")
        A(f"v_and_b32 v28, 12, {vR0}")
        A(f"v_lshl_add_u32 {dst}, v28, 3, {dst}")
        A(f"v_and_b32 v28, 3, {vLane}")
        A(f"v_lshl_add_u32 {dst}, v28, 3, {dst}")
        if b5rows:
            A(f"v_and_b32 v28, 32, {vLane}")
            A(f"v_lshl_add_u32 {dst}, v28, {int(math.log2(b5rows*128//32))}, {dst}")
    def qpub_off(dst, tmp, v_is_lane):
        A(f"v_and_b32 {dst}, 2, {vLane}"); A(f"v_lshlrev_b32 {dst}, 3, {dst}")
        A(f"v_and_b32 {tmp}, 12, {vLane}"); A(f"v_add_u32 {dst}, {dst}, {tmp}")
        if v_is_lane:
            A(f"v_and_b32 {tmp}, 48, {vLane}"); A(f"v_lshl_add_u32 {dst}, {tmp}, 4, {dst}")
    def qpub_cu(dst, tmp):
        A(f"s_lshl_b32 {dst}, {sHead}, 10")
        A(f"s_lshl_b32 {tmp}, {sC}, 5"); A(f"s_add_u32 {dst}, {dst}, {tmp}")
    def warm_o(w):
        A(f"s_lshl_b32 {sT0}, {sX}, 13")
        A(f"s_add_u32 {sT0}, {sT0}, {sLay}")
        A(f"s_lshl_b32 {sT2}, {sX}, 7")
        A(f"s_add_u32 {sT2}, {sT2}, {sLay}")
        A(f"s_add_u32 {sT2}, {sT2}, {AB}")
        A(f"s_cmp_lt_u32 {sR}, 2")
        A(f"s_cselect_b32 {sT3}, {sW}, 99")
        A(f"s_cmp_eq_u32 {sT3}, {w}")
        A(f"s_cselect_b32 {sT0}, {sT0}, {OOB}")
        A(f"s_cselect_b32 {sT2}, {sT2}, {OOB}")
        A(f"v_lshlrev_b32 v28, 7, {vLane}")
        A(f"buffer_load_dword {vDum}, v28, {srd('WS')}, {sT0} offen sc1")
        A(f"buffer_load_dword {vDum}, off, {srd('WS')}, {sT2} sc1")
    def stat_reads(addr, base):
        if rd2:
            A(f"ds_read2st64_b64 v[32:35], {addr} offset0:{base//512} offset1:{base//512+1}")
            A(f"ds_read2st64_b64 v[36:39], {addr} offset0:{base//512+2} offset1:{base//512+3}")
        else:
            for k in range(4): A(f"ds_read_b64 {vr(32+2*k,2)}, {addr} offset:{base + 512*k}")
        A(f"ds_read_b64 v[40:41], {addr} offset:{base + 2048}")
    def stats_and_mfma(mf, nA, fill):
        A("v_mov_b32 v42, 1e-05")
        A(f"s_cmp_eq_u32 {sFast}, 0")
        lgk(nA+1)
        A("v_pk_add_f32 v[32:33], v[32:33], v[34:35]")
        A("v_pk_add_f32 v[36:37], v[36:37], v[38:39]")
        lgk(nA)
        A("v_pk_add_f32 v[32:33], v[32:33], v[40:41]")
        A("v_pk_add_f32 v[32:33], v[32:33], v[36:37]")
        for i, st in enumerate(steps):
            if i < nA:
                lgk(nA-1-i); mf(i)
            A(f"v_add_f32_dpp v32, v32, v32 {st}")
            A(f"v_add_f32_dpp v33, v33, v33 {st}")
        tail = [f"v_mul_f32 v32, {1/640!r}, v32", f"v_fmamk_f32 v33, v33, {1/640!r}, v42", "v_fma_f32 v33, -v32, v32, v33",
                "v_max_f32 v33, v42, v33", "v_rsq_f32 v33, v33", f"v_readlane_b32 {sT0}, v32, 63"]
        fill = list(fill)
        for t in tail:
            A(t)
            if fill: A(fill.pop(0))
        for f in fill: A(f)

    A("s_cmpk_ge_u32 s2, 256")
    A("s_cbranch_scc1 L_exit")
    mark("start")
    if stamps:
        A(f"s_mov_b32 {sSI}, 0"); A(f"v_mov_b32 {vST}, 0")
        stamp(0)
    A(f"s_load_dwordx2 s[{SRD['V']}:{SRD['V']+1}], s[0:1], 16")
    A("s_load_dwordx8 s[52:59], s[0:1], 64")
    A("s_load_dwordx16 s[36:51], s[0:1], 0")
    A(f"s_and_b32 {sX}, s2, 7")
    A(f"s_lshr_b32 {sHead}, s2, 6")
    A(f"s_lshl2_add_u32 {sHead}, {sX}, {sHead}")
    A(f"s_lshl_b32 {sKV}, {sHead}, 20")
    A(f"s_and_b32 {sT0}, s2, 56")
    A(f"s_mov_b32 s{SRD['V']+3}, 0x20000")
    A(f"s_lshl_b32 s{SRD['V']+2}, s{SRD['V']+3}, 8")
    A(f"v_lshrrev_b32 v16, 6, v0")
    A(f"v_mul_u32_u24 v17, 36, v16")
    A(f"v_and_or_b32 v17, v16, 3, v17")
    A(f"v_lshlrev_b32 v17, 1, v17")
    A(f"v_xor_b32 v17, {sT0}, v17")
    A(f"v_bfe_u32 v15, v0, 4, 2")
    A(f"v_xor_b32 {vVoff}, v15, v17")
    A(f"v_lshlrev_b32 {vVoff}, 7, {vVoff}")
    A(f"v_and_or_b32 {vVoff}, v0, 15, {vVoff}")
    A(f"v_lshlrev_b32 {vVoff}, 4, {vVoff}")
    if pre:
        lgk(0)
        vload(0, pre)
    A(f"s_lshr_b32 {sJ}, s2, 3")
    if cpf:
        A("s_getpc_b64 s[26:27]")
        A("s_and_b32 s26, s26, 0xffffff00")
        A(f"v_and_b32 v19, {cpf-1}, v0")
        A(f"s_lshl_b32 s28, {sJ}, 7")
        A("v_lshl_add_u32 v19, v19, 12, s28")
        A(f"v_min_u32 v19, L_code_end-{NAME}_kernel-4, v19")
        A("v_cmp_gt_u32 vcc, 64, v0")
        A("s_cbranch_vccz L_nocpf")
        A(f"global_load_dword {vDum}, v19, s[26:27]")
        A("L_nocpf:")
    A(f"v_readfirstlane_b32 {sW}, v16")
    A(f"v_lshlrev_b32 {vD4}, 2, v0")
    A(f"v_and_b32 {vLane}, 63, v0")
    A(f"s_and_b32 {sC}, {sJ}, 7")
    A(f"v_and_b32 v14, 15, {vLane}")
    A(f"v_lshl_add_u32 {vKoff}, v17, 3, v14")
    A(f"v_lshl_add_u32 {vKoff}, {vKoff}, 4, v15")
    A(f"v_lshlrev_b32 {vKoff}, 4, {vKoff}")
    A(f"v_lshlrev_b32 {vL16}, 4, {vLane}")
    dma128("v18", 8192, sW)
    A(f"s_lshr_b32 {sT1}, {sC}, 1")
    A(f"s_mul_i32 {sT1}, {sT1}, {160*8192}")
    A(f"s_lshl_b32 {sT2}, {sW}, 16")
    A(f"s_add_u32 {sT1}, {sT1}, {sT2}")
    A(f"s_lshl_b32 {sT2}, {sHead}, 8")
    A(f"s_add_u32 {sT1}, {sT1}, {sT2}")
    A(f"s_and_b32 {sT2}, {sC}, 1")
    A(f"s_lshl_b32 {sT2}, {sT2}, 7")
    A(f"s_add_u32 {sT1}, {sT1}, {sT2}")
    A(f"s_lshl_b32 {sT2}, {sW}, 10")
    first = [("X", 0, 1280), ("WQ", 3, 640*4096*2), ("WS", 11, WS_COMM), ("K", 1, 1 << 25)]
    for f in first: mksrd(*f, part=2)
    setprio(3)
    lgk(0)
    mark("karg")
    if amp.startswith("start,stag"):
        A(f"s_cmp_eq_u32 {sW}, 3"); A("s_cbranch_scc0 L_nostag")
        A(f"s_and_b32 s28, {sJ}, 15"); A("s_cbranch_scc1 L_nostag")
        A("s_mov_b32 s28, s100"); A("s_not_b32 s29, s100")
        A(f"s_atomic_umax s28, s[{P(10)[0]}:{P(10)[1]}], 64")
        A(f"s_atomic_umax s29, s[{P(10)[0]}:{P(10)[1]}], 68")
        A("L_nostag:")
    for f in first: mksrd(*f, part=1)
    A(f"s_cmp_eq_u32 {sW}, {99 if 'noclear' in dbg else 0}")
    A(f"buffer_load_dword {vXp}, {vD4}, {srd('X')}, 0 offen")
    A("s_cbranch_scc1 L_clear")
    A("L_noclear:")
    for k in range(3):
        if k == 2:
            A(f"s_cmp_lt_u32 {sW}, 4"); A("s_cbranch_scc0 L_wq_done")
        A(f"s_add_u32 m0, {sT2}, {L_WQ + k*8192}")
        if k: A(f"s_add_u32 {sT1}, {sT1}, {8*65536}")
        A(f"buffer_load_dwordx4 v18, {srd('WQ')}, {sT1} offen {nt} lds")
    A("L_wq_done:")
    def batch1():
        setprio(0)
        kload(0); vload(pre, pre + 4)
    A(f"s_cmp_eq_u32 {sW}, 0")
    A("s_cbranch_scc1 L_nob1")
    batch1()
    A("s_branch L_nob1")
    A("L_clear:")
    for r in range(24, 28): A(f"v_mov_b32 v{r}, -1")
    A(f"s_lshr_b32 {sT3}, s2, 7")
    A(f"s_mul_i32 {sT3}, {sT3}, {LSTRIDE}")
    A(f"s_and_b32 {sM}, s2, 127")
    A(f"s_lshl_b32 {sT0}, {sM}, 10")
    A(f"s_add_u32 {sT0}, {sT0}, {sT3}")
    A(f"buffer_store_dwordx4 v[24:27], {vL16}, {srd('WS')}, {sT0} offen sc1")
    A(f"s_lshl_b32 {sT0}, {sM}, 7")
    A(f"s_add_u32 {sT0}, {sT0}, {sT3}")
    A(f"s_add_u32 {sT0}, {sT0}, {XB}")
    A(f"v_and_b32 v21, 0x7c, {vD4}")
    A(f"buffer_store_dword v24, v21, {srd('WS')}, {sT0} offen sc1")
    qpub_off("v21", "v22", True)
    qpub_cu(sT0, sT3)
    A(f"s_add_u32 {sT0}, {sT0}, {QB0}")
    A(f"buffer_store_dword v24, v21, {srd('WS')}, {sT0} offen sc1")
    A(f"s_add_u32 {sT0}, {sT0}, {QB1 - QB0}")
    A(f"buffer_store_dword v24, v21, {srd('WS')}, {sT0} offen sc1")
    if pol < 0:
        A(f"s_and_b32 {sT0}, s2, 63")
        A(f"s_lshl_b32 {sT0}, {sT0}, 7")
        A(f"s_lshr_b32 {sT3}, s2, 6")
        A(f"s_lshl_b32 {sT3}, {sT3}, 14")
        A(f"s_add_u32 {sT0}, {sT0}, {sT3}")
        A(f"s_and_b32 s31, {sJ}, 1")
        A(f"s_lshl_b32 {sT3}, s31, 13")
        A(f"s_add_u32 {sT0}, {sT0}, {sT3}")
        A(f"s_add_u32 {sT0}, {sT0}, {PRB}")
        A(f"s_xor_b32 {sT3}, {sT0}, 8192")
        A(".p2align 5")
        A(f"s_load_dword s30, s[{P(11)[0]}:{P(11)[1]}], {sT0} {rfl}")
        A(f"s_load_dwordx2 s[28:29], s[{P(11)[0]}:{P(11)[1]}], {sT3} {rfl}")
        lgk(2)
        A("s_getreg_b32 s32, hwreg(HW_REG_IB_STS, 8, 4)")
    A("s_branch L_noclear")
    A("L_nob1:")
    mksrd("WO", 4, 4096*640*2); mksrd("W2", 8, 1728*640*2); mksrd("OUT", 9, 1280)
    mksrd("WP", 6, 640*1728*2)
    A(f"s_mov_b32 {sTO}, 0x80000")
    A(f"s_mov_b32 {sL}, 0")
    A(f"s_mov_b32 {sLay}, 0")
    A(f"s_mov_b32 {sFast}, 0")
    A(f"s_mov_b32 {sMode}, 0")
    A(f"s_mov_b32 {sPL}, 0x05040100")
    A(f"s_mov_b32 {sPH}, 0x07060302")
    A(f"s_mov_b32 {sHI}, 0xffff0000")
    A(f"s_cmp_eq_u32 {sX}, 7")
    A(f"s_cselect_b32 {sNCH}, {4*16}, {12*16}")
    A(f"s_mov_b32 {sRole}, 2")
    A(f"s_mov_b32 {sR}, 31")
    A(f"v_and_b32 v20, 3, {vLane}")
    A(f"v_lshlrev_b32 {vQ64}, 6, v15")
    A(f"v_lshl_add_u32 {vQ64}, v20, 4, {vQ64}")
    A(f"v_and_b32 {vR0}, 8, {vLane}")
    A(f"v_bfe_u32 v23, {vLane}, 4, 1")
    A(f"v_lshl_add_u32 {vR0}, v23, 2, {vR0}")
    A(f"v_bfe_u32 v23, {vLane}, 2, 1")
    A(f"v_add_u32 {vR0}, {vR0}, v23")
    A(f"v_and_b32 v17, 1, {vLane}")
    A(f"v_mul_u32_u24 {vIdx}, 0xaaaa, v17")
    A(f"v_bfe_u32 v23, {vLane}, 1, 1")
    A(f"v_mul_u32_u24 v23, 0xaaaa, v23")
    A(f"v_lshl_add_u32 {vIdx}, v23, 16, {vIdx}")
    A(f"v_add_u32 {vIdx}, 0x44444444, {vIdx}")
    A(f"v_lshl_add_u32 {vML}, {vLane}, 3, 64")
    A(f"s_lshl_b32 {sT0}, {sW}, 3")
    A(f"v_writelane_b32 {vML}, {sT0}, 63")
    A(f"v_mov_b32 v45, {vD4}")
    A(f"v_lshlrev_b32 v46, 1, {vD4}")
    A(f"v_mov_b32 v16, 0")
    A(f"v_lshlrev_b32 v17, 2, v14")
    A(f"ds_write_b32 v17, v16 offset:{L_ZERO}")
    A(f"v_mov_b32 v19, 0x3f803f80")
    A(f"v_min_u32 v20, 1276, {vD4}")
    A(f"ds_write_b32 v20, v19 offset:{L_ONE}")
    A(f"v_mov_b32 v25, {OOB}")
    A(f"v_mov_b32 v26, {OOB}")
    A(f"v_mov_b32 v24, {OOB}")
    A(f"v_mov_b32 v27, {OOB}")
    A(f"v_mov_b32 v{L0+62}, {OOB}")
    A(f"s_cmp_eq_u32 {sW}, 0")
    A("s_cbranch_scc0 L_noarr")
    A("v_mov_b32 v29, -1")
    A(f"ds_write_b32 {vL16}, v29 offset:{L_Q}")
    A(f"ds_write_b32 v16, v29 offset:{L_FLAG+4}")
    vmc(3)
    A("L_noarr:")
    if 'nowaitA' not in dbg: vmc(8)
    T = 56; GD = 40; GA = 48
    def xwrite():
        A(f"ds_write_b32 v45, {vXp} offset:{L_XI}")
        A(f"v_lshlrev_b32 v{GD}, 16, {vXp}")
        A(f"v_and_b32 v{GD+1}, {sHI}, {vXp}")
        A(f"v_mul_f32 v{GD+3}, v{GD}, v{GD}")
        A(f"v_add_f32 v{GD+2}, v{GD}, v{GD+1}")
        A(f"v_fmac_f32 v{GD+3}, v{GD+1}, v{GD+1}")
        A(f"ds_write_b64 v46, {vr(GD+2,2)} offset:{L_ST}")
    stamp(1)
    A(f"s_cmp_lt_u32 {sW}, 5")
    A("s_cbranch_scc0 L_barA")
    xwrite()
    A(f"s_cmp_eq_u32 {sW}, 0")
    A("s_cbranch_scc0 L_barA")
    A(f"s_getreg_b32 {sT0}, hwreg(HW_REG_XCC_ID, 0, 4)")
    A(f"s_mul_i32 s27, {sT0}, {sT0}")
    A(f"s_lshl_b32 s27, s27, 16")
    A(f"s_or_b32 s27, s27, {sT0}")
    A(f"s_lshl_b32 s85, s27, 5")
    if pol < 0:
        A(f"s_lshr_b32 {sT0}, {sT0}, 2")
        A(f"s_lshr_b32 s26, s32, 1")
        A(f"s_xnor_b32 s26, s26, s31")
        A(f"s_xor_b32 s26, s26, {sT0}")
        A(f"s_and_b32 s26, s26, 1")
        if stamps: A(f"v_writelane_b32 {vST}, s26, 61"); A(f"v_writelane_b32 {vST}, s32, 60")
        A(f"s_lshl_b32 s26, s26, 16")
        A(f"s_or_b32 s26, s26, 1")
    else:
        A(f"s_mov_b32 s26, {1 + (pol << 16)}")
    A(f"s_and_b32 {sT0}, {sX}, 4")
    A(f"s_mul_i32 {sT0}, {sT0}, 24")
    A(f"s_lshl_b32 {sT3}, {sX}, 3")
    A(f"s_add_u32 {sT0}, {sT0}, {sT3}")
    lgk(0)
    A(f"s_atomic_add_x2 s[26:27], s[{P(10)[0]}:{P(10)[1]}], {sT0}")
    batch1()
    vmc(8)
    A("s_branch L_barA2")
    A("L_barA:")
    lgk(0)
    A("L_barA2:")
    A(f"s_cmp_ge_u32 {sW}, 4")
    A("s_barrier")
    A("s_cbranch_scc1 L_q_prep0")
    def zeroO():
        for e in range(8):
            A(f"v_mov_b32 v{L0+4*e}, 0"); A(f"v_mov_b32 v{L0+4*e+2}, 0")
    def zeroS():
        for Tt in range(4):
            for r in (0, 1, 6, 7): A(f"v_mov_b32 v{S0+8*Tt+r}, 0")
    qload = f"buffer_load_dwordx4 {vr(vA,4)}, {vL16}, {srd('WS')}, {sA1} offen sc1"
    A("L_stream:")
    A(f"s_lshl_b32 {sA1}, {sHead}, 10")
    A(f"s_add_u32 {sA1}, {sA1}, {QB0}")
    kload(1); kload(2); kload(3)
    def goload(fl):
        A(f"s_load_dwordx8 s[28:35], s[{P(10)[0]}:{P(10)[1]}], 0 {fl}")
        A(f"s_load_dwordx8 s[36:43], s[{P(10)[0]}:{P(10)[1]}], 128 {fl}")
    vload(pre + 4, 8); vload(8, gopos)
    if twarm & 2:
        A(f"s_lshl_b32 {sT1}, {sJ}, 3")
        A(f"s_or_b32 {sT1}, {sT1}, {sW}")
        A(f"s_cmp_eq_u32 {sT1}, 2")
        A("s_cbranch_scc0 L_notw")
        A(f"s_mul_i32 {sT1}, {sX}, {512*1280}")
        A(f"s_add_u32 {sT2}, {sT1}, {512*1280 - 4}")
        A(f"s_buffer_load_dword s28, {srd('WO')}, {sT1}"); A(f"s_buffer_load_dword s28, {srd('WO')}, {sT2}")
        A(f"s_mov_b32 {sT1}, {640*3456 - 4}")
        A(f"s_buffer_load_dword s28, {srd('W2')}, 0"); A(f"s_buffer_load_dword s28, {srd('W2')}, {sT1}")
        for p_ in (6, 7):
            A(f"s_load_dword s28, s[{P(p_)[0]}:{P(p_)[1]}], 0"); A(f"s_load_dword s28, s[{P(p_)[0]}:{P(p_)[1]}], {sT1}")
        A("L_notw:")
    A(f"s_cmp_eq_u32 {sW}, 0")
    A("s_cbranch_scc0 L_nogo")
    goload("")
    A("L_nogo:")
    vload(gopos, 16)
    A(f"v_lshlrev_b32 {v8L}, 3, {vLane}")
    stamp(7)
    A(f"v_mov_b32 v29, 0")
    A(f"s_cmp_lt_u32 {sW}, 4")
    A("s_cbranch_scc0 L_barW")
    A(f"s_cmp_eq_u32 {sW}, {99 if 'noq' in dbg else 0}")
    A("s_cbranch_scc0 L_nostage")
    A("s_branch L_go_chk")
    A("L_go:")
    goload("glc")
    A("L_go_chk:")
    lgk(0)
    A(f"s_lshl_b32 {sT0}, {sX}, 1")
    A(f"s_mov_b32 m0, {sT0}")
    A("s_add_u32 s26, s28, s30")
    A("s_movrels_b32 s44, s29")
    for i in range(2, 8): A(f"s_add_u32 s26, s26, s{28+2*i}")
    A("s_bitcmp1_b32 s26, 8")
    A("s_cbranch_scc1 L_go_ok")
    A(f"s_sub_u32 {sTO}, {sTO}, 1")
    A("s_sleep 32")
    A("s_cbranch_scc0 L_go")
    A("s_branch L_end")
    A("L_go_ok:")
    if stamps: A(f"s_sub_u32 {sT0}, 0x80000, {sTO}"); A(f"v_writelane_b32 {vST}, {sT0}, 57")
    stamp(19)
    A("s_cmp_eq_u32 s44, s85")
    A(f"s_cselect_b32 {sT0}, {0 if force_slow else 1}, 0")
    A(f"s_cmp_gt_u32 s26, {128 << 16}")
    A("s_cselect_b32 s26, 2, 0")
    A(f"s_or_b32 {sT0}, {sT0}, s26")
    A(f"v_mov_b32 v15, {sT0}")
    A(f"ds_write_b32 v29, v15 offset:{L_FLAG}")
    A("L_q0:")
    A(qload)
    vmc(0)
    A(f"v_max3_u32 v14, v{vA}, v{vA+1}, v{vA+2}")
    A(f"v_max_u32 v14, v14, v{vA+3}")
    A("v_cmp_eq_u32 vcc, -1, v14")
    retry("L_q0", 16)
    A(f"ds_write_b128 {vL16}, {vr(vA,4)} offset:{L_Q}")
    A("s_branch L_nostage")
    A("L_barW:")
    A("s_barrier")
    A("L_nostage:")
    for l in [f"s_lshl_b32 {sT0}, {sW}, 9", f"v_lshl_add_u32 {vOPw}, {vLane}, 5, {sT0}", f"v_and_b32 {vMLr}, 56, {v8L}",
              f"s_lshl_b32 {sO1}, {sHead}, 11", f"s_lshl_b32 {sT0}, {sC}, 5", f"s_add_u32 {sO1}, {sO1}, {sT0}",
              f"v_lshrrev_b32 v28, 3, {vLane}", f"v_lshrrev_b32 {vOpub}, 1, {vMLr}",
              f"v_lshl_add_u32 {vOpub}, v28, 8, {vOpub}", f"v_and_b32 v28, 6, v28",
              f"s_lshl_b32 {sO2}, {sHead}, 5", f"s_lshl_b32 {sT0}, {sC}, 2", f"s_add_u32 {sO2}, {sO2}, {sT0}", f"s_add_u32 {sO2}, {sO2}, {AB}",
              f"v_add_lshl_u32 {vAoff}, v28, {vLane}, 2", f"v_lshlrev_b32 v28, 30, {vLane}",
              f"v_and_b32 {vAoff}, 28, {vAoff}", f"v_and_b32 v28, 0x40000000, v28", f"v_lshl_add_u32 {vYoff}, {vLane}, 1, v28",
              f"s_lshl_b32 {sP1}, {sX}, 13", f"s_lshl_b32 {sT0}, {sW}, 10", f"s_add_u32 {sP1}, {sP1}, {sT0}",
              f"s_lshl_b32 {sP2}, {sX}, 7", f"s_lshr_b32 {sT0}, {sW}, 1", f"s_lshl_b32 {sT0}, {sT0}, 5",
              f"s_add_u32 {sP2}, {sP2}, {sT0}", f"s_add_u32 {sP2}, {sP2}, {AB}",
              ]:
        A(l)
    zeroS()
    vmc(12 - pre)
    A("L_ql:")
    A(f"ds_read_b128 {vr(vA,4)}, {vL16} offset:{L_Q}")
    A(f"ds_read_b32 v15, v29 offset:{L_FLAG}")
    lgk(0)
    A(f"v_cmp_eq_u32 vcc, -1, v{vA}")
    if 'noq' not in dbg: retry("L_ql", 4)
    A(f"v_readfirstlane_b32 {sFast}, v15")
    A(f"s_getreg_b32 {sNear}, hwreg(HW_REG_XCC_ID, 2, 1)")
    A(f"s_lshr_b32 {sT0}, {sFast}, 1")
    A(f"s_xor_b32 {sNear}, {sNear}, {sT0}")
    A(f"s_lshl_b32 {sNear}, {sNear}, 13")
    A(f"s_and_b32 {sFast}, {sFast}, 1")
    A("s_branch L_qpoll_ok")

    A("L_g:")
    A(f"s_mul_i32 {sM}, {sX}, 1280")
    A(f"s_add_u32 {sM}, {sM}, {sLay}")
    A(f"s_add_u32 {sM}, {sM}, {XB}")
    A(f"s_cmp_eq_u32 {sMode}, 0")
    A(f"s_cselect_b32 {sT0}, 6, 7")
    A(f"s_cselect_b32 {sT1}, 63, 127")
    A(f"s_cselect_b32 {sT2}, {(2560 - LSTRIDE) & 0xffffffff}, 0")
    A(f"s_cselect_b32 {sT3}, 0, 1280")
    A(f"v_lshrrev_b32 v53, {sT0}, {vD4}")
    A(f"v_and_b32 v52, {sT1}, {vD4}")
    A(f"v_lshl_add_u32 v53, v53, 7, v52")
    A(f"s_add_u32 s28, {sT2}, {sLay}")
    A(f"s_add_u32 s28, s28, {YB}")
    A(f"s_add_u32 s28, s28, {sNear}")
    A(f"s_sub_u32 {sT2}, 2560, {sT3}")
    A(f"s_add_u32 s29, s28, {sT2}")
    for p in range(2, 8): A(f"s_add_u32 s{28+p}, s{26+p}, 16384")
    A(f"v_add_u32 v45, {sT3}, {vD4}")
    A(f"v_lshlrev_b32 v46, 1, v45")
    A(f"v_lshrrev_b32 v52, 1, {vLane}")
    A(f"v_xor_b32 v52, v52, {vLane}")
    A(f"v_and_b32 v52, 8, v52")
    A(f"v_and_b32 v54, 6, {vLane}")
    A(f"v_or_b32 v52, v52, v54")
    A("v_mov_b32 v55, 0x3f803f80")
    A("v_cmp_eq_u32 vcc, 0, v52")
    A(f"v_and_b32 v54, 1, {vLane}")
    A(f"v_mul_u32_u24 v54, 0x5555, v54")
    A(f"v_cndmask_b32 v{GA}, 0, v55, vcc")
    A(f"v_cndmask_b32 v{GA+1}, 0, v55, vcc")
    A("v_cmp_eq_u32 vcc, 4, v52")
    A(f"v_add_u32 v54, 0x8888, v54")
    A(f"v_cndmask_b32 v{GA+2}, 0, v55, vcc")
    A(f"v_cndmask_b32 v{GA+3}, 0, v55, vcc")
    A(f"s_cmp_eq_u32 {sMode}, 0")
    A("s_cbranch_scc0 L_g_x")
    A(f"s_sub_u32 {sM}, {sM}, {LSTRIDE}")
    poll("L_xpoll", [f"buffer_load_dword {vXp}, {vD4}, {srd('WS')}, {sM} offen sc1"], [vXp], sl_x, depth=pdx)
    stamp(4)
    if d_f: A(f"s_sleep {d_f}")
    if d_z > d_f:
        A(f"s_cmp_eq_u32 {sL}, 2"); A("s_cbranch_scc1 L_g_x"); A(f"s_sleep {d_z - d_f}")
    A("L_g_x:")
    yl = [f"buffer_load_dword v{T+p}, v53, {srd('WS')}, s{28+p} offen sc1" for p in range(8)]
    for l in yl: A(l)
    A(f"v_lshlrev_b32 v{GD}, 16, {vXp}")
    A(f"v_and_b32 v{GD+1}, {sHI}, {vXp}")
    A(f"s_cmp_eq_u32 {sL}, 0")
    A("s_cbranch_scc1 L_hook")
    A("L_ychk:")
    vmc(0)
    A("L_ychk2:")
    missing([f"v{T+p}" for p in range(8)])
    A("s_cbranch_vccnz L_yretry")
    t = ["L_yretry:", f"s_sub_u32 {sTO}, {sTO}, 1", "s_cbranch_scc1 L_end"]
    if sl_y: t.append(f"s_sleep {sl_y}")
    mk_ = [f"s[{r}:{r+1}]" for r in (26, 42, 44, 52, 54, 96, 98)] + ["vcc"]
    for p in range(8): t.append(f"v_cmp_eq_u32 {mk_[p]}, -1, v{T+p}")
    for p in range(8):
        t += [f"s_mov_b64 exec, {mk_[p]}", yl[p]]
    t.append("s_mov_b64 exec, -1")
    if freerun:
        if freerun > 1: t.append(f"s_waitcnt vmcnt({8*(freerun-1)})")
        t.append("s_branch L_ychk2")
    else:
        t.append("s_branch L_ychk")
    tails.append(t)
    if stamps:
        A(f"s_add_u32 {sSI}, {sSI}, {sMode}"); stamp(2); A(f"s_sub_u32 {sSI}, {sSI}, {sMode}")
    A(f"{SMF} {vr(GD,4)}, {vr(GA,4)}, {vr(T,8)}, v54")
    A(f"s_cmp_eq_u32 {sL}, 2")
    A(f"v_cvt_pk_bf16_f32 {vXp}, v{GD}, v{GD+1}")
    A("s_cbranch_scc1 L_final")
    xwrite()
    A(f"s_cmp_eq_u32 {sMode}, 1")
    A("s_cbranch_scc1 L_up_m")

    QW = L0 + 32; QD = L0 + 56; QC = L0 + 60; XA = 44; vQs = f"v{L0+61}"; vQp = f"v{L0+62}"
    def q_prep():
        A(f"s_sub_u32 {sV_}, {sW}, 4")
        tr128("v14", 16)
        A(f"s_lshl_b32 {sT0}, {sV_}, 5")
        A(f"v_xor_b32 v14, {sT0}, v14")
        for t in range(3):
            for rp in range(4):
                hb, rho = rp >> 1, rp & 1
                if t == 2 and hb: continue
                A(f"ds_read_b64_tr_b16 {vr(QW+8*t+2*rp,2)}, v14 offset:{L_WQ + (64*t+32*hb+2*rho)*128}")
        for r in range(4):
            A(f"v_mov_b32 v{QW+20+r}, 0"); A(f"v_mov_b32 v{QD+r}, 0")
        A(f"v_and_b32 v16, 48, {vLane}")
        A(f"v_and_b32 v15, 1, {vLane}")
        A(f"v_lshlrev_b32 v16, 1, v16")
        A(f"v_lshl_add_u32 v16, v15, 4, v16")
        A(f"s_lshr_b32 {sT0}, {sC}, 1")
        A(f"s_mul_i32 {sT0}, {sT0}, 320")
        A(f"v_add_u32 v16, {sT0}, v16")
        A(f"v_add_u32 v17, 256, v16")
        A(f"v_mov_b32 v15, {L_ZERO - L_XI}")
        A(f"v_cmp_gt_u32 vcc, 32, {vLane}")
        A(f"v_lshlrev_b32 {vQs}, 3, {vLane}")
        A("v_cndmask_b32 v17, v15, v17, vcc")
        A(f"v_and_b32 v15, 12, {vLane}")
        A("v_cmp_eq_u32 vcc, 4, v15")
        A(f"v_mov_b32 v15, {L_ONE - L_XI}")
        A("v_cndmask_b32 v16, v16, v15, vcc")
        A("v_cndmask_b32 v17, v17, v15, vcc")
        qpub_off(vQp, "v15", False)
        A(f"v_and_b32 v15, 0x31, {vLane}")
        A("v_cmp_eq_u32 vcc, 0, v15")
        A(f"v_mov_b32 v15, {OOB}")
        qpub_cu(sA2, sT0)
        A(f"v_cndmask_b32 {vQp}, v15, {vQp}, vcc")
        A(f"s_lshl_b32 {sT0}, {sV_}, 8"); A(f"s_add_u32 {sA2}, {sA2}, {sT0}")
        setprio(3)
    A(f"s_cmp_ge_u32 {sW}, 4")
    A("s_cbranch_scc0 L_att1")
    A("L_q_bar:")
    lgk(0)
    A("s_barrier")
    A("L_q_go:")
    stamp(5)
    stat_reads(vQs, L_ST)
    A(f"ds_read_b128 {vr(XA,4)}, v16 offset:{L_XI}")
    A(f"ds_read_b128 {vr(XA+4,4)}, v16 offset:{L_XI + 128}")
    A(f"ds_read_b128 {vr(XA+8,4)}, v17 offset:{L_XI}")
    stats_and_mfma(lambda i: A(f"{SMF} {vr(QD,4)}, {vr(XA+4*i,4)}, {vr(QW+8*i,8)}, {vIdx}"), 3,
                   [f"v_add_f32 v{QC}, v{QD}, v{QD+1}", f"v_add_f32 v{QD}, v{QD}, v{QD+1}", "", f"v_permlane16_swap_b32 v{QD}, v{QC}"])
    A(f"v_mul_f32 v33, {LOG2E/math.sqrt(128)!r}, v33")
    A(f"v_fma_f32 v{QD}, -{sT0}, v{QC}, v{QD}")
    A(f"v_readlane_b32 {sT1}, v33, 63")
    A(f"v_mov_b32_dpp v34, v{QD} quad_perm:[1,1,3,3] {DPPF}")
    A(f"v_mul_f32 v{QD}, {sT1}, v{QD}")
    A(f"v_mul_f32 v34, {sT1}, v34")
    A(f"v_cvt_pk_bf16_f32 v35, v{QD}, v34")
    A("v_min_u32 v35, -2, v35")
    store_intra("L_q_st", [f"buffer_store_dword v35, {vQp}, {srd('WS')}, {sA2} offen"], scc_ready=True)
    stamp(6)
    setprio(0)

    WW = L0 + 32; D0 = L0
    def wo_tr():
        tr128("v14", 16)
        A(f"s_lshl_b32 {sT0}, {sW}, 13")
        A(f"s_add_u32 {sT0}, {sT0}, {L_R1}")
        A(f"v_add_u32 v14, {sT0}, v14")
        for cb in range(1, 4): A(f"v_xor_b32 v{14+cb}, {32*cb}, v14")
        return [f"ds_read_b64_tr_b16 {vr(WW+8*cb+2*rp,2)}, v{14+cb} offset:{(32*(rp>>1)+2*(rp&1))*128}"
                for cb in (0, 2, 1, 3) for rp in range(4)]
    A(f"s_cmp_eq_u32 {sL}, 0")
    A("s_cbranch_scc1 L_stream")
    def att_prep(tag):
        zeroS()
        A(f"s_cmp_eq_u32 {sRole}, 0")
        A(f"s_cbranch_scc0 L_notr{tag}")
        for l in wo_tr(): A(l)
        A(f"L_notr{tag}:")
    A("s_barrier")
    A(qload)
    vmc(2)
    att_prep("b")
    A("s_branch L_qjoin")
    A("L_att1:")
    lgk(0)
    A("s_barrier")
    vmc(0)
    att_prep("a")
    A("s_barrier")
    if d_q: A(f"s_sleep {d_q}")
    A(qload)
    if pdq > 1 and gapq: A(f"s_sleep {gapq}")
    A("L_qjoin:")
    stamp(7)
    poll("L_qpoll", [qload], [f"v{vA+i}" for i in range(4)], sl_q, first_issued=True, depth=pdq)
    stamp(8)
    def tsum(Tt):
        b = S0 + 8*Tt
        if pk: return [f"v_pk_add_f32 v[{b}:{b+1}], v[{b}:{b+1}], v[{b+6}:{b+7}]", f"v_add_f32 v{b}, v{b}, v{b+1}"]
        return [f"v_add_f32 v{b}, v{b}, v{b+1}", f"v_add_f32 v{b+6}, v{b+6}, v{b+7}", f"v_add_f32 v{b}, v{b}, v{b+6}"]
    shadow = [[]]*8
    for idx, Tt in enumerate([0, 2, 1, 3]):
        for kp in range(2):
            A(f"{SMF} {vr(S0+8*Tt+4*kp,4)}, {vr(vA,4)}, {vr(K0+16*Tt+8*kp,8)}, {vIdx}")
            for l in shadow[2*idx+kp]: A(l)
    for l in tsum(0) + tsum(2) + tsum(1): A(l)
    A(f"v_permlane32_swap_b32 v{S0}, v{S0+16}")
    for l in tsum(3): A(l)
    A(f"v_add_f32 v{S0}, v{S0}, v{S0+16}")
    A(f"v_permlane32_swap_b32 v{S0+8}, v{S0+24}")
    A(f"v_add_f32 v{S0+8}, v{S0+8}, v{S0+24}")
    A(f"v_permlane16_swap_b32 v{S0}, v{S0+8}")
    A(f"v_add_f32 v14, v{S0}, v{S0+8}")
    stamp(31, True)
    A(f"v_max_f32_dpp v16, v14, v14 {steps[0]}")
    for st in steps[1:]: A(f"v_max_f32_dpp v16, v16, v16 {st}")
    A(f"v_readlane_b32 {sM}, v16, 63")
    A(f"s_cmp_eq_u32 {sL}, 0")
    A(f"v_subrev_f32 v14, {sM}, v14")
    A("v_exp_f32 v14, v14")
    A(f"v_mov_b32_dpp v15, v14 quad_perm:[1,1,3,3] {DPPF}")
    vP = 20
    A(f"v_cvt_pk_bf16_f32 v{vP}, v14, v15")
    A(f"v_add_f32_dpp v17, v14, v14 {steps[0]}")
    for q in range(1, 4): A(f"v_mov_b32_dpp v{vP+q}, v{vP} row_ror:{16-4*q} {DPPF}")
    A("s_cbranch_scc1 L_vland")
    A("L_pv:")
    stamp(32, True)
    A(f"s_cmp_lt_u32 {sW}, 4")
    def pv(e): A(f"{SMF} {vr(L0+4*e,4)}, {vr(vP,4)}, {vr(V0+8*e,8)}, {vIdx} abid:1")
    def oadd(e): A(f"v_add_f32 v{S0+e}, v{L0+4*e}, v{L0+4*e+2}")
    def owr(h):
        if h == 0: A("s_mov_b64 exec, 0xffff")
        A(f"ds_write_b128 {vOPw}, {vr(S0+4*h,4)} offset:{L_OP+16*h}")
        if h == 1: A("s_mov_b64 exec, -1")
    for e in range(5):
        pv(e); A(f"v_add_f32_dpp v17, v17, v17 {steps[e+1]}")
    A(f"ds_write_b64 {vML}, v[16:17] offset:{L_ML}")
    pv(5); oadd(0); oadd(1)
    pv(6); oadd(2)
    pv(7); oadd(3)
    A("s_cbranch_scc1 L_early")
    lgk(0)
    stamp(33, True)
    A("s_barrier")
    stamp(34, True)
    owr(0)
    for e in range(4, 8): oadd(e)
    owr(1)
    A("L_noread:")
    A(f"s_cmp_eq_u32 {sL}, 0")
    lgk(0)
    stamp(10)
    if stamps: A(f"s_cmp_eq_u32 {sL}, 0")
    A("s_barrier")
    if 'stop' in dbg: A("s_branch L_end")
    A("s_cbranch_scc1 L_rank")
    A("s_branch L_roles")
    A("L_early:")
    owr(0)
    A("s_nop 1")
    for e in range(4, 8): oadd(e)
    owr(1)
    A(f"s_cmp_eq_u32 {sL}, 0")
    A("s_cbranch_scc1 L_pfw")
    A("L_pfw_done:")
    A(f"s_cmp_lt_u32 {sW}, 2")
    lgk(0)
    A("s_barrier")
    A("s_cbranch_scc0 L_noread")
    A(f"ds_read_b64 v[16:17], {vMLr} offset:{L_ML}")
    A(f"s_cmp_eq_u32 {sW}, 1")
    lgk(0)
    A(f"v_max_f32_dpp v14, v16, v16 {steps[0]}")
    for st in steps[1:3]: A(f"v_max_f32_dpp v14, v14, v14 {st}")
    A("v_sub_f32 v16, v16, v14")
    A("v_exp_f32 v16, v16")
    A("s_cbranch_scc1 L_awave")
    stamp(10)
    A("s_barrier")
    mark("att1", 0)
    stamp(18, True)
    if 'stop' in dbg: A("s_branch L_end")
    if rd2:
        for w in range(4): A(f"ds_read2st64_b64 {vr(40+4*w,4)}, {v8L} offset0:{L_OP//512 + 2*w} offset1:{L_OP//512 + 2*w + 1}")
    else:
        for w in range(8): A(f"ds_read_b64 {vr(40+2*w,2)}, {v8L} offset:{L_OP + 512*w}")
    u_ = 1 if rd2 else 2
    A("v_mul_f32 v17, v16, v17")
    A(f"s_cmp_eq_u32 {sFast}, 0")
    for st in steps[:3]: A(f"v_add_f32_dpp v17, v17, v17 {st}")
    A("v_rcp_f32 v15, v17")
    lgk(3*u_)
    A(f"v_mul_f32_dpp v20, v16, v40 row_newbcast:0 {DPPF}")
    A(f"v_mul_f32_dpp v21, v16, v41 row_newbcast:0 {DPPF}")
    A(f"v_mul_f32_dpp v22, v16, v42 row_newbcast:1 {DPPF}")
    A(f"v_mul_f32_dpp v23, v16, v43 row_newbcast:1 {DPPF}")
    for w in range(2, 8):
        if w in (2, 4, 6): lgk((3 - w//2)*u_)
        A(f"v_fmac_f32_dpp v{20+2*(w&1)}, v16, v{40+2*w} row_newbcast:{w} {DPPF}")
        A(f"v_fmac_f32_dpp v{21+2*(w&1)}, v16, v{41+2*w} row_newbcast:{w} {DPPF}")
    A("v_pk_add_f32 v[20:21], v[20:21], v[22:23]")
    A("v_pk_mul_f32 v[20:21], v[20:21], v[14:15] op_sel:[0,1] op_sel_hi:[1,1]")
    A("v_cvt_pk_bf16_f32 v20, v20, v21")
    A("v_min_u32 v20, -2, v20")
    store_intra("L_o_st", [f"buffer_store_dword v20, {vOpub}, {srd('WS')}, {sO1} offen"], scc_ready=True)
    stamp(11)
    A(f"s_cmp_eq_u32 {sL}, 0")
    A("s_cbranch_scc1 L_pf2")
    A("L_roles:")
    A(f"s_cmp_eq_u32 {sRole}, 0")
    A("s_cbranch_scc0 L_notwo")

    aload = f"buffer_load_dword v14, {vAoff}, {srd('WS')}, {sP2} offen sc1"
    oload = f"buffer_load_dwordx4 {vr(vA,4)}, {vL16}, {srd('WS')}, {sP1} offen sc1"
    A(f"s_cmp_eq_u32 {sL}, 0")
    A("s_cbranch_scc1 L_wo_dma")
    A("L_wo_have:")
    A(aload)
    if not oseq: A(oload)
    for r in range(16): A(f"v_mov_b32 v{D0+r}, 0")
    stamp(12)
    if oseq:
        poll("L_apoll", [aload], ["v14"], sl_o, first_issued=True, depth=oseq)
        A(oload)
    else:
        poll("L_apoll", [aload, oload], ["v14"], sl_o, first_issued=True, depth=pdo)
        if pdo == 1: A(oload)
    stamp(35, True)
    A(f"v_max_f32_dpp v16, v14, v14 {steps[0]}")
    for st in steps[1:3]: A(f"v_max_f32_dpp v16, v16, v16 {st}")
    A("v_sub_f32 v15, v14, v16")
    A("v_exp_f32 v15, v15")
    A(f"v_add_f32_dpp v16, v15, v15 {steps[0]}")
    for st in steps[1:3]: A(f"v_add_f32_dpp v16, v16, v16 {st}")
    A("v_rcp_f32 v16, v16")
    lgk(0)
    if not oseq: missing([f"v{vA+i}" for i in range(4)])
    A("v_mul_f32 v15, v15, v16")
    if not oseq: A("s_cbranch_vccz L_opoll_ok")
    poll("L_opoll", [oload], [f"v{vA+i}" for i in range(4)], sl_o, first_issued=True, depth=pdo)
    stamp(13)
    cbo = [0, 2, 1, 3]
    for cb in cbo: A(f"{SMF} {vr(D0+4*cb,4)}, {vr(vA,4)}, {vr(WW+8*cb,8)}, {vIdx}")
    A(f"v_mov_b32_dpp v16, v15 row_newbcast:0 {DPPF}")
    A(f"v_mov_b32_dpp v17, v15 row_newbcast:1 {DPPF}")
    def wsum(cb):
        d = D0 + 4*cb
        if pk:
            A(f"v_pk_mul_f32 v[{d}:{d+1}], v[{d}:{d+1}], v[16:17] op_sel_hi:[1,0]")
            A(f"v_pk_fma_f32 v[{d}:{d+1}], v[{d+2}:{d+3}], v[16:17], v[{d}:{d+1}] op_sel:[0,1,0] op_sel_hi:[1,1,1]")
            A(f"v_add_f32 v{d}, v{d}, v{d+1}")
            return
        A(f"v_add_f32 v{d}, v{d}, v{d+1}")
        A(f"v_add_f32 v{d+2}, v{d+2}, v{d+3}")
        A(f"v_mul_f32 v{d}, v16, v{d}")
        A(f"v_fmac_f32 v{d}, v17, v{d+2}")
    wsum(0); wsum(2); wsum(1)
    A(f"v_permlane32_swap_b32 v{D0}, v{D0+8}")
    wsum(3)
    A(f"v_add_f32 v{D0}, v{D0}, v{D0+8}")
    A(f"v_permlane32_swap_b32 v{D0+4}, v{D0+12}")
    A(f"v_add_f32 v{D0+4}, v{D0+4}, v{D0+12}")
    A(f"v_permlane16_swap_b32 v{D0}, v{D0+4}")
    A(f"v_add_f32 v{D0}, v{D0}, v{D0+4}")
    A(f"ds_write_b32 {vD4}, v{D0} offset:{L_RED}")
    A(f"s_cmp_eq_u32 {sW}, 0")
    lgk(0)
    stamp(19, True)
    if stamps == 3: A(f"s_cmp_eq_u32 {sW}, 0")
    A("s_barrier")
    A("s_cbranch_scc0 L_wo_done")
    stamp(1, True)
    for w in range(4): A(f"ds_read2st64_b32 {vr(40+2*w,2)}, {vD4} offset0:{L_RED//256 + 2*w} offset1:{L_RED//256 + 2*w + 1}") if L_RED % 256 == 0 else None
    if L_RED % 256:
        for w in range(8): A(f"ds_read_b32 v{40+w}, {vD4} offset:{L_RED + 256*w}")
        lgk(4)
    else:
        lgk(2)
    A("v_pk_add_f32 v[40:41], v[40:41], v[42:43]")
    A(f"s_xor_b32 {sT3}, {sY}, 8192")
    lgk(0)
    A("v_pk_add_f32 v[44:45], v[44:45], v[46:47]")
    A("v_pk_add_f32 v[40:41], v[40:41], v[44:45]")
    A("v_add_f32 v40, v40, v41")
    packpair("v42", "v40", "v41")
    A(f"buffer_store_dword v42, {vYoff}, {srd('WS')}, {sY} offen sc1")
    if dual: A(f"buffer_store_dword v42, {vYoff}, {srd('WS')}, {sT3} offen sc1")
    stamp(14)
    A("L_wo_done:")
    A(f"s_cmp_eq_u32 {sL}, 0")
    A("s_cbranch_scc0 L_w2_have")
    dma128("v20", 1280, sW)
    A(f"s_mul_i32 {sT0}, {sX}, 224")
    A(f"s_lshl_b32 {sT1}, {sW}, 3")
    A(f"s_add_u32 {sT0}, {sT0}, {sT1}")
    A(f"s_mul_i32 {sT0}, {sT0}, 1280")
    A(f"s_lshl_b32 {sT1}, {sR}, 7")
    A(f"s_add_u32 {sT0}, {sT0}, {sT1}")
    A(f"s_lshl_b32 {sT3}, {sW}, 10")
    A("s_barrier")
    for k in range(4):
        if k == 3:
            A(f"s_cmp_lt_u32 {sW}, 4"); A("s_cbranch_scc0 L_w2_iss")
        A(f"s_add_u32 m0, {sT3}, {L_W2 + k*8192}")
        if k: A(f"s_add_u32 {sT0}, {sT0}, {64*1280}")
        A(f"buffer_load_dwordx4 v20, {srd('W2')}, {sT0} offen {nt} lds")
    A("L_w2_iss:")
    vmc(0)
    A("s_barrier")
    A("L_w2_have:")
    A(f"s_sub_u32 {sV_}, {sW}, 5")
    A(f"s_cmp_lt_u32 {sV_}, 2")
    A("s_cbranch_scc0 L_nextlayer")
    A1 = 48; W = L0; DD = 32
    tr128("v21", 0)
    A(f"s_lshl_b32 {sT0}, {sV_}, 6")
    A(f"v_xor_b32 v21, {sT0}, v21")
    A(f"v_add_u32 v21, {L_W2}, v21")
    A(f"v_and_b32 v20, 32, {vLane}")
    A(f"v_lshl_add_u32 v20, v20, 7, v21")
    A("v_xor_b32 v22, 32, v20")
    A("v_xor_b32 v23, 32, v21")
    A("s_sleep 4")
    for cb in range(2):
        for u in range(2):
            for kp in range(2):
                for rp in range(4):
                    hb, rho = rp >> 1, rp & 1
                    A(f"ds_read_b64_tr_b16 {vr(W+32*cb+16*u+8*kp+2*rp,2)}, v{20 + 2*cb + (1 if (u and hb) else 0)} offset:{(128*u+64*hb+16*kp+2*rho)*128}")
    for r in range(16): A(f"v_mov_b32 v{DD+r}, 0")
    A(f"v_mov_b32 v26, {OOB}")
    A(f"v_cmp_gt_u32 vcc, {sNCH}, {vQ64}")
    A(f"s_lshl_b32 {sA1}, {sX}, 9")
    A(f"s_add_u32 {sA1}, {sA1}, {sLay}")
    A(f"v_cndmask_b32 v25, v26, {vQ64}, vcc")
    A(f"s_add_u32 {sA1}, {sA1}, {HB}")
    A(f"v_cmp_gt_u32 vcc, 32, {vLane}")
    A(f"s_and_b32 {sT2}, {sX}, 1")
    A(f"s_mul_i32 {sT2}, {sT2}, 1280")
    A(f"v_cndmask_b32 v26, v26, {vYoff}, vcc")
    A(f"s_add_u32 {sT0}, {sR}, {sV_}"); A(f"s_lshl_b32 {sT0}, {sT0}, 7")
    A(f"s_add_u32 {sT2}, {sT2}, {sT0}")
    A(f"s_add_u32 {sT2}, {sT2}, {sY}")
    A(f"s_add_u32 {sT2}, {sT2}, 2560")
    A(f"s_xor_b32 {sT3}, {sT2}, 8192")
    setprio(3)
    lgk(0)
    stamp(15)
    poll("L_hpoll", [f"buffer_load_dwordx4 {vr(vA,4)}, {vQ64}, {srd('WS')}, {sA1} offen sc1",
                     f"buffer_load_dwordx4 {vr(A1,4)}, v25, {srd('WS')}, {sA1} offen offset:256 sc1"],
         [f"v{vA+i}" for i in range(4)] + [f"v{A1+i}" for i in range(4)], sl_h)
    stamp(16)
    for cb in range(2):
        for kp in range(2):
            for u in range(2):
                A(f"{SMF} {vr(DD+8*cb+4*kp,4)}, {vr(A1 if u else vA,4)}, {vr(W+32*cb+16*u+8*kp,8)}, {vIdx}")
    A(f"v_add_f32 v{DD}, v{DD}, v{DD+1}")
    A(f"v_add_f32 v{DD+6}, v{DD+6}, v{DD+7}")
    A(f"v_add_f32 v14, v{DD}, v{DD+6}")
    A(f"v_add_f32 v{DD+8}, v{DD+8}, v{DD+9}")
    A(f"v_add_f32 v{DD+14}, v{DD+14}, v{DD+15}")
    A(f"v_add_f32_dpp v14, v{DD+8}, v{DD+14} quad_perm:[0,1,2,3] row_mask:0x2 bank_mask:0xf")
    packpair("v22", "v14", "v15")
    A(f"buffer_store_dword v22, v26, {srd('WS')}, {sT2} offen sc1")
    if dual: A(f"buffer_store_dword v22, v26, {srd('WS')}, {sT3} offen sc1")
    stamp(17)
    vmc(1 + dual)
    A("s_branch L_nextlayer")

    A("L_awave:")
    A("s_barrier")
    if 'stop' in dbg: A("s_branch L_end")
    A("v_mul_f32 v17, v16, v17")
    A(f"s_cmp_eq_u32 {sFast}, 0")
    for st in steps[:3]: A(f"v_add_f32_dpp v17, v17, v17 {st}")
    A("v_log_f32 v17, v17")
    A("s_mov_b64 exec, 1")
    A("v_add_f32 v17, v17, v14")
    A("v_min_u32 v17, -2, v17")
    store_intra("L_a_st", [f"buffer_store_dword v17, off, {srd('WS')}, {sO2}"], scc_ready=True)
    A("s_mov_b64 exec, -1")
    A("s_branch L_roles")

    A("L_notwo:")
    A(f"s_cmp_eq_u32 {sRole}, 2")
    A("s_cbranch_scc1 L_nextlayer")
    UW = L0; UA = L0 + 40; UD = L0 + 60; UC = 43
    A(f"s_cmp_eq_u32 {sL}, 0")
    A("s_cbranch_scc0 L_w13_have")
    A(f"s_mul_i32 {sT0}, {sX}, {14*32}")
    A(f"s_lshl_b32 {sT1}, {sR}, 5")
    A(f"s_add_u32 {sT0}, {sT0}, {sT1}")
    A(f"s_sub_u32 {sT0}, {sT0}, 320")
    A(f"s_mul_i32 {sT1}, {sW}, {16*3456}")
    A(f"s_add_u32 {sT0}, {sT0}, {sT1}")
    A(f"v_lshrrev_b32 v21, 2, {vLane}")
    A(f"v_lshrrev_b32 v20, 4, {vLane}")
    A(f"v_and_b32 v20, 2, v20")
    A(f"v_xor_b32 v21, v21, v20")
    A("v_mul_u32_u24 v21, 3456, v21")
    A(f"v_xor_b32 v20, {vL16}, {vLane}")
    A(f"v_and_b32 v20, 16, v20")
    A(f"v_add3_u32 v21, {sT0}, v21, v20")
    A(f"v_and_b32 v20, 2, {vLane}")
    A("v_cmp_eq_u32 vcc, 0, v20")
    A(f"v_mov_b32 v22, s{P(7)[0]}"); A(f"v_mov_b32 v23, s{P(7)[1]}")
    A(f"v_mov_b32 v14, s{P(6)[0]}"); A(f"v_mov_b32 v15, s{P(6)[1]}")
    A("v_cndmask_b32 v22, v22, v14, vcc"); A("v_cndmask_b32 v23, v23, v15, vcc")
    A("v_add_co_u32 v22, vcc, v22, v21"); A("v_addc_co_u32 v23, vcc, 0, v23, vcc")
    A(f"s_lshl_b32 {sT2}, {sW}, 10")
    A("s_barrier")
    for k in range(5):
        if k:
            A(f"v_add_co_u32 v22, vcc, {8*16*3456}, v22"); A("v_addc_co_u32 v23, vcc, 0, v23, vcc")
        A(f"s_add_u32 m0, {sT2}, {L_R1 + k*8192}")
        A(f"global_load_lds_dwordx4 v[22:23], off {dfl}")
    A("s_branch L_w13_iss")
    A("L_w13_have:")
    A("s_barrier")
    stamp(12)
    A("L_w13_iss:")
    A(f"s_mov_b32 {sMode}, 1")
    A(f"s_cmp_ge_u32 {sW}, 4")
    A("s_cbranch_scc0 L_up_g")
    A(f"s_sub_u32 {sV_}, {sW}, 4")
    A(f"v_and_b32 v14, 32, {vLane}")
    A(f"v_and_b32 v15, 2, {vLane}")
    A(f"v_lshl_add_u32 v14, v15, 3, v14")
    A(f"v_add_u32 v14, v14, {vR0}")
    A(f"v_lshlrev_b32 v14, 6, v14")
    A(f"v_and_b32 v15, 1, {vLane}")
    A(f"v_lshl_add_u32 v14, v15, 5, v14")
    A(f"v_and_b32 v15, 8, {vLane}")
    A(f"v_lshl_add_u32 v14, v15, 4, v14")
    A(f"v_and_b32 v15, 16, {vLane}")
    A(f"v_add_u32 v14, v14, v15")
    A(f"s_lshl_b32 {sT0}, {sV_}, 3")
    A(f"v_xor_b32 v14, {sT0}, v14")
    A(f"v_add_u32 v14, {L_R1}, v14")
    A(f"v_xor_b32 v17, 128, v14")
    up_reads = [f"ds_read_b64_tr_b16 {vr(UW+8*u+2*rp,2)}, {'v17' if rp & 1 else 'v14'} offset:{(128*u+64*(rp>>1))*64}"
                for u in range(5) for rp in range(4)]
    for r in range(4):
        A(f"v_mov_b32 v{UD+r}, 0")
    A(f"v_and_b32 v15, 12, {vLane}")
    A("v_cmp_eq_u32 vcc, 4, v15")
    A(f"v_mov_b32 v15, {L_ONE - L_XI - 1280}")
    A(f"s_lshl_b32 {sA2}, {sX}, 9")
    A(f"v_cndmask_b32 v16, {vQ64}, v15, vcc")
    A(f"v_cmp_gt_u32 vcc, 4, {vLane}")
    A(f"v_mov_b32 v15, {OOB}")
    A(f"s_add_u32 {sA2}, {sA2}, {sT0}")
    A(f"v_cndmask_b32 v25, v15, {vYoff}, vcc")
    A(f"s_lshl_b32 {sT0}, {sR}, 5"); A(f"s_add_u32 {sA2}, {sA2}, {sT0}")
    A(f"s_add_u32 {sA2}, {sA2}, {HB - 320}")
    A(f"s_add_u32 {sA2}, {sA2}, {sLay}")
    setprio(3)
    A(f"s_cmp_eq_u32 {sL}, 0")
    A("s_cbranch_scc1 L_up0")
    for l in up_reads: A(l)
    A(f"s_cmp_eq_u32 {sW}, 4")
    A("s_cbranch_scc0 L_up_bar")
    if d_y > 4: A(f"s_sleep {d_y - 4}")
    A("s_branch L_g")
    A("L_up_g:")
    if d_y:
        A(f"s_cmp_eq_u32 {sL}, 0"); A("s_cbranch_scc1 L_g"); A(f"s_sleep {d_y}")
    A("s_branch L_g")
    A("L_up_m:")
    A(f"s_cmp_ge_u32 {sW}, 4")
    A("s_cbranch_scc0 L_up_nom")
    A("L_up_bar:")
    lgk(0)
    A("s_barrier")
    stamp(13)
    stat_reads(v8L, L_ST + 2560)
    for u in range(5): A(f"ds_read_b128 {vr(UA+4*u,4)}, v16 offset:{L_XI + 1280 + 256*u}")
    stats_and_mfma(lambda i: A(f"{SMF} {vr(UD,4)}, {vr(UA+4*i,4)}, {vr(UW+8*i,8)}, {vIdx}"), 5,
                   ["", "", "", f"v_add_f32 v{UD+2}, v{UD+2}, v{UD+3}", f"v_add_f32 v{UD}, v{UD}, v{UD+1}", "",
                    f"v_add_f32_dpp v{UC}, v{UD+2}, v{UD} row_shl:8 {DPPF}", f"v_add_f32_dpp v{UD}, v{UD+2}, v{UD} row_shl:8 {DPPF}",
                    f"v_readlane_b32 {sT1}, v33, 63", f"v_permlane16_swap_b32 v{UD}, v{UC}"])
    A(f"v_fma_f32 v{UD}, -{sT0}, v{UC}, v{UD}")
    A(f"v_mul_f32 v{UD}, {sT1}, v{UD}")
    A(f"v_mul_f32 v34, {-LOG2E!r}, v{UD}")
    A("v_exp_f32 v34, v34")
    A(f"v_mul_f32_dpp v{UD}, v{UD}, v{UD} row_shl:4 {DPPF}")
    A("v_add_f32 v34, 1.0, v34")
    A("v_rcp_f32 v34, v34")
    A(f"v_mul_f32 v{UD}, v{UD}, v34")
    packpair("v35", f"v{UD}", "v34")
    store_intra("L_h_st", [f"buffer_store_dword v35, v25, {srd('WS')}, {sA2} offen"], scc_ready=True)
    stamp(14)
    A("L_xpub:")
    A(f"s_cmp_eq_u32 {sR}, 10")
    A(f"s_cselect_b32 {sT0}, {sW}, 7")
    A(f"s_cmp_lt_u32 {sT0}, 5")
    A("s_cbranch_scc0 L_nextlayer")
    if xlate:
        A(f"s_add_u32 {sT0}, {sNCH}, 256")
        A(f"v_cmp_gt_u32 vcc, {sT0}, {v8L}")
        A(f"v_mov_b32 v23, {OOB}")
        A(f"s_lshl_b32 {sA1}, {sX}, 9")
        A(f"s_add_u32 {sA1}, {sA1}, {sLay}")
        A(f"v_cndmask_b32 v20, v23, {v8L}, vcc")
        A(f"s_add_u32 {sA1}, {sA1}, {HB}")
        poll("L_tpoll", [f"buffer_load_dwordx2 v[14:15], v20, {srd('WS')}, {sA1} offen sc1"], ["v14", "v15"], 0, depth=pdt)
        if pdt > 1: tdrain = True
    A(f"v_min_u32 v45, -2, {vXp}")
    store_intra("L_x_st", [f"buffer_store_dword v45, {vD4}, {srd('WS')}, {sM} offen"])
    if pdt > 1: vmc(1)

    A("L_nextlayer:")
    mark("h1", 0)
    setprio(0)
    A(f"s_add_u32 {sL}, {sL}, 1")
    A(f"s_add_u32 {sLay}, {sLay}, {LSTRIDE}")
    if stamps: A(f"s_add_u32 {sSI}, {sSI}, 20")
    A(f"s_mov_b32 {sMode}, 0")
    A(f"s_cmp_eq_u32 {sL}, 2")
    A("s_cbranch_scc1 L_last")
    for r in (sO1, sO2, sP1, sP2, sY): A(f"s_add_u32 {r}, {r}, {LSTRIDE}")
    A(f"s_lshl_b32 {sA1}, {sHead}, 10")
    A(f"s_add_u32 {sA1}, {sA1}, {QB1}")
    zeroO()
    if warm:
        A(f"s_cmp_eq_u32 {sW}, 7")
        A("s_cbranch_scc0 L_nowarm")
        warm_o(7)
        A(f"s_lshl_b32 {sT0}, {sHead}, 10")
        A(f"s_add_u32 {sT0}, {sT0}, {QB1}")
        A(f"buffer_load_dword {vDum}, {vL16}, {srd('WS')}, {sT0} offen sc1")
        A("L_nowarm:")
    A(f"s_cmp_ge_u32 {sW}, 4")
    A("s_cbranch_scc0 L_g")
    A("s_sleep 4")
    q_prep()
    A(f"s_add_u32 {sA2}, {sA2}, {QB1}")
    A(f"s_cmp_eq_u32 {sW}, 4")
    A("s_cbranch_scc1 L_g")
    A("s_branch L_q_bar")
    A("L_up_nom:")
    lgk(0)
    A("s_barrier")
    A("s_branch L_xpub")
    A("L_last:")
    A(f"s_add_u32 {sT0}, {sW}, 24")
    A(f"s_lshl_b32 {sT1}, {sX}, 8")
    A(f"s_or_b32 {sT1}, {sT1}, {sR}")
    A(f"s_cmp_eq_u32 {sT0}, {sT1}")
    A("s_cbranch_scc0 L_end")
    A(f"s_cmp_lt_u32 {sW}, 5")
    A("s_cbranch_scc0 L_end")
    if twarm & 1: A(f"buffer_load_dword {vDum}, {vD4}, {srd('OUT')}, 0 offen")
    A("s_branch L_g")

    A("L_final:")
    mark("end")
    A(f"buffer_store_dword {vXp}, {vD4}, {srd('OUT')}, 0 offen {ofl}")
    if stamps or amp: vmc(0)
    mark("end2")
    if amp:
        A(f"s_cmp_eq_u32 {sW}, 0"); A("s_cbranch_scc0 L_end")
        if amp.startswith("start,stag"):
            A(f"s_load_dwordx2 s[0:1], s[{P(10)[0]}:{P(10)[1]}], 64 glc"); lgk(0)
            if amp.endswith("stag"): A("s_not_b32 s100, s1")
            else: A("s_mov_b32 s0, s100"); A("s_not_b32 s100, s1")
        if amp == "votes":
            A(f"s_load_dwordx8 s[28:35], s[{P(10)[0]}:{P(10)[1]}], 0 glc"); A(f"s_load_dwordx8 s[36:43], s[{P(10)[0]}:{P(10)[1]}], 128 glc"); lgk(0)
            A("s_mov_b32 s0, 0"); A("s_mov_b32 s100, 0")
            for i in range(8): A(f"s_add_u32 s0, s0, s{28+2*i}")
            A("s_lshr_b32 s0, s0, 16")
        A("s_sub_u32 s30, s0, s100")
        A("s_min_u32 s30, s30, 5000")
        A(f"s_mul_i32 s30, s30, {ampx}")
        A("s_memrealtime s[28:29]"); A("s_waitcnt lgkmcnt(0)")
        A("L_amp:")
        A("s_memrealtime s[32:33]"); A("s_waitcnt lgkmcnt(0)")
        A("s_sub_u32 s32, s32, s28")
        A("s_cmp_lt_u32 s32, s30")
        A("s_cbranch_scc1 L_amp")
    A("L_end:")
    if stamps:
        A("s_mov_b64 exec, -1")
        A(f"s_mov_b32 {sSI}, 0"); stamp(63)
        A(f"v_writelane_b32 {vST}, {sR}, 62")
        A("s_getreg_b32 s26, hwreg(HW_REG_HW_ID)"); A(f"v_writelane_b32 {vST}, s26, 59")
        A("s_getreg_b32 s26, hwreg(HW_REG_XCC_ID, 0, 4)"); A(f"v_writelane_b32 {vST}, s26, 58")
        A(f"s_lshl_b32 {sT0}, s2, 11")
        A(f"s_add_u32 {sT0}, {sT0}, {WS_STAMP}")
        A(f"v_add_u32 v14, {sT0}, {vD4}")
        A(f"global_store_dword v14, {vST}, s[{P(11)[0]}:{P(11)[1]}]")
    A("L_exit:")
    A("s_endpgm")

    A("L_q_prep0:")
    q_prep()
    A(f"s_add_u32 {sA2}, {sA2}, {QB0}")
    A("s_branch L_q_go")
    A("L_vland:")
    for u in range(8):
        vmc(14-2*u)
        vperm(u)
        if u == 3: zeroO()
    stamp(9)
    A("s_nop 0")
    A("s_branch L_pv")
    def get_rank(tag):
        A("v_mov_b32 v29, 0")
        A(f"L_rk{tag}:")
        A(f"ds_read_b32 v28, v29 offset:{L_FLAG+4}")
        lgk(0)
        A("v_cmp_eq_u32 vcc, -1, v28")
        retry(f"L_rk{tag}", 1)
        A(f"v_readfirstlane_b32 {sR}, v28")
        A(f"s_cmp_eq_u32 {sX}, 7")
        A(f"s_cselect_b32 {sT0}, 20, 24")
        A(f"s_cmp_lt_u32 {sR}, {sT0}")
        A(f"s_cselect_b32 {sRole}, 1, 2")
        A(f"s_cmp_lt_u32 {sR}, 10")
        A(f"s_cselect_b32 {sRole}, 0, {sRole}")
        A(f"s_and_b32 {sY}, {sX}, 1")
        A(f"s_mul_i32 {sY}, {sY}, 1280")
        A(f"s_lshr_b32 {sT0}, {sX}, 1")
        A(f"s_lshl_b32 {sT0}, {sT0}, 14")
        A(f"s_add_u32 {sY}, {sY}, {sT0}")
        A(f"s_xor_b32 {sT0}, {sNear}, {8192 if dual else 0}")
        A(f"s_add_u32 {sY}, {sY}, {sT0}")
        A(f"s_lshl_b32 {sT0}, {sR}, 7")
        A(f"s_add_u32 {sY}, {sY}, {sT0}")
        A(f"s_add_u32 {sY}, {sY}, {YB}")
    def wo_dma():
        dma128("v20", 1280, None)
        A("v_xor_b32 v21, 64, v20")
        A(f"s_lshl_b32 {sT0}, {sX}, 9")
        A(f"s_lshl_b32 {sT1}, {sW}, 6")
        A(f"s_add_u32 {sT0}, {sT0}, {sT1}")
        A(f"s_mul_i32 {sT0}, {sT0}, 1280")
        A(f"s_lshl_b32 {sT1}, {sR}, 7")
        A(f"s_add_u32 {sT1}, {sT0}, {sT1}")
        A(f"s_lshl_b32 {sT3}, {sW}, 13")
        for k in range(8):
            A(f"s_add_u32 m0, {sT3}, {L_R1 + k*1024}")
            if k: A(f"s_add_u32 {sT1}, {sT1}, {8*1280}")
            A(f"buffer_load_dwordx4 v{20 + (k&1)}, {srd('WO')}, {sT1} offen {nt} lds")
    A("L_pfw:")
    A(f"s_lshl_b32 {sT0}, {sX}, 7")
    A(f"s_add_u32 {sT0}, {sT0}, {TK}")
    A("s_mov_b32 s26, 1")
    A(f"s_cmp_eq_u32 {sW}, 1")
    lgk(0)
    A("s_barrier")
    A("s_cbranch_scc0 L_notk")
    if dyn:
        A(f"s_atomic_add s26, s[{P(11)[0]}:{P(11)[1]}], {sT0} glc")
        lgk(0)
        A("s_add_u32 s26, s26, 1")
        A("s_min_u32 s26, s26, 31")
    else:
        A(f"s_mov_b32 s26, {sJ}")
    A("v_mov_b32 v28, s26")
    A("v_mov_b32 v29, 0")
    A(f"ds_write_b32 v29, v28 offset:{L_FLAG+4}")
    A("L_notk:")
    get_rank("a")
    if stamps == 1: stamp(18)
    if warm: warm_o(3)
    A(f"s_cmp_eq_u32 {sRole}, 0")
    A("s_cbranch_scc0 L_pf1")
    if woearly: wo_dma()
    A("s_branch L_pfw_done")
    A("L_pf1:")
    if npfo:
        first = 10 - (10*npfo)//4
        A(f"v_mul_u32_u24 v28, 1280, {vLane}")
        A(f"s_sub_u32 {sT1}, {sR}, 10")
        if womode:
            A(f"s_mul_i32 {sT1}, {sT1}, {npfo}")
            A(f"s_add_u32 {sT1}, {sT1}, {sW}")
            A(f"s_add_u32 {sT1}, {sT1}, {40 - 10*npfo}")
            A(f"s_and_b32 {sT2}, {sT1}, 3")
            A(f"s_add_u32 {sT2}, {sT2}, 4")
            A(f"s_lshr_b32 {sT1}, {sT1}, 2")
        else:
            A(f"s_sub_u32 {sT2}, 7, {sW}")
        A(f"s_lshl_b32 {sT0}, {sX}, 3")
        A(f"s_add_u32 {sT0}, {sT0}, {sT2}")
        A(f"s_mul_i32 {sT0}, {sT0}, {64*1280}")
        A(f"s_lshl_b32 {sT1}, {sT1}, 7")
        A(f"s_add_u32 {sT0}, {sT0}, {sT1}")
        A(f"s_cmp_lt_u32 {sR}, 20")
        A(f"s_cselect_b32 {sT1}, {sW}, 7")
        A(f"s_cmp_lt_u32 {sT1}, {npfo}")
        A(f"s_cselect_b32 {sT0}, {sT0}, {OOB}")
        A(f"buffer_load_dword {vDum}, v28, {srd('WO')}, {sT0} offen {pfl}")
    A(f"v_lshrrev_b32 v26, 2, {vLane}")
    A(f"v_mul_u32_u24 v26, 3456, v26")
    A(f"v_and_b32 v28, 3, {vLane}")
    A(f"v_lshl_add_u32 v26, v28, 7, v26")
    A(f"s_bitcmp1_b32 {sR}, 0")
    A(f"s_cselect_b32 s{SRD['WP']}, s{P(7)[0]}, s{P(6)[0]}")
    A(f"s_cselect_b32 s{SRD['WP']+1}, s{P(7)[1]}, s{P(6)[1]}")
    A(f"s_and_b32 s{SRD['WP']+1}, s{SRD['WP']+1}, 0xffff")
    A(f"s_sub_u32 {sM}, {sR}, 10")
    A(f"s_lshr_b32 {sM}, {sM}, 1")
    A(f"s_cmp_lt_u32 {sM}, 10")
    A(f"s_mul_i32 {sM}, {sM}, {64*3456}")
    A(f"s_cselect_b32 {sA2}, {sM}, {OOB}")
    A(f"s_mul_i32 {sM}, {sX}, 7")
    A(f"s_lshr_b32 {sM}, {sM}, 1")
    A(f"s_lshl_b32 {sM}, {sM}, 7")
    A(f"s_add_u32 {sA2}, {sA2}, {sM}")
    A(f"v_add_u32 v26, {sA2}, v26")
    if npf13:
        A(f"s_mul_i32 {sA2}, {sW}, {16*3456}")
        A(f"s_cmp_lt_u32 {sW}, {npf13}")
        A(f"s_cselect_b32 {sA2}, {sA2}, {OOB}")
        if pf20:
            A(f"s_cmp_ge_u32 {sR}, 20")
            A(f"s_cselect_b32 {sA2}, {sA2}, {OOB}")
        A(f"buffer_load_dword {vDum}, v26, {srd('WP')}, {sA2} offen {pfl}")
    A("s_branch L_pfw_done")
    A("L_pf2:")
    if pf20 and npf13:
        A(f"s_cmp_ge_u32 {sR}, 20")
        A("s_cbranch_scc1 L_pf2b")
        for k in range(npf13):
            A(f"s_mov_b32 {sT0}, {k*16*3456}")
            A(f"buffer_load_dword {vDum}, v26, {srd('WP')}, {sT0} offen {pfl}")
        A("L_pf2b:")
    for k in range(npf13, 4):
        A(f"s_mov_b32 {sT0}, {k*16*3456}")
        A(f"buffer_load_dword {vDum}, v26, {srd('WP')}, {sT0} offen {pfl}")
    if pfw2:
        A(f"s_cmp_ge_u32 {sR}, 24")
        A("s_cbranch_scc0 L_roles")
        A(f"v_lshlrev_b32 v28, 7, {vLane}")
        A(f"s_mul_i32 {sT0}, {sX}, {224*1280}")
        A(f"s_sub_u32 {sT1}, 31, {sR}")
        A(f"s_lshl_b32 {sT1}, {sT1}, 13")
        A(f"s_add_u32 {sT0}, {sT0}, {sT1}")
        for k in range(5):
            if k == 4:
                A(f"s_cmp_ge_u32 {sR}, 29"); A("s_cbranch_scc0 L_roles")
            if k: A(f"s_add_u32 {sT0}, {sT0}, {8*8192}")
            A(f"buffer_load_dword {vDum}, v28, {srd('W2')}, {sT0} offen {pfl}")
    A("s_branch L_roles")
    A("L_rank:")
    get_rank("b")
    A("s_branch L_roles")
    A("L_up0:")
    A(f"s_cmp_eq_u32 {sW}, 4")
    A("s_cbranch_scc1 L_g")
    vmc(0)
    A("L_hook:")
    vmc(8)
    A("s_barrier")
    stamp(12)
    A(f"s_cmp_ge_u32 {sW}, 4")
    A("s_cbranch_scc0 L_ychk")
    for l in up_reads: A(l)
    A(f"s_cmp_eq_u32 {sW}, 4")
    A("s_cbranch_scc1 L_ychk")
    A("s_branch L_up_bar")
    A("L_wo_dma:")
    if woearly:
        A(f"s_cmp_lt_u32 {sW}, 4")
        A("s_cbranch_scc1 L_wo_iss")
    wo_dma()
    A("L_wo_iss:")
    rd = wo_tr()
    vmc(0)
    for l in rd: A(l)
    lgk(12)
    A("s_branch L_wo_have")
    for t in tails:
        for l in t: A(l)
    A("L_code_end:")

    ref = open("cdna_kernels/" + NAME + ".s.ref").read().split("\n")
    head = [l for l in ref if l.startswith(";") and "@launch" not in l and "Override launch" not in l and "grid=ceil" not in l]
    out = "\n".join(head) + f"\n; @launch grid=(256,1,1) block=(512,1,1) lds={LDS_BYTES}\n"
    out += f""".amdgcn_target "amdgcn-amd-amdhsa--gfx950"
.text
.globl {NAME}_kernel
.p2align 8
.type {NAME}_kernel,@function
{NAME}_kernel:
"""
    out += A.text()
    out += f""".section .rodata,"a"
.p2align 6
.amdhsa_kernel {NAME}_kernel
  .amdhsa_next_free_vgpr 256
  .amdhsa_next_free_sgpr 102
  .amdhsa_accum_offset 256
  .amdhsa_group_segment_fixed_size 0
  .amdhsa_kernarg_size 96
  .amdhsa_user_sgpr_count 2
  .amdhsa_user_sgpr_kernarg_segment_ptr 1
  .amdhsa_system_sgpr_workgroup_id_x 1
  .amdhsa_float_denorm_mode_32 3
.end_amdhsa_kernel
"""
    return out

if __name__ == "__main__":
    kw = {}
    dst = "cdna_kernels/" + NAME + ".s"
    for a in sys.argv[1:]:
        k, v = a.split("=", 1)
        if k == "out": dst = v
        else:
            try: kw[k] = int(v)
            except ValueError: kw[k] = v
    open(dst, "w").write(gen(**kw))
    print("wrote", dst)
```
